```python
import torch

def _softmax(x, axis=-1):
    return torch.softmax(x, dim=axis)
def _gelu(x):
    return torch.nn.functional.gelu(x, approximate="tanh")
def _silu(x):
    return torch.nn.functional.silu(x)
def _sigmoid(x):
    return torch.sigmoid(x)
def _layernorm(x, axis=-1, eps=1e-5):
    m = x.mean(dim=axis, keepdim=True)
    v = x.var(dim=axis, keepdim=True, unbiased=False)
    return (x - m) / torch.sqrt(v + eps)
def _scatter_add(tgt, idx, src, axis=0):
    return tgt.clone().index_add_(axis, idx, src)
def _segment_sum(src, seg, n):
    out = torch.zeros((n,) + src.shape[1:], dtype=src.dtype)
    return out.index_add_(0, seg, src)
def _pad(x, pw):
    flat = tuple(v for pair in reversed(pw) for v in pair)
    return torch.nn.functional.pad(x, flat)

kernel_name = 'standalone__mha_block_cached__near_ridge'

def setup_inputs():

    _w = (lambda a: (lambda t: t.to(torch.bfloat16) if t.is_floating_point() else t)(torch.as_tensor(a)))
    B, Sq, D = 16, 112, 640
    H, Sk, Dh = 32, 512, 192
    return {
        "x": _w((lambda *s: torch.randn(*s, dtype=torch.bfloat16) * 0.8)(B, Sq, D)),
        "k_cache": _w((lambda *s: torch.randn(*s, dtype=torch.bfloat16) * 0.8)(B, H, Sk, Dh)),
        "v_cache": _w((lambda *s: torch.randn(*s, dtype=torch.bfloat16) * 0.05)(B, H, Sk, Dh)),
        "wq": _w((lambda *s: torch.randn(*s, dtype=torch.bfloat16) * 0.8)(D, H * Dh) * (D ** -0.5)),
        "wo": _w((lambda *s: torch.randn(*s, dtype=torch.bfloat16) * 0.05)(H * Dh, D) * ((H * Dh) ** -0.5)),
    }

def reference(x, k_cache, v_cache, wq, wo):
    B, Sq, D = x.shape
    H, Dh = 32, 192
    q = (lambda x, *d: x.permute(*d))((x @ wq).reshape(B, Sq, H, Dh), 0, 2, 1, 3)
    scores = torch.einsum("bhqd,bhkd->bhqk", q, k_cache) * (Dh ** -0.5)
    p = _softmax(scores, axis=-1)
    o = torch.einsum("bhqk,bhkd->bhqd", p, v_cache)
    return (lambda x, *d: x.permute(*d))(o, 0, 2, 1, 3).reshape(B, Sq, H * Dh) @ wo
```

```python
import re

REG = re.compile(r'\b([vsa])(?:\[(\d+):(\d+)\]|(\d+))')

def regs(text):
    out = set()
    for m in REG.finditer(text):
        k = m.group(1)
        if m.group(2) is not None:
            for i in range(int(m.group(2)), int(m.group(3)) + 1): out.add(k + str(i))
        else:
            out.add(k + m.group(4))
    if re.search(r'\bvcc\b', text): out.add('vcc')
    if re.search(r'\bm0\b', text): out.add('m0')
    if re.search(r'\bexec\b', text): out.add('exec')
    return out

TRANS = ('v_exp_f32', 'v_rcp_f32', 'v_log_f32', 'v_rsq_f32', 'v_sqrt_f32')

class Ins:
    def __init__(self, text):
        self.text = text
        t = text.split(';')[0].strip()
        self.label = t.endswith(':')
        self.directive = t.startswith('.')
        parts = t.split(None, 1)
        self.op = parts[0] if parts else ''
        ops = [o.strip() for o in parts[1].split(',')] if len(parts) > 1 else []
        self.ops = ops
        op = self.op
        self.w = set(); self.r = set(); self.srcc = set(); self.stdata = set()
        self.is_mfma = op.startswith('v_mfma')
        self.is_valu = op.startswith('v_') and not self.is_mfma
        self.is_trans = op in TRANS
        self.is_vmem = op.startswith('buffer_') or op.startswith('global_')
        self.is_ds = op.startswith('ds_')
        self.is_salu = op.startswith('s_')
        self.is_dma = self.is_vmem and re.search(r'\blds\b', t) is not None
        if self.label or self.directive or not op: return
        if self.is_mfma:
            self.w = regs(ops[0]); self.r = regs(ops[1]) | regs(ops[2]) | regs(ops[3]); self.srcc = regs(ops[3])
            self.ab = regs(ops[1]) | regs(ops[2])
        elif op.startswith('v_permlane'):
            self.w = regs(ops[0]) | regs(ops[1]); self.r = set(self.w)
        elif op.startswith('v_cmp'):
            self.w = regs(ops[0]); self.r = regs(','.join(ops[1:]))
        elif self.is_valu:
            self.w = regs(ops[0]); self.r = regs(','.join(ops[1:]))
            if op.startswith('v_fmac'): self.r |= self.w
        elif self.is_vmem:
            if self.is_dma:
                self.r = regs(','.join(ops)) | {'m0'}
            elif 'store' in op:
                self.r = regs(','.join(ops)); self.stdata = regs(ops[0]) if op.startswith('buffer') else regs(ops[1])
            else:
                self.w = regs(ops[0]); self.r = regs(','.join(ops[1:]))
        elif self.is_ds:
            if 'write' in op: self.r = regs(','.join(ops))
            else: self.w = regs(ops[0]); self.r = regs(','.join(ops[1:]))
        elif self.is_salu:
            if op.startswith('s_cmp') or op.startswith('s_cbranch') or op in ('s_branch', 's_barrier', 's_waitcnt', 's_nop', 's_endpgm', 's_setprio'):
                self.r = regs(','.join(ops))
            else:
                self.w = regs(ops[0]); self.r = regs(','.join(ops[1:]))
    def states(self):
        if self.label or self.directive or not self.op: return 0
        if self.op == 's_nop': return int(self.ops[0], 0) + 1
        return 1

def check_seq(seq, name=''):
    errs = []
    n = len(seq)
    for i, a in enumerate(seq):
        if a.states() == 0: continue
        dist = 0
        for j in range(i + 1, n):
            b = seq[j]
            if b.states() == 0: continue
            need = 0; why = ''
            vw = {x for x in a.w if x[0] in 'va' and x != 'vcc'}
            sw = {x for x in a.w if x[0] == 's' or x == 'vcc'}
            if a.is_mfma:
                p = 8 if '32x32x16' in a.op else 4
                dv = {8: 12, 4: 8}[p]
                if b.is_mfma:
                    if vw & b.ab: need, why = dv, 'mfma D->A/B'
                    elif (vw & b.srcc) and b.srcc != a.w: need, why = {8: 10, 4: 6}[p], 'mfma D->C partial'
                    elif (vw & b.w) and not (vw & b.srcc): need, why = dv, 'mfma D WAW (conservative)'
                elif (b.is_valu or b.is_vmem or b.is_ds) and (vw & (b.r | b.w)): need, why = dv, 'mfma D->valu/mem'
                if b.is_valu and (a.srcc & b.w):
                    k = {8: 7, 4: 3}[p]
                    if k > need: need, why = k, 'mfma C WAR'
            elif a.is_valu:
                if b.is_mfma and (vw & b.r): need, why = 2, 'valu->mfma'
                if b.op.startswith('v_permlane') and (vw & b.r): need, why = 2, 'valu->permlane'
                if b.op.startswith('v_readfirstlane') or b.op.startswith('v_readlane'):
                    if vw & b.r: need, why = max(need, 1), 'valu->readlane'
                if a.is_trans and b.is_valu and not b.is_trans and (vw & b.r): need, why = max(need, 1), 'trans->valu'
                if a.is_trans and b.is_mfma and (vw & b.r): need, why = 2, 'trans->mfma'
                if sw and b.is_vmem and (sw & b.r): need, why = 5, 'valu sgpr->vmem'
                if sw and b.is_valu and (sw & b.r): need, why = max(need, 2), 'valu sgpr->valu'
                if 'exec' in a.w and b.is_mfma: need, why = 4, 'valu exec->mfma'
            elif a.is_salu:
                if 'm0' in a.w and b.is_dma: need, why = 1, 'm0->dma'
            elif a.is_vmem and a.stdata and len(a.stdata) >= 3:
                if (b.w & a.stdata): need, why = (2 if b.is_valu else 1), 'store data WAR'
            if need > dist:
                errs.append('%s: hazard %s need %d have %d:\n    %s\n    %s' % (name, why, need, dist, a.text, b.text))
            dist += b.states()
            if dist >= 20: break
    return errs

class Asm:
    def __init__(self):
        self.lines = []
        self.ldsq = []
    def __call__(self, text):
        self.lines.append(Ins(text))
    def raw(self, text): self(text)
    def lds(self, text, tag):
        self(text); self.ldsq.append(tag)
    def wait_lds(self, tag):
        idx = [i for i, t in enumerate(self.ldsq) if t == tag]
        if not idx: return
        last = idx[-1]
        nleft = len(self.ldsq) - 1 - last
        nleft = min(nleft, 15)
        self('s_waitcnt lgkmcnt(%d)' % nleft)
        self.ldsq = self.ldsq[len(self.ldsq) - nleft:] if nleft else []
    def lds_reset(self): self.ldsq = []
    def mark(self): return len(self.lines)
    def text(self):
        out = []
        for i in self.lines:
            out.append(i.text if (i.label or i.directive or i.text.startswith(';')) else '    ' + i.text)
        return '\n'.join(out) + '\n'
```

```python
import sys, math, struct
from asmlib import Asm, check_seq, Ins

def f32bits(x): return struct.unpack('<I', struct.pack('<f', x))[0]

class Cfg:
    kv_pol = ' nt'
    w_pol = ''
    x_pol = ''
    st_pol = ' sc1'
    r_pol = ''
    thr = 8.0
    prio = 0
    warm = 0

TILE = 12288
NKV = 7
WBASE = NKV * TILE
XBASE = WBASE + 4 * TILE
XSLOT = 14336
LDS = 163840
LAG = 3

ACC = 0; QF = 96; S = 144; P = 160; AF = 168
vKa = 192; vKr = 196; vVa = 200; vVr = 202; vWa = 204; vXa = 206
vKd = 210; vVd = 213; vWd = 216; vXd = 219; vOd = 221; vOa = 222; vOr = 223
vMref = 224; vMc = 225; vMthr = 226; vL0 = 227; vL1 = 228; vF = 230; vT0 = 232; vT1 = 233
vL16 = 234; vEx = 235; T = 236
OFO = 0; TACC = 48; PK = 80
sX = 16; sK = 20; sV = 24; sWq = 28; sWo = 32; sP = 36
sW8 = 40; sG = 41; sWv = 42; sB = 43; sHp = 44; sW3k = 45; sXm0 = 46; sXm1 = 47; sXa1 = 48; sCnt = 49
sWoff = 50; sXoff = 51; sCur = 52; sPrev = 53; sKoff = 54; sVoff = 55; sC = 56; sTc = 57; sFlag = 58; sNext = 59
sTs = 60
sOown = 64; sOoth = 65; sSt = 66; sIss = 67; sMask = 68; sExW = 70; sExR = 71; sT0 = 72; sT1 = 73; sT2 = 74

def v(i, n=1): return 'v%d' % i if n == 1 else 'v[%d:%d]' % (i, i + n - 1)
def s(i, n=1): return 's%d' % i if n == 1 else 's[%d:%d]' % (i, i + n - 1)
def mfma(d, a, b, c=None):
    return 'v_mfma_f32_32x32x16_bf16 %s, %s, %s, %s' % (v(d, 16), v(a, 4), v(b, 4), v(d, 16) if c is None else c)

def pipe_step(A, prev, frags, fill, lag=LAG):
    n = len(frags)
    A.lds_reset()
    nxt = 0
    def rd():
        nonlocal nxt
        if nxt < n:
            for t in frags[nxt][0]: A.lds(t, ('f', nxt))
            nxt += 1
    for _ in range(5 - len(prev)): rd()
    for t in fill.get(-1, []): emit(A, t)
    seq = [(None, m) for m in prev] + [(j, frags[j][1]) for j in range(n - lag)]
    for k, (j, m) in enumerate(seq):
        if j is not None: A.wait_lds(('f', j))
        A(m)
        rd()
        for t in fill.get(k, []): emit(A, t)
    assert nxt == n
    return [frags[j][1] for j in range(n - lag, n)]

def emit(A, t):
    if isinstance(t, tuple): A.lds(t[0], t[1])
    else: A(t)

def spread(items, gaps):
    tot = sum(c for _, c in items)
    out = {g: [] for g in gaps}
    acc = 0.0
    for t, c in items:
        gi = min(len(gaps) - 1, int((acc + c / 2.0) / tot * len(gaps)))
        out[gaps[gi]].append(t); acc += c
    return out

def merge(*ds):
    out = {}
    for d in ds:
        for k, l in d.items(): out.setdefault(k, []).extend(l)
    return out

def dma(voff, srd, soff, off, pol):
    return 'buffer_load_dwordx4 %s, %s, %s offen offset:%d%s lds' % (v(voff), s(srd, 4), soff, off, pol)

def gen(cfg, fname):
    A = Asm()
    checks = []
    A('; @launch kernel=mha_k1_kernel grid=(256,1,1) block=(512,1,1) lds=%d' % LDS)
    A('; @launch kernel=mha_k2_kernel grid=(320,1,1) block=(256,1,1) lds=0')
    A('.amdgcn_target "amdgcn-amd-amdhsa--gfx950"')
    A('.text'); A('.globl mha_k1_kernel'); A('.p2align 8'); A('.type mha_k1_kernel,@function'); A('mha_k1_kernel:')
    m0 = A.mark()
    A('s_cmp_ge_u32 s2, 256'); A('s_cbranch_scc1 L_end')
    A('s_load_dwordx8 s[4:11], s[0:1], 0')
    A('s_load_dwordx2 s[12:13], s[0:1], 32')
    A('s_load_dwordx2 s[14:15], s[0:1], 56')
    L = T; Hh = T + 1; I16 = T + 2; U = T + 3; a = T + 4; b = T + 5; c = T + 6; d = T + 7; e = T + 8
    A('v_readfirstlane_b32 %s, v0' % s(sW8))
    A('v_and_b32 %s, 63, v0' % v(L))
    A('s_lshr_b32 %s, %s, 6' % (s(sW8), s(sW8)))
    A('s_lshr_b32 %s, %s, 2' % (s(sG), s(sW8)))
    A('s_and_b32 %s, %s, 3' % (s(sWv), s(sW8)))
    A('s_and_b32 %s, s2, 7' % s(sT0))
    A('s_lshr_b32 %s, s2, 3' % s(sT1))
    A('s_lshr_b32 %s, %s, 1' % (s(sB), s(sT1)))
    A('s_and_b32 %s, %s, 1' % (s(sT1), s(sT1)))
    A('s_lshl_b32 %s, %s, 1' % (s(sHp), s(sT0)))
    A('s_add_u32 %s, %s, %s' % (s(sHp), s(sHp), s(sT1)))
    A('s_mul_i32 %s, %s, 3072' % (s(sW3k), s(sWv)))
    A('s_lshl_b32 %s, %s, 3' % (s(sT0), s(sWv)))
    for p in range(3):
        A('v_add_u32 %s, %d, %s' % (v(a), 64 * p, v(L)))
        A('v_mul_u32_u24 %s, 171, %s' % (v(b), v(a)))
        A('v_lshrrev_b32 %s, 12, %s' % (v(b), v(b)))
        A('v_mul_u32_u24 %s, 24, %s' % (v(c), v(b)))
        A('v_sub_u32 %s, %s, %s' % (v(c), v(a), v(c)))
        A('v_add_u32 %s, %s, %s' % (v(b), s(sT0), v(b)))
        A('v_bfe_u32 %s, %s, 1, 3' % (v(d), v(b)))
        A('v_xor_b32 %s, %s, %s' % (v(d), v(c), v(d)))
        A('v_lshlrev_b32 %s, 4, %s' % (v(d), v(d)))
        A('v_mul_u32_u24 %s, 384, %s' % (v(e), v(b)))
        A('v_add_u32 %s, %s, %s' % (v(d), v(d), v(e)))
        A('v_subrev_u32 %s, %d, %s' % (v(vKd + p), 1024 * p, v(d)))
        A('v_bfe_u32 %s, %s, 1, 1' % (v(d), v(b)))
        A('v_lshlrev_b32 %s, 2, %s' % (v(d), v(d)))
        A('v_xor_b32 %s, %s, %s' % (v(d), v(c), v(d)))
        A('v_lshlrev_b32 %s, 4, %s' % (v(d), v(d)))
        A('v_subrev_u32 %s, %d, %s' % (v(d), 1024 * p, v(d)))
        A('v_add_u32 %s, %s, %s' % (v(vVd + p), v(d), v(e)))
        A('v_mul_u32_u24 %s, 12288, %s' % (v(e), v(b)))
        A('v_add_u32 %s, %s, %s' % (v(vWd + p), v(d), v(e)))
    A('s_waitcnt lgkmcnt(0)')
    A('s_mul_i32 %s, %s, 143360' % (s(sT0), s(sB)))
    A('s_add_u32 %s, s4, %s' % (s(sX), s(sT0))); A('s_addc_u32 %s, s5, 0' % s(sX + 1))
    A('s_mov_b32 %s, 143360' % s(sX + 2)); A('s_mov_b32 %s, 0x20000' % s(sX + 3))
    A('s_lshl_b32 %s, %s, 4' % (s(sT0), s(sB))); A('s_add_u32 %s, %s, %s' % (s(sT0), s(sT0), s(sHp)))
    A('s_mul_i32 %s, %s, 393216' % (s(sT1), s(sT0)))
    A('s_add_u32 %s, s6, %s' % (s(sK), s(sT1))); A('s_addc_u32 %s, s7, 0' % s(sK + 1))
    A('s_mov_b32 %s, 393216' % s(sK + 2)); A('s_mov_b32 %s, 0x20000' % s(sK + 3))
    A('s_add_u32 %s, s8, %s' % (s(sV), s(sT1))); A('s_addc_u32 %s, s9, 0' % s(sV + 1))
    A('s_mov_b32 %s, 393216' % s(sV + 2)); A('s_mov_b32 %s, 0x20000' % s(sV + 3))
    A('s_mul_i32 %s, %s, 163840' % (s(sT1), s(sT0)))
    A('s_add_u32 %s, s14, %s' % (s(sP), s(sT1))); A('s_addc_u32 %s, s15, 0' % s(sP + 1))
    A('s_mov_b32 %s, 163840' % s(sP + 2)); A('s_mov_b32 %s, 0x20000' % s(sP + 3))
    A('s_lshl_b32 %s, %s, 1' % (s(sT0), s(sHp))); A('s_add_u32 %s, %s, %s' % (s(sT0), s(sT0), s(sG)))
    A('s_mul_i32 %s, %s, 384' % (s(sT1), s(sT0)))
    A('s_add_u32 %s, s10, %s' % (s(sWq), s(sT1))); A('s_addc_u32 %s, s11, 0' % s(sWq + 1))
    A('s_sub_u32 %s, 7864320, %s' % (s(sWq + 2), s(sT1))); A('s_mov_b32 %s, 0x20000' % s(sWq + 3))
    A('s_mov_b32 %s, s12' % s(sWo)); A('s_mov_b32 %s, s13' % s(sWo + 1))
    A('s_mov_b32 %s, 7864320' % s(sWo + 2)); A('s_mov_b32 %s, 0x20000' % s(sWo + 3))
    A('s_cmp_eq_u32 %s, 0' % s(sG)); A('s_cbranch_scc1 L_skip_kv0')
    for (srd, vd, tile, slot) in ((sK, vKd, 0, 0), (sK, vKd, 1, 2), (sV, vVd, 0, 3), (sK, vKd, 2, 4), (sV, vVd, 1, 5), (sK, vKd, 3, 6)):
        A('s_add_u32 m0, %s, %d' % (s(sW3k), slot * TILE))
        A('s_mov_b32 %s, %d' % (s(sT1), tile * TILE))
        for p in range(3): A(dma(vd + p, srd, s(sT1), 1024 * p, cfg.kv_pol))
    A('L_skip_kv0:')
    A('s_mul_i32 %s, %s, 245760' % (s(sOown), s(sT0)))
    A('s_xor_b32 %s, %s, 1' % (s(sT0), s(sT0)))
    A('s_mul_i32 %s, %s, 245760' % (s(sOoth), s(sT0)))
    A('s_mul_i32 %s, %s, 640' % (s(sT0), s(sG)))
    A('s_add_u32 %s, %s, %s' % (s(sOown), s(sOown), s(sT0))); A('s_add_u32 %s, %s, %s' % (s(sOoth), s(sOoth), s(sT0)))
    A('s_cmp_eq_u32 %s, 3' % s(sWv))
    A('s_cselect_b32 %s, 0, 2048' % s(sXm1)); A('s_cselect_b32 %s, 0, 20480' % s(sXa1))
    A('s_cselect_b32 %s, 15, 31' % s(sT2))
    A('s_cselect_b32 %s, 0xffff, -1' % s(sMask)); A('s_mov_b32 %s, %s' % (s(sMask + 1), s(sMask)))
    A('s_lshl_b32 %s, %s, 12' % (s(sXm0), s(sWv))); A('s_add_u32 %s, %s, %d' % (s(sXm0), s(sXm0), XBASE))
    A('s_add_u32 %s, %s, %s' % (s(sXm1), s(sXm1), s(sXm0)))
    A('s_mul_i32 %s, %s, %d' % (s(sT0), s(sWv), 32 * 1280))
    for ee in range(2):
        A('v_lshrrev_b32 %s, 3, %s' % (v(a), v(L)))
        A('v_add_u32 %s, %d, %s' % (v(a), 8 * ee, v(a)))
        A('v_bfe_u32 %s, %s, 1, 3' % (v(b), v(a)))
        A('v_and_b32 %s, 7, %s' % (v(c), v(L)))
        A('v_xor_b32 %s, %s, %s' % (v(b), v(b), v(c)))
        A('v_lshlrev_b32 %s, 4, %s' % (v(b), v(b)))
        A('v_mul_u32_u24 %s, 1280, %s' % (v(a), v(a)))
        A('v_add3_u32 %s, %s, %s, %s' % (v(a), v(a), v(b), s(sT0)))
        A('v_subrev_u32 %s, %d, %s' % (v(vXd + ee), 1024 * ee, v(a)))
    A('v_lshrrev_b32 %s, 5, %s' % (v(Hh), v(L)))
    A('v_and_b32 %s, 15, %s' % (v(I16), v(L)))
    A('v_bfe_u32 %s, %s, 4, 1' % (v(U), v(L)))
    A('v_and_b32 %s, 31, %s' % (v(a), v(L)))
    A('v_bfe_u32 %s, %s, 1, 3' % (v(b), v(a)))
    A('v_xor_b32 %s, %s, %s' % (v(b), v(b), v(Hh)))
    A('v_mul_u32_u24 %s, 384, %s' % (v(a), v(a)))
    for s3 in range(4):
        A('v_xor_b32 %s, %d, %s' % (v(c), 2 * s3, v(b)))
        A('v_lshl_add_u32 %s, %s, 4, %s' % (v(vKa + s3), v(c), v(a)))
    A('v_and_b32 %s, %s, %s' % (v(a), s(sT2), v(L)))
    A('v_bfe_u32 %s, %s, 1, 3' % (v(b), v(a)))
    A('v_xor_b32 %s, %s, %s' % (v(b), v(b), v(Hh)))
    A('v_lshlrev_b32 %s, 7, %s' % (v(a), v(a)))
    A('v_add_u32 %s, %s, %s' % (v(a), s(sXm0), v(a)))
    for s3 in range(4):
        A('v_xor_b32 %s, %d, %s' % (v(c), 2 * s3, v(b)))
        A('v_lshl_add_u32 %s, %s, 4, %s' % (v(vXa + s3), v(c), v(a)))
    A('v_lshrrev_b32 %s, 2, %s' % (v(a), v(I16)))
    A('v_lshl_add_u32 %s, %s, 2, %s' % (v(b), v(Hh), v(a)))
    A('v_mul_u32_u24 %s, 384, %s' % (v(c), v(b)))
    A('v_lshl_add_u32 %s, %s, 5, %s' % (v(c), v(U), v(c)))
    A('v_and_b32 %s, 3, %s' % (v(d), v(I16)))
    A('v_lshl_add_u32 %s, %s, 3, %s' % (v(c), v(d), v(c)))
    A('v_lshrrev_b32 %s, 3, %s' % (v(e), v(I16)))
    A('v_lshl_add_u32 %s, %s, 6, %s' % (v(vVa), v(e), v(c)))
    A('v_xor_b32 %s, 1, %s' % (v(e), v(e)))
    A('v_lshl_add_u32 %s, %s, 6, %s' % (v(vVa + 1), v(e), v(c)))
    A('v_lshlrev_b32 %s, 6, %s' % (v(c), v(b)))
    A('v_lshl_add_u32 %s, %s, 4, %s' % (v(c), v(U), v(c)))
    A('v_and_b32 %s, 1, %s' % (v(d), v(I16)))
    A('v_lshl_add_u32 %s, %s, 5, %s' % (v(c), v(d), v(c)))
    A('v_bfe_u32 %s, %s, 1, 1' % (v(e), v(I16)))
    A('v_lshl_add_u32 %s, %s, 3, %s' % (v(vOa), v(e), v(c)))
    A('v_lshl_add_u32 %s, %s, 3, %s' % (v(b), v(Hh), v(a)))
    A('v_mul_u32_u24 %s, 384, %s' % (v(c), v(b)))
    A('v_lshl_add_u32 %s, %s, 5, %s' % (v(c), v(U), v(c)))
    A('v_lshl_add_u32 %s, %s, 4, %s' % (v(c), v(d), v(c)))
    A('v_lshl_add_u32 %s, %s, 3, %s' % (v(c), v(e), v(c)))
    A('v_add_u32 %s, %d, %s' % (v(c), WBASE, v(c)))
    A('v_lshrrev_b32 %s, 3, %s' % (v(e), v(I16)))
    A('v_lshl_add_u32 %s, %s, 6, %s' % (v(vWa), v(e), v(c)))
    A('v_xor_b32 %s, 1, %s' % (v(e), v(e)))
    A('v_lshl_add_u32 %s, %s, 6, %s' % (v(vWa + 1), v(e), v(c)))
    A('s_mul_i32 %s, %s, %d' % (s(sT0), s(sWv), 48 * 1280))
    A('v_lshrrev_b32 %s, 2, %s' % (v(a), v(L)))
    A('v_mul_u32_u24 %s, 1280, %s' % (v(a), v(a)))
    A('v_and_b32 %s, 3, %s' % (v(b), v(L)))
    A('v_lshlrev_b32 %s, 4, %s' % (v(b), v(b)))
    A('v_add3_u32 %s, %s, %s, %s' % (v(vOd), v(a), v(b), s(sT0)))
    A('v_lshlrev_b32 %s, 4, %s' % (v(vL16), v(L)))
    cc = math.log2(math.e) / math.sqrt(192.0)
    A('s_mov_b32 %s, 0x%08x' % (s(sC), f32bits(cc)))
    A('s_mov_b32 %s, 0x%08x' % (s(sTc), f32bits(cfg.thr / cc)))
    A('s_mov_b32 %s, 0' % s(sFlag))
    A('s_mul_i32 %s, %s, %d' % (s(sCur), s(sG), (32 % NKV) * TILE))
    A('s_mul_i32 %s, %s, %d' % (s(sPrev), s(sG), (6 - 31 % NKV) * TILE))
    A('s_sub_u32 %s, %d, %s' % (s(sPrev), 6 * TILE, s(sPrev)))
    A('s_mul_i32 %s, %s, %d' % (s(sT0), s(sG), 16 * TILE))
    A('s_add_u32 %s, %s, %d' % (s(sKoff), s(sT0), 3 * TILE))
    A('s_add_u32 %s, %s, %d' % (s(sVoff), s(sT0), 2 * TILE))
    A('s_mul_i32 %s, %s, %d' % (s(sT0), s(sG), 2 * TILE))
    A('s_add_u32 %s, %s, %d' % (s(sTs), s(sT0), WBASE)); A('s_add_u32 %s, %s, %d' % (s(sTs + 1), s(sT0), WBASE + TILE))
    A('s_mov_b32 %s, %s' % (s(sTs + 2), s(sT0))); A('s_add_u32 %s, %s, %d' % (s(sTs + 3), s(sT0), TILE))
    A('s_mul_i32 %s, %s, %d' % (s(sExW), s(sW8), TILE))
    A('s_cmp_eq_u32 %s, 7' % s(sW8)); A('s_cselect_b32 %s, %d, %s' % (s(sExW), XBASE, s(sExW)))
    A('s_xor_b32 %s, %s, 4' % (s(sT0), s(sW8)))
    A('s_mul_i32 %s, %s, %d' % (s(sExR), s(sT0), TILE))
    A('s_cmp_eq_u32 %s, 7' % s(sT0)); A('s_cselect_b32 %s, %d, %s' % (s(sExR), XBASE, s(sExR)))
    A('s_mul_i32 %s, %s, %d' % (s(sSt), s(sG), 10 * 8192))
    A('s_lshl_b32 %s, %s, 11' % (s(sT0), s(sWv))); A('s_add_u32 %s, %s, %s' % (s(sSt), s(sSt), s(sT0)))
    A('s_cmp_eq_u32 %s, 0' % s(sG)); A('s_cbranch_scc1 L_q')
    A('s_mov_b32 %s, 0' % s(sCnt))
    A('L_idle0:')
    A('s_barrier')
    A('s_add_u32 %s, %s, 1' % (s(sCnt), s(sCnt))); A('s_cmp_lt_u32 %s, 20' % s(sCnt)); A('s_cbranch_scc1 L_idle0')
    A('s_waitcnt vmcnt(0)')
    A('s_barrier')
    A('L_q:')
    def x_issue(slot):
        return ['s_add_u32 m0, %s, %d' % (s(sXm0), slot * XSLOT),
                's_add_u32 %s, %s, %s' % (s(sT1), s(sXoff), s(sXa1)),
                dma(vXd, sX, s(sXoff), 0, cfg.x_pol), dma(vXd + 1, sX, s(sXoff), 1024, cfg.x_pol),
                's_add_u32 m0, %s, %d' % (s(sXm1), slot * XSLOT),
                's_add_u32 %s, %s, 128' % (s(sXoff), s(sXoff)),
                dma(vXd, sX, s(sT1), 0, cfg.x_pol), dma(vXd + 1, sX, s(sT1), 1024, cfg.x_pol),
                's_cmp_ge_u32 %s, 1280' % s(sXoff),
                's_cselect_b32 %s, 0x40000000, %s' % (s(sXoff), s(sXoff))]
    def w_issue(slot):
        return ['s_add_u32 m0, %s, %d' % (s(sW3k), WBASE + slot * TILE), 's_nop 0',
                dma(vWd, sWq, s(sWoff), 0, cfg.w_pol), dma(vWd + 1, sWq, s(sWoff), 1024, cfg.w_pol),
                dma(vWd + 2, sWq, s(sWoff), 2048, cfg.w_pol),
                's_add_u32 %s, %s, %d' % (s(sWoff), s(sWoff), 32 * 12288)]
    def x_reads(slot):
        return [('ds_read_b128 %s, %s offset:%d' % (v(QF + 16 * slot + 4 * s3, 4), v(vXa + s3), slot * XSLOT), 'x') for s3 in range(4)]
    A('s_mov_b32 %s, 0' % s(sWoff)); A('s_mov_b32 %s, 0' % s(sXoff))
    for t in x_issue(0) + w_issue(0) + x_issue(1) + w_issue(1) + w_issue(2): A(t)
    for i in list(range(ACC, ACC + 96)) + list(range(QF, QF + 32)) + list(range(AF, AF + 24)): A('v_mov_b32 %s, 0' % v(i))
    A('s_cmp_eq_u32 %s, 0' % s(sG)); A('s_cbranch_scc1 L_q1')
    A('s_barrier'); A('s_barrier')
    A('L_q1:')
    A('s_waitcnt vmcnt(13)')
    for t in x_reads(0): A(t[0])
    A('s_mov_b32 %s, 0' % s(sCnt))
    checks.append(('prologue', A.lines[m0:]))
    def q_frags(r):
        fr = []
        for ss in range(2):
            for dt in range(6):
                j = ss * 6 + dt; buf = AF + 4 * (j % 6)
                rds = ['ds_read_b64_tr_b16 %s, %s offset:%d' % (v(buf + 2 * vv, 2), v(vWa + (dt & 1)),
                        r * TILE + (16 * ss + 4 * vv) * 384 + 128 * (dt >> 1)) for vv in range(2)]
                fr.append((rds, mfma(ACC + 16 * dt, buf, QF + 16 * (r >> 1) + 4 * ((r & 1) * 2 + ss))))
        return fr
    A('L_qloop:')
    m1 = A.mark()
    prev = [f[1] for f in q_frags(3)[-LAG:]]
    for r in range(4):
        A('s_waitcnt vmcnt(10) lgkmcnt(0)')
        A('s_barrier')
        fill = {}
        if r % 2 == 0:
            xi = x_issue(r >> 1); wi = w_issue((r + 3) & 3)
            fill = {0: xi[0:3], 1: xi[3:4], 2: xi[4:7], 3: xi[7:10], 4: wi[0:3], 5: wi[3:4], 6: wi[4:6]}
        else:
            wi = w_issue((r + 3) & 3); xr = x_reads(((r + 1) >> 1) & 1)
            fill = {0: wi[0:3], 1: wi[3:4], 2: wi[4:6], 5: xr[0:1], 6: xr[1:2], 7: xr[2:3], 8: xr[3:4]}
        prev = pipe_step(A, prev, q_frags(r), fill)
    A('s_add_u32 %s, %s, 1' % (s(sCnt), s(sCnt))); A('s_cmp_lt_u32 %s, 5' % s(sCnt)); A('s_cbranch_scc1 L_qloop')
    body = A.lines[m1:]
    checks.append(('qloop', body + body))
    m2 = A.mark()
    A('s_waitcnt lgkmcnt(0)')
    for m in prev: A(m)
    for i in range(4): A('v_add_u32 %s, %s, %s' % (v(vKr + i), s(sCur), v(vKa + i)))
    A('v_mov_b32 %s, 0xff800000' % v(vMref)); A('v_mov_b32 %s, 0xff800000' % v(vMthr)); A('v_mov_b32 %s, 0' % v(vMc))
    A('v_mov_b32 %s, 0' % v(vL0)); A('v_mov_b32 %s, 0' % v(vL1))
    for i in range(4): A('v_mov_b32 %s, 0' % v(P + 4 + i))
    for i in range(48):
        A('v_cvt_pk_bf16_f32 %s, %s, %s' % (v(QF + i), v(ACC + 2 * i), v(ACC + 2 * i + 1)))
    A('s_cmp_eq_u32 %s, 0' % s(sG)); A('s_cbranch_scc1 L_attn')
    for i in range(9): A('s_barrier')
    A('L_attn:')
    def k_frags():
        fr = []
        for ss in range(12):
            buf = AF + 4 * (ss % 6)
            fr.append((['ds_read_b128 %s, %s offset:%d' % (v(buf, 4), v(vKr + (ss & 3)), 128 * (ss >> 2))],
                       mfma(S, buf, QF + 4 * ss, '0' if ss == 0 else None)))
        return fr
    def v_frags():
        fr = []
        for ss in range(2):
            for dt in range(6):
                j = ss * 6 + dt; buf = AF + 4 * (j % 6)
                rds = ['ds_read_b64_tr_b16 %s, %s offset:%d' % (v(buf + 2 * vv, 2), v(vVr + (dt & 1)),
                        (16 * ss + 8 * vv) * 384 + 128 * (dt >> 1)) for vv in range(2)]
                fr.append((rds, mfma(ACC + 16 * dt, buf, P + 4 * ss)))
        return fr
    def kv_issue(srd, vd, soff):
        return ['s_add_u32 m0, %s, %s' % (s(sW3k), s(sPrev)), 's_nop 0',
                dma(vd, srd, s(soff), 0, cfg.kv_pol), dma(vd + 1, srd, s(soff), 1024, cfg.kv_pol),
                dma(vd + 2, srd, s(soff), 2048, cfg.kv_pol),
                's_add_u32 %s, %s, %d' % (s(soff), s(soff), TILE)]
    ring_adv = ['s_mov_b32 %s, %s' % (s(sPrev), s(sCur)),
                's_add_u32 %s, %s, %d' % (s(sCur), s(sCur), TILE),
                's_cmp_ge_u32 %s, %d' % (s(sCur), NKV * TILE),
                's_cselect_b32 %s, 0, %s' % (s(sCur), s(sCur))]
    addr_k = ['v_add_u32 %s, %s, %s' % (v(vKr + i), s(sCur), v(vKa + i)) for i in range(4)]
    addr_v = ['v_add_u32 %s, %s, %s' % (v(vVr + i), s(sCur), v(vVa + i)) for i in range(2)]
    def sm_max(tag):
        t0, t1 = v(vT0), v(vT1)
        l = ['v_max3_f32 %s, %s, %s, %s' % (t0, v(S), v(S + 1), v(S + 2)),
             'v_max3_f32 %s, %s, %s, %s' % (t1, v(S + 3), v(S + 4), v(S + 5))]
        for k in range(5):
            tt = t0 if k % 2 == 0 else t1
            l.append('v_max3_f32 %s, %s, %s, %s' % (tt, tt, v(S + 6 + 2 * k), v(S + 7 + 2 * k)))
        l.append('v_max_f32 %s, %s, %s' % (t0, t0, t1))
        l.append('v_cmp_gt_f32 vcc, %s, %s' % (t0, v(vMthr)))
        l.append('s_cbranch_vccnz L_rare_%s' % tag)
        l.append('L_ret_%s:' % tag)
        return l
    def sm_exp():
        it = []
        fma = lambda j: ('v_fma_f32 %s, %s, %s, -%s' % (v(S + j), v(S + j), s(sC), v(vMc)), 1)
        ex = lambda j: ('v_exp_f32 %s, %s' % (v(S + j), v(S + j)), 2)
        ad = lambda j: ('v_add_f32 %s, %s, %s' % (v(vL0 + (j & 1)), v(vL0 + (j & 1)), v(S + j)), 1)
        for j in range(16 + 4):
            if j < 16: it.append(fma(j))
            if 0 <= j - 2 < 16: it.append(ex(j - 2))
            if 0 <= j - 4 < 16: it.append(ad(j - 4))
        return it
    cvt = lambda k: 'v_cvt_pk_bf16_f32 %s, %s, %s' % (v(P + k), v(S + 2 * k), v(S + 2 * k + 1))
    ex_items = sm_exp()
    sp = spread(ex_items, [5, 6, 7, 8, 9, 10, 11, 100, 101])
    vfill_sm = {g: sp[g] for g in range(5, 12)}
    kfill_sm = {0: sp[100], 1: sp[101]}
    vfill_sm[11] = vfill_sm[11] + [cvt(0), cvt(1), cvt(2), cvt(3)]
    def resc(tag):
        return [cvt(4), cvt(5), cvt(6), cvt(7), 's_cmp_lg_u32 %s, 0' % s(sFlag), 's_cbranch_scc1 L_resc_%s' % tag, 'L_rret_%s:' % tag]
    rare_tags = []; resc_tags = []
    A('s_waitcnt vmcnt(0)')
    A('s_barrier')
    ki = kv_issue(sK, vKd, sKoff)
    zero_acc = ['v_mov_b32 %s, 0' % v(ACC + i) for i in range(96)]
    fill = {0: ['s_cmp_eq_u32 %s, 0' % s(sG), 's_cbranch_scc1 L_k0skip'] + ki[0:5] + ['L_k0skip:', ki[5]] + ring_adv}
    for g in range(1, 9): fill[g] = zero_acc[(g - 1) * 6:g * 6]
    prev = pipe_step(A, [], k_frags(), fill)
    A('s_waitcnt vmcnt(15) lgkmcnt(0)')
    A('s_barrier')
    for m in prev: A(m)
    for t in kv_issue(sV, vVd, sVoff) + ring_adv + addr_k + zero_acc[48:]: A(t)
    for t in sm_max('v0'): A(t)
    rare_tags.append('v0')
    for g in range(5, 12):
        for t in vfill_sm[g]: A(t)
    A('s_mov_b32 %s, 0' % s(sFlag))
    A('s_mov_b32 %s, 0' % s(sCnt))
    checks.append(('q->attn', body[-40:] + A.lines[m2:]))
    pre_loop = A.lines[-40:]
    A('L_aloop:')
    m3 = A.mark()
    pv_lag = [f[1] for f in v_frags()[-LAG:]]
    A('s_waitcnt vmcnt(15) lgkmcnt(0)')
    A('s_barrier')
    fill = merge(kfill_sm, {2: resc('l'), 3: ki[0:3], 4: ki[3:4], 5: ki[4:6], 6: ring_adv, 7: addr_v})
    resc_tags.append('l')
    prev = pipe_step(A, pv_lag, k_frags(), fill)
    A('s_waitcnt vmcnt(15) lgkmcnt(0)')
    A('s_barrier')
    vi = kv_issue(sV, vVd, sVoff)
    fill = merge({0: vi[0:3], 1: vi[3:4], 2: vi[4:6] + ring_adv, 3: addr_k, 4: sm_max('l')}, vfill_sm)
    rare_tags.append('l')
    prev = pipe_step(A, prev, v_frags(), fill)
    A('s_add_u32 %s, %s, 1' % (s(sCnt), s(sCnt))); A('s_cmp_lt_u32 %s, 15' % s(sCnt)); A('s_cbranch_scc1 L_aloop')
    abody = A.lines[m3:]
    checks.append(('aloop', pre_loop + abody + abody))
    m4 = A.mark()
    A('s_waitcnt vmcnt(15) lgkmcnt(0)')
    A('s_barrier')
    for k, m in enumerate(prev):
        A(m)
        for t in kfill_sm.get(k, []): A(t)
    for t in resc('e') + ring_adv + addr_v: A(t)
    resc_tags.append('e')
    A('s_waitcnt vmcnt(12)')
    A('s_barrier')
    prev = pipe_step(A, [], v_frags(), {})
    A('s_cmp_eq_u32 %s, 0' % s(sG)); A('s_cbranch_scc1 L_fin1')
    A('s_waitcnt vmcnt(0)')
    A('L_fin1:')
    A('s_waitcnt vmcnt(9) lgkmcnt(0)')
    A('s_barrier')
    for m in prev: A(m)
    A('v_add_f32 %s, %s, %s' % (v(vT0), v(vL0), v(vL1)))
    A('v_mov_b32 %s, %s' % (v(vT1), v(vT0)))
    A('s_nop 1')
    A('v_permlane32_swap_b32 %s, %s' % (v(vT0), v(vT1)))
    A('v_add_f32 %s, %s, %s' % (v(vT0), v(vT0), v(vT1)))
    A('v_rcp_f32 %s, %s' % (v(vF), v(vT0)))
    A('v_add_u32 %s, %s, %s' % (v(vEx), s(sExW), v(vL16)))
    A('v_mov_b32 %s, %s' % (v(vF + 1), v(vF)))
    A('s_nop 3')
    for i in range(48):
        A('v_pk_mul_f32 %s, %s, %s' % (v(ACC + 2 * i, 2), v(ACC + 2 * i, 2), v(vF, 2)))
        if i >= 1: A('v_cvt_pk_bf16_f32 %s, %s, %s' % (v(QF + i - 1), v(ACC + 2 * i - 2), v(ACC + 2 * i - 1)))
    A('v_cvt_pk_bf16_f32 %s, %s, %s' % (v(QF + 47), v(ACC + 94), v(ACC + 95)))
    A('s_cmp_lg_u32 %s, 0' % s(sG)); A('s_cbranch_scc1 L_tail')
    checks.append(('attn end', abody[-40:] + A.lines[m4:]))
    m5 = A.mark()
    for n in (6, 3, 0):
        A('s_waitcnt vmcnt(%d)' % n); A('s_barrier')
    def o_issue(slot_expr, soff):
        l = ['s_add_u32 m0, %s, %s' % (s(sW3k), slot_expr),
             's_add_u32 %s, %s, %d' % (s(sT1), soff, 20480 - 1024),
             dma(vOd, sWo, soff, 0, cfg.w_pol),
             's_add_u32 %s, %s, %d' % (s(sT2), soff, 2 * (20480 - 1024)),
             dma(vOd, sWo, s(sT1), 1024, cfg.w_pol),
             dma(vOd, sWo, s(sT2), 2048, cfg.w_pol)]
        return l
    for t in o_issue(str(WBASE), s(sOown)) + o_issue(str(WBASE + TILE), s(sOoth)): A(t)
    A('s_add_u32 %s, %s, 640' % (s(sT0), s(sOoth)))
    for t in o_issue(str(WBASE + 2 * TILE), s(sT0)): A(t)
    A('s_add_u32 %s, %s, 640' % (s(sT0), s(sOown)))
    for t in o_issue(str(WBASE + 3 * TILE), s(sT0)): A(t)
    A('s_mov_b32 %s, 0' % s(sCnt))
    A('L_idle1:')
    A('s_barrier')
    A('s_add_u32 %s, %s, 1' % (s(sCnt), s(sCnt))); A('s_cmp_lt_u32 %s, 28' % s(sCnt)); A('s_cbranch_scc1 L_idle1')
    A('s_waitcnt vmcnt(0)')
    A('s_barrier')
    A('L_tail:')
    for ss in range(12): A('ds_write_b128 %s, %s offset:%d' % (v(vEx), v(QF + 4 * ss, 4), 1024 * ss))
    A('s_add_u32 %s, %s, 64' % (s(sOown), s(sOown))); A('s_add_u32 %s, %s, 64' % (s(sOoth), s(sOoth)))
    A('s_mov_b32 %s, 2' % s(sIss))
    A('v_add_u32 %s, %s, %s' % (v(vOr), s(sTs), v(vOa)))
    A('v_add_u32 %s, %s, %s' % (v(vEx), s(sExR), v(vL16)))
    def o_frags(r):
        fr = []
        acc = TACC + 16 * (r >> 1); bb = QF if (r & 1) == 0 else OFO
        for ss in range(12):
            buf = AF + 4 * (ss % 6)
            rds = ['ds_read_b64_tr_b16 %s, %s offset:%d' % (v(buf + 2 * vv, 2), v(vOr), 1024 * ss + 512 * vv) for vv in range(2)]
            fr.append((rds, mfma(acc, buf, bb + 4 * ss, '0' if (ss == 0 and (r & 1) == 0) else None)))
        return fr
    def t_issue(tile_par, slot):
        so = sOown if tile_par == 0 else sOoth
        return (['s_cmp_lt_u32 %s, 20' % s(sIss), 's_cselect_b32 %s, %s, 0x40000000' % (s(sT0), s(so))]
                + o_issue(s(sTs + slot), s(sT0))
                + ['s_add_u32 %s, %s, 64' % (s(so), s(so)), 's_add_u32 %s, %s, 1' % (s(sIss), s(sIss))])
    def t_store(acc):
        l = ['v_cvt_pk_bf16_f32 %s, %s, %s' % (v(PK + k), v(acc + 2 * k), v(acc + 2 * k + 1)) for k in range(8)]
        l += ['s_mov_b64 exec, %s' % s(sMask, 2),
              'buffer_store_dwordx4 %s, %s, %s, %s offen%s' % (v(PK, 4), v(vL16), s(sP, 4), s(sSt), cfg.st_pol),
              'buffer_store_dwordx4 %s, %s, %s, %s offen offset:1024%s' % (v(PK + 4, 4), v(vL16), s(sP, 4), s(sSt), cfg.st_pol),
              's_mov_b64 exec, -1',
              's_add_u32 %s, %s, 8192' % (s(sSt), s(sSt))]
        return l
    def tail_iter(first, prev):
        for r in range(4):
            if first: w = [None, None, 6, 8][r]
            else: w = 8 if r % 2 == 0 else 10
            A('s_waitcnt lgkmcnt(0)' if w is None else 's_waitcnt vmcnt(%d) lgkmcnt(0)' % w)
            A('s_barrier')
            fill = {}
            if first and r == 0:
                ex = [('ds_read_b128 %s, %s offset:%d' % (v(OFO + 4 * ss, 4), v(vEx), 1024 * ss), 'ex') for ss in range(12)]
                for g in range(6): fill[g + 2] = ex[2 * g:2 * g + 2]
            elif first and r == 1:
                i2 = t_issue(0, 2); i3 = t_issue(1, 3); i4 = t_issue(0, 0)
                fill = {-1: i2, 0: i3, 1: i4}
            else:
                ii = t_issue((r + 3) & 1, (r + 3) & 3)
                fill = {0: ii[0:5], 1: ii[5:7], 2: ii[7:]}
            if r % 2 == 0 and not (first and r == 0):
                st = t_store(TACC + 16 * (((r >> 1) + 1) & 1))
                fill = merge(fill, {5: st[0:4], 6: st[4:8], 7: st[8:]})
            last = 8 if (first and r == 0) else 11
            fill = merge(fill, {last: ['v_add_u32 %s, %s, %s' % (v(vOr), s(sTs + ((r + 1) & 3)), v(vOa))]})
            prev = pipe_step(A, prev, o_frags(r), fill)
        return prev
    prev = tail_iter(True, [])
    A('s_mov_b32 %s, 0' % s(sCnt))
    checks.append(('tail0', A.lines[m5:]))
    pre = A.lines[-40:]
    A('L_tloop:')
    m6 = A.mark()
    prev = tail_iter(False, prev)
    A('s_add_u32 %s, %s, 1' % (s(sCnt), s(sCnt))); A('s_cmp_lt_u32 %s, 4' % s(sCnt)); A('s_cbranch_scc1 L_tloop')
    tbody = A.lines[m6:]
    checks.append(('tloop', pre + tbody + tbody))
    m7 = A.mark()
    A('s_waitcnt lgkmcnt(0)')
    for m in prev: A(m)
    A('s_nop 11')
    for t in t_store(TACC + 16): A(t)
    checks.append(('tail end', tbody[-40:] + A.lines[m7:]))
    A('L_end:')
    A('s_endpgm')
    for tag in rare_tags:
        m8 = A.mark()
        A('L_rare_%s:' % tag)
        A('v_mov_b32 %s, %s' % (v(vT1), v(vT0)))
        A('s_nop 1')
        A('v_permlane32_swap_b32 %s, %s' % (v(vT0), v(vT1)))
        A('v_max3_f32 %s, %s, %s, %s' % (v(vT0), v(vT0), v(vT1), v(vMref)))
        A('v_sub_f32 %s, %s, %s' % (v(vT1), v(vMref), v(vT0)))
        A('v_mul_f32 %s, %s, %s' % (v(vT1), s(sC), v(vT1)))
        A('v_exp_f32 %s, %s' % (v(vF), v(vT1)))
        A('v_mov_b32 %s, %s' % (v(vMref), v(vT0)))
        A('v_mul_f32 %s, %s, %s' % (v(vMc), s(sC), v(vT0)))
        A('v_add_f32 %s, %s, %s' % (v(vMthr), s(sTc), v(vT0)))
        A('v_mul_f32 %s, %s, %s' % (v(vL0), v(vL0), v(vF)))
        A('v_mul_f32 %s, %s, %s' % (v(vL1), v(vL1), v(vF)))
        A('v_mov_b32 %s, %s' % (v(vF + 1), v(vF)))
        A('s_mov_b32 %s, 1' % s(sFlag))
        A('s_branch L_ret_%s' % tag)
        checks.append(('rare', A.lines[m8:]))
    for tag in resc_tags:
        A('L_resc_%s:' % tag)
        A('s_nop 15')
        for i in range(48): A('v_pk_mul_f32 %s, %s, %s' % (v(ACC + 2 * i, 2), v(ACC + 2 * i, 2), v(vF, 2)))
        A('s_mov_b32 %s, 0' % s(sFlag))
        A('s_nop 1')
        A('s_branch L_rret_%s' % tag)
    A('.globl mha_k2_kernel'); A('.p2align 8'); A('.type mha_k2_kernel,@function'); A('mha_k2_kernel:')
    m9 = A.mark()
    A('s_cmp_ge_u32 s2, 320'); A('s_cbranch_scc1 L_end2')
    A('s_load_dwordx2 s[4:5], s[0:1], 40')
    A('s_load_dwordx2 s[8:9], s[0:1], 56')
    A('s_mov_b32 s12, %d' % ((2 ** 32 + 19) // 20))
    A('s_mul_hi_u32 s13, s2, s12')
    A('s_mul_i32 s14, s13, 20'); A('s_sub_u32 s14, s2, s14')
    A('v_lshrrev_b32 v1, 6, v0')
    A('v_and_b32 v2, 63, v0')
    A('v_lshlrev_b32 v3, 11, v1')
    A('v_lshl_add_u32 v3, v2, 4, v3')
    A('v_and_b32 v4, 31, v2')
    A('v_lshl_add_u32 v4, v1, 5, v4')
    A('v_cmp_gt_u32 vcc, 112, v4')
    A('v_mul_u32_u24 v5, 1280, v4')
    A('v_lshrrev_b32 v6, 5, v2')
    A('v_lshl_add_u32 v5, v6, 5, v5')
    A('s_mul_i32 s15, s13, %d' % (16 * 163840))
    A('s_lshl_b32 s16, s14, 13'); A('s_add_u32 s15, s15, s16')
    A('s_mul_i32 s17, s13, 143360'); A('s_lshl_b32 s16, s14, 6'); A('s_add_u32 s17, s17, s16')
    A('s_waitcnt lgkmcnt(0)')
    A('s_mov_b32 s6, 2293760'); A('s_mov_b32 s7, 0x20000')
    A('s_mov_b32 s10, %d' % (256 * 163840)); A('s_mov_b32 s11, 0x20000')
    A('s_and_saveexec_b64 s[18:19], vcc')
    for p in range(16):
        A('buffer_load_dwordx4 %s, v3, s[8:11], s15 offen%s' % (v(32 + 8 * p, 4), cfg.r_pol))
        A('buffer_load_dwordx4 %s, v3, s[8:11], s15 offen offset:1024%s' % (v(36 + 8 * p, 4), cfg.r_pol))
        if p < 15: A('s_add_u32 s15, s15, 163840')
    for p in range(16):
        A('s_waitcnt vmcnt(%d)' % (2 * (15 - p)))
        for k in range(8):
            src = 32 + 8 * p + k
            if p == 0:
                A('v_lshlrev_b32 %s, 16, %s' % (v(8 + 2 * k), v(src)))
                A('v_and_b32 %s, 0xffff0000, %s' % (v(9 + 2 * k), v(src)))
            else:
                A('v_lshlrev_b32 v24, 16, %s' % v(src))
                A('v_and_b32 v25, 0xffff0000, %s' % v(src))
                A('v_pk_add_f32 %s, %s, v[24:25]' % (v(8 + 2 * k, 2), v(8 + 2 * k, 2)))
    for k in range(8): A('v_cvt_pk_bf16_f32 %s, %s, %s' % (v(24 + k), v(8 + 2 * k), v(9 + 2 * k)))
    A('buffer_store_dwordx4 v[24:27], v5, s[4:7], s17 offen')
    A('buffer_store_dwordx4 v[28:31], v5, s[4:7], s17 offen offset:16')
    checks.append(('k2', A.lines[m9:]))
    A('L_end2:')
    A('s_endpgm')
    A('.section .rodata,"a"')
    for name, nv, ns in (('mha_k1_kernel', 256, 80), ('mha_k2_kernel', 160, 24)):
        A('.p2align 6')
        A('.amdhsa_kernel %s' % name)
        A('  .amdhsa_next_free_vgpr %d' % nv); A('  .amdhsa_next_free_sgpr %d' % ns); A('  .amdhsa_accum_offset %d' % nv)
        A('  .amdhsa_group_segment_fixed_size 0'); A('  .amdhsa_kernarg_size 64'); A('  .amdhsa_user_sgpr_count 2')
        A('  .amdhsa_user_sgpr_kernarg_segment_ptr 1'); A('  .amdhsa_system_sgpr_workgroup_id_x 1')
        A('.end_amdhsa_kernel')
    nerr = 0
    for name, seq in checks:
        for e in check_seq(seq, name):
            print(e); nerr += 1
    assert nerr == 0, 'hazards'
    open(fname, 'w').write(A.text())

if __name__ == '__main__':
    cfg = Cfg()
    out = sys.argv[1] if len(sys.argv) > 1 else 'k.s'
    for kv in sys.argv[2:]:
        k, val = kv.split('=', 1)
        cur = getattr(cfg, k)
        setattr(cfg, k, type(cur)(val.replace('_', ' ')) if isinstance(cur, str) else type(cur)(val))
    gen(cfg, out)
```

```python
import re

REG = re.compile(r'\b([vsa])(?:\[(\d+):(\d+)\]|(\d+))')

def regs(text):
    out = set()
    for m in REG.finditer(text):
        k = m.group(1)
        if m.group(2) is not None:
            for i in range(int(m.group(2)), int(m.group(3)) + 1): out.add(k + str(i))
        else:
            out.add(k + m.group(4))
    if re.search(r'\bvcc\b', text): out.add('vcc')
    if re.search(r'\bm0\b', text): out.add('m0')
    if re.search(r'\bexec\b', text): out.add('exec')
    return out

TRANS = ('v_exp_f32', 'v_rcp_f32', 'v_log_f32', 'v_rsq_f32', 'v_sqrt_f32')

class Ins:
    def __init__(self, text):
        self.text = text
        t = text.split(';')[0].strip()
        self.label = t.endswith(':')
        self.directive = t.startswith('.')
        parts = t.split(None, 1)
        self.op = parts[0] if parts else ''
        ops = [o.strip() for o in parts[1].split(',')] if len(parts) > 1 else []
        self.ops = ops
        op = self.op
        self.w = set(); self.r = set(); self.srcc = set(); self.stdata = set()
        self.is_mfma = op.startswith('v_mfma')
        self.is_valu = op.startswith('v_') and not self.is_mfma
        self.is_trans = op in TRANS
        self.is_vmem = op.startswith('buffer_') or op.startswith('global_')
        self.is_ds = op.startswith('ds_')
        self.is_salu = op.startswith('s_')
        self.is_dma = self.is_vmem and re.search(r'\blds\b', t) is not None
        if self.label or self.directive or not op: return
        if self.is_mfma:
            self.w = regs(ops[0]); self.r = regs(ops[1]) | regs(ops[2]) | regs(ops[3]); self.srcc = regs(ops[3])
            self.ab = regs(ops[1]) | regs(ops[2])
        elif op.startswith('v_permlane'):
            self.w = regs(ops[0]) | regs(ops[1]); self.r = set(self.w)
        elif op.startswith('v_cmp'):
            self.w = regs(ops[0]); self.r = regs(','.join(ops[1:]))
        elif self.is_valu:
            self.w = regs(ops[0]); self.r = regs(','.join(ops[1:]))
            if op.startswith('v_fmac'): self.r |= self.w
        elif self.is_vmem:
            if self.is_dma:
                self.r = regs(','.join(ops)) | {'m0'}
            elif 'store' in op:
                self.r = regs(','.join(ops)); self.stdata = regs(ops[0]) if op.startswith('buffer') else regs(ops[1])
            else:
                self.w = regs(ops[0]); self.r = regs(','.join(ops[1:]))
        elif self.is_ds:
            if 'write' in op: self.r = regs(','.join(ops))
            else: self.w = regs(ops[0]); self.r = regs(','.join(ops[1:]))
        elif self.is_salu:
            if op.startswith('s_cmp') or op.startswith('s_cbranch') or op in ('s_branch', 's_barrier', 's_waitcnt', 's_nop', 's_endpgm', 's_setprio'):
                self.r = regs(','.join(ops))
            else:
                self.w = regs(ops[0]); self.r = regs(','.join(ops[1:]))
    def states(self):
        if self.label or self.directive or not self.op: return 0
        if self.op == 's_nop': return int(self.ops[0], 0) + 1
        return 1

def check_seq(seq, name=''):
    errs = []
    n = len(seq)
    for i, a in enumerate(seq):
        if a.states() == 0: continue
        dist = 0
        for j in range(i + 1, n):
            b = seq[j]
            if b.states() == 0: continue
            need = 0; why = ''
            vw = {x for x in a.w if x[0] in 'va' and x != 'vcc'}
            sw = {x for x in a.w if x[0] == 's' or x == 'vcc'}
            if a.is_mfma:
                p = 8 if '32x32x16' in a.op else 4
                dv = {8: 12, 4: 8}[p]
                if b.is_mfma:
                    if vw & b.ab: need, why = dv, 'mfma D->A/B'
                    elif (vw & b.srcc) and b.srcc != a.w: need, why = {8: 10, 4: 6}[p], 'mfma D->C partial'
                    elif (vw & b.w) and not (vw & b.srcc): need, why = dv, 'mfma D WAW (conservative)'
                elif (b.is_valu or b.is_vmem or b.is_ds) and (vw & (b.r | b.w)): need, why = dv, 'mfma D->valu/mem'
                if b.is_valu and (a.srcc & b.w):
                    k = {8: 7, 4: 3}[p]
                    if k > need: need, why = k, 'mfma C WAR'
            elif a.is_valu:
                if b.is_mfma and (vw & b.r): need, why = 2, 'valu->mfma'
                if b.op.startswith('v_permlane') and (vw & b.r): need, why = 2, 'valu->permlane'
                if b.op.startswith('v_readfirstlane') or b.op.startswith('v_readlane'):
                    if vw & b.r: need, why = max(need, 1), 'valu->readlane'
                if a.is_trans and b.is_valu and not b.is_trans and (vw & b.r): need, why = max(need, 1), 'trans->valu'
                if a.is_trans and b.is_mfma and (vw & b.r): need, why = 2, 'trans->mfma'
                if sw and b.is_vmem and (sw & b.r): need, why = 5, 'valu sgpr->vmem'
                if sw and b.is_valu and (sw & b.r): need, why = max(need, 2), 'valu sgpr->valu'
                if 'exec' in a.w and b.is_mfma: need, why = 4, 'valu exec->mfma'
            elif a.is_salu:
                if 'm0' in a.w and b.is_dma: need, why = 1, 'm0->dma'
            elif a.is_vmem and a.stdata and len(a.stdata) >= 3:
                if (b.w & a.stdata): need, why = (2 if b.is_valu else 1), 'store data WAR'
            if need > dist:
                errs.append('%s: hazard %s need %d have %d:\n    %s\n    %s' % (name, why, need, dist, a.text, b.text))
            dist += b.states()
            if dist >= 20: break
    return errs

class Asm:
    def __init__(self):
        self.lines = []
        self.ldsq = []
    trace = False
    nbar = 0
    def __call__(self, text):
        if self.trace and text == 's_barrier':
            E = lambda x: self.lines.append(Ins(x))
            pw = None
            if self.lines and self.lines[-1].op == 's_waitcnt': pw = self.lines.pop().text
            k = self.nbar; self.nbar += 1
            E('s_memtime s[90:91]')
            if pw: E(pw)
            E('s_barrier'); E('s_memtime s[94:95]')
            E('s_and_b32 m0, s75, 63'); E('s_cmp_lt_u32 s75, 64'); E('s_waitcnt lgkmcnt(0)')
            E('s_cbranch_scc0 L_trh%d' % k)
            E('v_writelane_b32 v252, s90, m0'); E('v_writelane_b32 v253, s94, m0')
            E('s_branch L_tre%d' % k)
            E('L_trh%d:' % k)
            E('v_writelane_b32 v254, s90, m0'); E('v_writelane_b32 v255, s94, m0')
            E('L_tre%d:' % k)
            E('s_add_u32 s75, s75, 1')
            return
        self.lines.append(Ins(text))
    def raw(self, text): self(text)
    def lds(self, text, tag):
        self(text); self.ldsq.append(tag)
    def wait_lds(self, tag):
        idx = [i for i, t in enumerate(self.ldsq) if t == tag]
        if not idx: return
        last = idx[-1]
        nleft = len(self.ldsq) - 1 - last
        nleft = min(nleft, 15)
        self('s_waitcnt lgkmcnt(%d)' % nleft)
        self.ldsq = self.ldsq[len(self.ldsq) - nleft:] if nleft else []
    def lds_reset(self): self.ldsq = []
    def mark(self): return len(self.lines)
    def text(self):
        out = []
        for i in self.lines:
            out.append(i.text if (i.label or i.directive or i.text.startswith(';')) else '    ' + i.text)
        return '\n'.join(out) + '\n'


class Vm:
    def __init__(self, init=()):
        self.q = list(init)
    def add(self, tag, n=1): self.q += [tag] * n
    def need(self, tag):
        idx = [i for i, t in enumerate(self.q) if t == tag]
        if not idx: return None
        n = len(self.q) - 1 - idx[-1]
        self.q = self.q[idx[-1] + 1:]
        assert n <= 63
        return n
```

```python
import sys, math, struct
from asmlib import Asm, check_seq, Ins, Vm

def f32bits(x): return struct.unpack('<I', struct.pack('<f', x))[0]

class Cfg:
    kv_pol = ' nt'
    wq_pol = ' nt'
    wo_pol = ' nt'
    x_pol = ''
    st_pol = ' sc1'
    r_pol = ''
    thr = 8.0
    prio = 0
    kv_at = 0
    early16 = 1
    st_delay = 4
    st_rate = 2
    och = 10
    nostore = 0
    noload = 0
    warm = 0
    warm_step = 80
    warm_pol = ''
    kv_every = 3
    stamp = 0
    k2 = 1

TILE = 12288
NKV = 7
WBASE = NKV * TILE
XBASE = WBASE + 4 * TILE
XSLOT = 14336
LDS = 163840
LAG = 3
SS = [WBASE, WBASE + 24576, WBASE + 49152, 49152]

ACC = 0; QF = 96; S = 144; P = 160; AF = 168
vKa = 192; vKr = 196; vVa = 200; vVr = 202; vWa = 204; vXa = 206
vKd = 210; vVd = 213; vWd = 216; vXd = 219
vMref = 224; vMc = 225; vMthr = 226; vL0 = 227; vL1 = 228; vF = 230; vT0 = 232; vT1 = 233
T = 236
vOd = 248; vOa = 249; vOr = 250; vL16 = 251
TACC = [216, 232]
def stash(t):
    i = t - 2
    if i < 12: return 8 * i
    if i < 15: return 144 + 8 * (i - 12)
    return 192 + 8 * (i - 15)
sX = 16; sK = 20; sV = 24; sWq = 28; sWo = 32; sP = 36
sW8 = 40; sG = 41; sWv = 42; sB = 43; sHp = 44; sW3k = 45; sXm0 = 46; sXm1 = 47; sXa1 = 48; sCnt = 49
sWoff = 50; sXoff = 51; sCur = 52; sPrev = 53; sKoff = 54; sVoff = 55; sC = 56; sTc = 57; sFlag = 58
sW6k = 59; sO1 = 60; sSt = 61; sEx = 62; sMask = 64; sT0 = 66; sT1 = 67; sT2 = 68; sHi = 69

def v(i, n=1): return 'v%d' % i if n == 1 else 'v[%d:%d]' % (i, i + n - 1)
def s(i, n=1): return 's%d' % i if n == 1 else 's[%d:%d]' % (i, i + n - 1)
def mfma(d, a, b, c=None):
    return 'v_mfma_f32_32x32x16_bf16 %s, %s, %s, %s' % (v(d, 16), v(a, 4), v(b, 4), v(d, 16) if c is None else c)

def pipe_step(A, prev, frags, fill, lag=LAG, reset=True, tagp='f'):
    n = len(frags)
    if reset: A.lds_reset()
    nxt = 0
    def rd():
        nonlocal nxt
        if nxt < n:
            for t in frags[nxt][0]:
                if t.startswith('ds_'): A.lds(t, (tagp, nxt))
                else: A(t)
            nxt += 1
    for _ in range(5 - len(prev)): rd()
    for t in fill.get(-1, []): emit(A, t)
    seq = list(prev) + [((tagp, j), frags[j][1]) for j in range(n - lag)]
    for k, (tag, m) in enumerate(seq):
        A.wait_lds(tag)
        A(m)
        rd()
        for t in fill.get(k, []): emit(A, t)
    assert nxt == n
    return [((tagp, j), frags[j][1]) for j in range(n - lag, n)]

def untag(prev): return [(None, m) for _, m in prev]

def emit(A, t):
    if isinstance(t, tuple): A.lds(t[0], t[1])
    else: A(t)

def spread(items, gaps):
    tot = sum(c for _, c in items)
    out = {g: [] for g in gaps}
    acc = 0.0
    for t, c in items:
        gi = min(len(gaps) - 1, int((acc + c / 2.0) / tot * len(gaps)))
        out[gaps[gi]].append(t); acc += c
    return out

def merge(*ds):
    out = {}
    for d in ds:
        for k, l in d.items(): out.setdefault(k, []).extend(l)
    return out

def dma(voff, srd, soff, off, pol):
    return 'buffer_load_dwordx4 %s, %s, %s offen offset:%d%s lds' % (v(voff), s(srd, 4), soff, off, pol)

def gen(cfg, fname):
    A = Asm()
    def stamp(i, real=False):
        if cfg.stamp == 5 and i in (1, 3, 4, 7):
            k = {1: 1, 3: 3, 4: 5, 7: 7}[i]
            A('s_memtime %s' % s(76 + 2 * k, 2)); A('s_memrealtime %s' % s(78 + 2 * k, 2)); A('s_waitcnt lgkmcnt(0)')
        elif cfg.stamp and (cfg.stamp < 3 or i in (0, 10, 11, 12)):
            A('%s %s' % ('s_memrealtime' if (real or (cfg.stamp == 2 and i not in (0, 10))) else 's_memtime', s(76 + 2 * i, 2)))
            A('s_waitcnt lgkmcnt(0)')
    def wb(vm=None, lg=True):
        t = []
        if vm is not None: t.append('vmcnt(%d)' % vm)
        if lg: t.append('lgkmcnt(0)')
        if t: A('s_waitcnt ' + ' '.join(t))
        A('s_barrier')
    checks = []
    A('; @launch kernel=mha_k1_kernel grid=(256,1,1) block=(512,1,1) lds=%d' % LDS)
    A('; @launch kernel=mha_k2_kernel grid=(256,1,1) block=(320,1,1) lds=0')
    A('.amdgcn_target "amdgcn-amd-amdhsa--gfx950"')
    A('.text'); A('.globl mha_k1_kernel'); A('.p2align 8'); A('.type mha_k1_kernel,@function'); A('mha_k1_kernel:')
    m0 = A.mark()
    A('s_cmp_ge_u32 s2, 256'); A('s_cbranch_scc1 L_end')
    A('s_load_dwordx8 s[4:11], s[0:1], 0')
    A('s_load_dwordx2 s[12:13], s[0:1], 32')
    A('s_load_dwordx2 s[14:15], s[0:1], 56')
    stamp(0); stamp(11, True)
    if cfg.stamp == 3:
        A.trace = True
        A('s_mov_b32 s75, 0')
        for i in range(252, 256): A('v_mov_b32 v%d, 0' % i)
    L = T; Hh = T + 1; I16 = T + 2; U = T + 3; a = T + 4; b = T + 5; c = T + 6; d = T + 7; e = T + 8
    A('v_readfirstlane_b32 %s, v0' % s(sW8))
    A('v_and_b32 %s, 63, v0' % v(L))
    A('s_lshr_b32 %s, %s, 6' % (s(sW8), s(sW8)))
    A('s_lshr_b32 %s, %s, 2' % (s(sG), s(sW8)))
    A('s_and_b32 %s, %s, 3' % (s(sWv), s(sW8)))
    A('s_and_b32 %s, s2, 7' % s(sT0))
    A('s_lshr_b32 %s, s2, 3' % s(sT1))
    A('s_lshr_b32 %s, %s, 1' % (s(sB), s(sT1)))
    A('s_and_b32 %s, %s, 1' % (s(sT1), s(sT1)))
    A('s_lshl_b32 %s, %s, 1' % (s(sHp), s(sT0)))
    A('s_add_u32 %s, %s, %s' % (s(sHp), s(sHp), s(sT1)))
    A('s_mul_i32 %s, %s, 3072' % (s(sW3k), s(sWv)))
    A('s_cmp_eq_u32 %s, 3' % s(sWv))
    A('s_cselect_b32 %s, 0, 2048' % s(sXm1)); A('s_cselect_b32 %s, 0, 20480' % s(sXa1))
    A('s_cselect_b32 %s, 15, 31' % s(sHi))
    A('s_cselect_b32 %s, 0xffff, -1' % s(sMask)); A('s_mov_b32 %s, %s' % (s(sMask + 1), s(sMask)))
    A('s_lshl_b32 %s, %s, 12' % (s(sXm0), s(sWv))); A('s_add_u32 %s, %s, %d' % (s(sXm0), s(sXm0), XBASE))
    A('s_add_u32 %s, %s, %s' % (s(sXm1), s(sXm1), s(sXm0)))
    A('s_mul_i32 %s, %s, %d' % (s(sT0), s(sWv), 32 * 1280))
    A('v_lshrrev_b32 %s, 3, %s' % (v(a), v(L)))
    A('v_lshrrev_b32 %s, 4, %s' % (v(b), v(L)))
    A('v_and_b32 %s, 7, %s' % (v(c), v(L)))
    A('v_xor_b32 %s, %s, %s' % (v(b), v(b), v(c)))
    A('v_mul_u32_u24 %s, 1280, %s' % (v(a), v(a)))
    A('v_add_u32 %s, %s, %s' % (v(a), s(sT0), v(a)))
    A('v_lshl_add_u32 %s, %s, 4, %s' % (v(vXd), v(b), v(a)))
    A('v_xor_b32 %s, 4, %s' % (v(b), v(b)))
    A('v_lshl_add_u32 %s, %s, 4, %s' % (v(vXd + 1), v(b), v(a)))
    A('v_add_u32 %s, %d, %s' % (v(vXd + 1), 8 * 1280 - 1024, v(vXd + 1)))
    A('s_lshl_b32 %s, %s, 3' % (s(sT0), s(sWv)))
    for p in range(3):
        A('v_add_u32 %s, %d, %s' % (v(a), 64 * p, v(L)))
        A('v_mul_u32_u24 %s, 171, %s' % (v(b), v(a)))
        A('v_lshrrev_b32 %s, 12, %s' % (v(b), v(b)))
        A('v_mul_u32_u24 %s, 24, %s' % (v(c), v(b)))
        A('v_sub_u32 %s, %s, %s' % (v(vVd + p), v(a), v(c)))
        A('v_add_u32 %s, %s, %s' % (v(vKd + p), s(sT0), v(b)))
        A('v_lshlrev_b32 %s, 1, %s' % (v(d), v(b)))
        A('v_and_b32 %s, 4, %s' % (v(d), v(d)))
        A('v_xor_b32 %s, %s, %s' % (v(d), v(vVd + p), v(d)))
        A('v_mul_u32_u24 %s, 12288, %s' % (v(e), v(vKd + p)))
        A('v_lshl_add_u32 %s, %s, 4, %s' % (v(d), v(d), v(e)))
        A('v_subrev_u32 %s, %d, %s' % (v(vWd + p), 1024 * p, v(d)))
    A('s_mul_i32 %s, %s, 143360' % (s(sT0), s(sB)))
    A('s_lshl_b32 %s, %s, 1' % (s(sT1), s(sHp))); A('s_add_u32 %s, %s, %s' % (s(sT1), s(sT1), s(sG)))
    A('s_mul_i32 %s, %s, 384' % (s(sT1), s(sT1)))
    A('s_mov_b32 %s, 143360' % s(sX + 2)); A('s_mov_b32 %s, 0x20000' % s(sX + 3))
    A('s_sub_u32 %s, 7864320, %s' % (s(sWq + 2), s(sT1))); A('s_mov_b32 %s, 0x20000' % s(sWq + 3))
    A('s_mov_b32 %s, 0' % s(sWoff)); A('s_mov_b32 %s, 0' % s(sXoff))
    A('s_waitcnt lgkmcnt(0)')
    A('s_add_u32 %s, s4, %s' % (s(sX), s(sT0))); A('s_addc_u32 %s, s5, 0' % s(sX + 1))
    A('s_add_u32 %s, s10, %s' % (s(sWq), s(sT1))); A('s_addc_u32 %s, s11, 0' % s(sWq + 1))
    def x_issue(slot):
        return ['s_add_u32 m0, %s, %d' % (s(sXm0), slot * XSLOT),
                's_add_u32 %s, %s, %s' % (s(sT1), s(sXoff), s(sXa1)),
                dma(vXd, sX, s(sXoff), 0, cfg.x_pol), dma(vXd + 1, sX, s(sXoff), 1024, cfg.x_pol),
                's_add_u32 m0, %s, %d' % (s(sXm1), slot * XSLOT),
                's_add_u32 %s, %s, 128' % (s(sXoff), s(sXoff)),
                dma(vXd, sX, s(sT1), 0, cfg.x_pol), dma(vXd + 1, sX, s(sT1), 1024, cfg.x_pol),
                's_cmp_ge_u32 %s, 1280' % s(sXoff),
                's_cselect_b32 %s, 0x40000000, %s' % (s(sXoff), s(sXoff))]
    def w_issue(slot):
        return ['s_add_u32 m0, %s, %d' % (s(sW3k), WBASE + slot * TILE), 's_nop 0',
                dma(vWd, sWq, s(sWoff), 0, cfg.wq_pol), dma(vWd + 1, sWq, s(sWoff), 1024, cfg.wq_pol),
                dma(vWd + 2, sWq, s(sWoff), 2048, cfg.wq_pol),
                's_add_u32 %s, %s, %d' % (s(sWoff), s(sWoff), 32 * 12288)]
    def x_reads(slot):
        return [('ds_read_b128 %s, %s offset:%d' % (v(QF + 16 * slot + 4 * s3, 4), v(vXa + s3), slot * XSLOT), 'x') for s3 in range(4)]
    qpro = [x_issue(0), w_issue(0), x_issue(1), w_issue(1), w_issue(2)]
    A('s_cmp_eq_u32 %s, 0' % s(sG)); A('s_cbranch_scc0 L_p0')
    for l in qpro[:3]:
        for t in l: A(t)
    A('s_branch L_p1')
    A('L_p0:')
    if cfg.warm & 2:
        A('s_and_b32 %s, %s, 1' % (s(sT1), s(sHp))); A('s_lshl_b32 %s, %s, 2' % (s(sT1), s(sT1)))
        A('s_add_u32 %s, %s, %s' % (s(sT1), s(sT1), s(sWv)))
        A('s_mul_i32 %s, %s, %d' % (s(sT1), s(sT1), 14 * 1280))
        A('v_lshlrev_b32 %s, 7, %s' % (v(b), v(L)))
        A('v_min_u32 %s, %d, %s' % (v(c), 11 * 128, v(b)))
        A('buffer_load_dword %s, %s, %s, %s offen%s' % (v(S), v(b), s(sX, 4), s(sT1), cfg.x_pol))
        A('s_add_u32 %s, %s, 8192' % (s(sT1), s(sT1)))
        A('buffer_load_dword %s, %s, %s, %s offen%s' % (v(S), v(b), s(sX, 4), s(sT1), cfg.x_pol))
        A('s_add_u32 %s, %s, 8192' % (s(sT1), s(sT1)))
        A('buffer_load_dword %s, %s, %s, %s offen%s' % (v(S), v(c), s(sX, 4), s(sT1), cfg.x_pol))
    if cfg.warm & 4:
        A('s_mul_i32 %s, %s, 8960' % (s(sT1), s(sHp)))
        A('s_mul_i32 %s, %s, 2304' % (s(sT2), s(sWv))); A('s_add_u32 %s, %s, %s' % (s(sT1), s(sT1), s(sT2)))
        A('v_min_u32 %s, 17, %s' % (v(b), v(L)))
        A('v_lshlrev_b32 %s, 7, %s' % (v(b), v(b)))
        A('buffer_load_dword %s, %s, %s, %s offen%s' % (v(S), v(b), s(sX, 4), s(sT1), cfg.x_pol))
    if cfg.warm & 1:
        A('s_lshl_b32 %s, %s, 2' % (s(sT1), s(sB))); A('s_add_u32 %s, %s, %s' % (s(sT1), s(sT1), s(sWv)))
        A('s_mul_i32 %s, %s, %d' % (s(sT1), s(sT1), 10 * 12288))
        A('s_mul_i32 %s, %s, 768' % (s(sT2), s(sHp))); A('s_add_u32 %s, %s, %s' % (s(sT1), s(sT1), s(sT2)))
        A('s_mov_b32 %s, s10' % s(sWo)); A('s_mov_b32 %s, s11' % s(sWo + 1))
        A('s_mov_b32 %s, 7864320' % s(sWo + 2)); A('s_mov_b32 %s, 0x20000' % s(sWo + 3))
        A('v_min_u32 %s, 59, %s' % (v(a), v(L)))
        A('v_mul_u32_u24 %s, 43, %s' % (v(b), v(a)))
        A('v_lshrrev_b32 %s, 8, %s' % (v(b), v(b)))
        A('v_mul_u32_u24 %s, %d, %s' % (v(b), 12288 - 768, v(b)))
        A('v_lshl_add_u32 %s, %s, 7, %s' % (v(b), v(a), v(b)))
        A('buffer_load_dword %s, %s, %s, %s offen%s' % (v(S), v(b), s(sWo, 4), s(sT1), cfg.warm_pol))
    A('L_p1:')
    A('s_lshl_b32 %s, %s, 4' % (s(sT0), s(sB))); A('s_add_u32 %s, %s, %s' % (s(sT0), s(sT0), s(sHp)))
    A('s_mul_i32 %s, %s, 393216' % (s(sT1), s(sT0)))
    A('s_add_u32 %s, s6, %s' % (s(sK), s(sT1))); A('s_addc_u32 %s, s7, 0' % s(sK + 1))
    A('s_mov_b32 %s, 393216' % s(sK + 2)); A('s_mov_b32 %s, 0x20000' % s(sK + 3))
    A('s_add_u32 %s, s8, %s' % (s(sV), s(sT1))); A('s_addc_u32 %s, s9, 0' % s(sV + 1))
    A('s_mov_b32 %s, 393216' % s(sV + 2)); A('s_mov_b32 %s, 0x20000' % s(sV + 3))
    A('s_mul_i32 %s, %s, 163840' % (s(sT1), s(sT0)))
    A('s_add_u32 %s, s14, %s' % (s(sP), s(sT1))); A('s_addc_u32 %s, s15, 0' % s(sP + 1))
    A('s_mov_b32 %s, 163840' % s(sP + 2)); A('s_mov_b32 %s, 0x20000' % s(sP + 3))
    A('s_mov_b32 %s, s12' % s(sWo)); A('s_mov_b32 %s, s13' % s(sWo + 1))
    A('s_mov_b32 %s, 7864320' % s(sWo + 2)); A('s_mov_b32 %s, 0x20000' % s(sWo + 3))
    A('s_mul_i32 %s, %s, 491520' % (s(sO1), s(sHp)))
    A('s_mul_i32 %s, %s, 6144' % (s(sW6k), s(sWv)))
    A('s_mul_i32 %s, %s, %d' % (s(sEx), s(sWv), TILE))
    A('s_lshl_b32 %s, %s, 11' % (s(sSt), s(sWv)))
    for p in range(3):
        A('v_mul_u32_u24 %s, 384, %s' % (v(e), v(vKd + p)))
        A('v_subrev_u32 %s, %d, %s' % (v(e), 1024 * p, v(e)))
        A('v_bfe_u32 %s, %s, 1, 3' % (v(d), v(vKd + p)))
        A('v_lshlrev_b32 %s, 2, %s' % (v(c), v(d)))
        A('v_and_b32 %s, 4, %s' % (v(c), v(c)))
        A('v_xor_b32 %s, %s, %s' % (v(d), v(vVd + p), v(d)))
        A('v_xor_b32 %s, %s, %s' % (v(c), v(vVd + p), v(c)))
        A('v_lshl_add_u32 %s, %s, 4, %s' % (v(vKd + p), v(d), v(e)))
        A('v_lshl_add_u32 %s, %s, 4, %s' % (v(vVd + p), v(c), v(e)))
    A('v_lshrrev_b32 %s, 5, %s' % (v(Hh), v(L)))
    A('v_and_b32 %s, 15, %s' % (v(I16), v(L)))
    A('v_bfe_u32 %s, %s, 4, 1' % (v(U), v(L)))
    A('v_and_b32 %s, 31, %s' % (v(a), v(L)))
    A('v_bfe_u32 %s, %s, 1, 3' % (v(b), v(a)))
    A('v_xor_b32 %s, %s, %s' % (v(b), v(b), v(Hh)))
    A('v_mul_u32_u24 %s, 384, %s' % (v(a), v(a)))
    for s3 in range(4):
        A('v_xor_b32 %s, %d, %s' % (v(c), 2 * s3, v(b)))
        A('v_lshl_add_u32 %s, %s, 4, %s' % (v(vKa + s3), v(c), v(a)))
    A('v_and_b32 %s, %s, %s' % (v(a), s(sHi), v(L)))
    A('v_lshlrev_b32 %s, 7, %s' % (v(a), v(a)))
    A('v_add_u32 %s, %s, %s' % (v(a), s(sXm0), v(a)))
    for s3 in range(4):
        A('v_xor_b32 %s, %d, %s' % (v(c), 2 * s3, v(b)))
        A('v_lshl_add_u32 %s, %s, 4, %s' % (v(vXa + s3), v(c), v(a)))
    A('v_lshrrev_b32 %s, 2, %s' % (v(a), v(I16)))
    A('v_lshl_add_u32 %s, %s, 2, %s' % (v(b), v(Hh), v(a)))
    A('v_mul_u32_u24 %s, 384, %s' % (v(c), v(b)))
    A('v_lshl_add_u32 %s, %s, 5, %s' % (v(c), v(U), v(c)))
    A('v_and_b32 %s, 3, %s' % (v(d), v(I16)))
    A('v_lshl_add_u32 %s, %s, 3, %s' % (v(c), v(d), v(c)))
    A('v_lshrrev_b32 %s, 3, %s' % (v(e), v(I16)))
    A('v_lshl_add_u32 %s, %s, 6, %s' % (v(vVa), v(e), v(c)))
    A('v_xor_b32 %s, 64, %s' % (v(vVa + 1), v(vVa)))
    A('v_lshlrev_b32 %s, 7, %s' % (v(c), v(b)))
    A('v_lshl_add_u32 %s, %s, 6, %s' % (v(c), v(e), v(c)))
    A('v_lshl_add_u32 %s, %s, 4, %s' % (v(c), v(U), v(c)))
    A('v_and_b32 %s, 1, %s' % (v(d), v(I16)))
    A('v_lshl_add_u32 %s, %s, 5, %s' % (v(c), v(d), v(c)))
    A('v_bfe_u32 %s, %s, 1, 1' % (v(b), v(I16)))
    A('v_lshl_add_u32 %s, %s, 3, %s' % (v(vOa), v(b), v(c)))
    A('v_lshl_add_u32 %s, %s, 3, %s' % (v(a), v(Hh), v(a)))
    A('v_mul_u32_u24 %s, 384, %s' % (v(c), v(a)))
    A('v_lshl_add_u32 %s, %s, 5, %s' % (v(c), v(U), v(c)))
    A('v_lshl_add_u32 %s, %s, 4, %s' % (v(c), v(d), v(c)))
    A('v_lshl_add_u32 %s, %s, 3, %s' % (v(c), v(b), v(c)))
    A('v_add_u32 %s, %d, %s' % (v(c), WBASE, v(c)))
    A('v_lshl_add_u32 %s, %s, 6, %s' % (v(vWa), v(e), v(c)))
    A('v_xor_b32 %s, 64, %s' % (v(vWa + 1), v(vWa)))
    A('s_mul_i32 %s, %s, %d' % (s(sT0), s(sWv), 48 * 1280))
    A('v_lshrrev_b32 %s, 3, %s' % (v(a), v(L)))
    A('v_mul_u32_u24 %s, 1280, %s' % (v(a), v(a)))
    A('v_and_b32 %s, 7, %s' % (v(b), v(L)))
    A('v_lshlrev_b32 %s, 2, %s' % (v(c), v(U)))
    A('v_xor_b32 %s, %s, %s' % (v(b), v(b), v(c)))
    A('v_lshlrev_b32 %s, 4, %s' % (v(b), v(b)))
    A('v_add3_u32 %s, %s, %s, %s' % (v(vOd), v(a), v(b), s(sT0)))
    A('v_lshlrev_b32 %s, 4, %s' % (v(vL16), v(L)))
    cc = math.log2(math.e) / math.sqrt(192.0)
    A('s_mov_b32 %s, 0x%08x' % (s(sC), f32bits(cc)))
    A('s_mov_b32 %s, 0x%08x' % (s(sTc), f32bits(cfg.thr / cc)))
    A('s_mov_b32 %s, 0' % s(sFlag))
    A('s_mul_i32 %s, %s, %d' % (s(sCur), s(sG), (32 % NKV) * TILE))
    A('s_mul_i32 %s, %s, %d' % (s(sPrev), s(sG), (6 - 31 % NKV) * TILE))
    A('s_sub_u32 %s, %d, %s' % (s(sPrev), 6 * TILE, s(sPrev)))
    A('s_mul_i32 %s, %s, %d' % (s(sT0), s(sG), 16 * TILE))
    A('s_add_u32 %s, %s, %d' % (s(sKoff), s(sT0), 3 * TILE))
    A('s_add_u32 %s, %s, %d' % (s(sVoff), s(sT0), 2 * TILE))
    for i in list(range(ACC, ACC + 96)) + list(range(QF + 28, QF + 32)) + list(range(AF + 12, AF + 24)): A('v_mov_b32 %s, 0' % v(i))
    def q_frags(r):
        fr = []
        for ss in range(2):
            for dt in range(6):
                j = ss * 6 + dt; buf = AF + 4 * (j % 6)
                rds = ['ds_read_b64_tr_b16 %s, %s offset:%d' % (v(buf + 2 * vv, 2), v(vWa + (dt & 1)),
                        r * TILE + (16 * ss + 4 * vv) * 384 + 128 * (dt >> 1)) for vv in range(2)]
                fr.append((rds, mfma(ACC + 16 * dt, buf, QF + 16 * (r >> 1) + 4 * ((r & 1) * 2 + ss))))
        return fr
    qlag = [(None, f[1]) for f in q_frags(3)[-LAG:]]
    A('s_mov_b32 %s, 0' % s(sCnt))
    A('s_cmp_eq_u32 %s, 0' % s(sG)); A('s_cbranch_scc0 L_g2a')
    for l in qpro[3:]:
        for t in l: A(t)
    stamp(1)
    A('s_waitcnt vmcnt(13)')
    for t in x_reads(0): A(t[0])
    checks.append(('prologue', A.lines[m0:]))
    def q1_iter(final):
        prev = qlag
        for r in range(4):
            wb(10 if not final else [10, 6, 3, 0][r])
            fill = {}
            if r % 2 == 0:
                xi = x_issue(r >> 1); wi = w_issue((r + 3) & 3)
                if not final: fill = {0: xi[0:3], 1: xi[3:4], 2: xi[4:7], 3: xi[7:8], 4: wi[0:3], 5: wi[3:4], 6: wi[4:6]}
                elif r == 0: fill = {0: wi[0:3], 1: wi[3:4], 2: wi[4:6]}
            else:
                wi = w_issue((r + 3) & 3); xr = x_reads(((r + 1) >> 1) & 1)
                if not final: fill = {0: wi[0:3], 1: wi[3:4], 2: wi[4:6]}
                if not final or r == 1: fill = merge(fill, {5: xr[0:1], 6: xr[1:2], 7: xr[2:3], 8: xr[3:4]})
            prev = untag(pipe_step(A, prev, q_frags(r), fill))
    A('L_qloop:')
    m1 = A.mark()
    q1_iter(False)
    A('s_add_u32 %s, %s, 1' % (s(sCnt), s(sCnt))); A('s_cmp_lt_u32 %s, 4' % s(sCnt)); A('s_cbranch_scc1 L_qloop')
    body = A.lines[m1:]
    checks.append(('qloop', body + body))
    m1 = A.mark()
    q1_iter(True)
    A('s_waitcnt lgkmcnt(0)')
    A('s_branch L_qend')
    checks.append(('qloop end', body[-40:] + A.lines[m1:]))
    body = A.lines[m1:]
    A('L_g2a:')
    kv0 = ((sK, vKd, 0, 0), (sK, vKd, 1, 2), (sV, vVd, 0, 3), (sK, vKd, 2, 4), (sV, vVd, 1, 5), (sK, vKd, 3, 6))
    m1 = A.mark()
    for st in range(21):
        wb(13 if st == 20 else None, False)
        for i in range(6):
            if cfg.kv_at + i * cfg.kv_every == st:
                srd, vd, tile, slot = kv0[i]
                A('s_add_u32 m0, %s, %d' % (s(sW3k), slot * TILE))
                A('s_mov_b32 %s, %d' % (s(sT1), tile * TILE))
                for p in range(3): A(dma(vd + p, srd, s(sT1), 1024 * p, cfg.kv_pol))
        for l in {16: [x_issue(0)], 17: [w_issue(0)], 18: [w_issue(1), x_issue(1)], 19: [w_issue(2)]}.get(st, []):
            for t in l: A(t)
    assert cfg.kv_at + 5 * cfg.kv_every < 16
    stamp(1)
    for t in x_reads(0): A(t[0])
    checks.append(('g2 pro', A.lines[m1:]))
    A('L_q2loop:')
    m1 = A.mark()
    allf = q_frags(0) + q_frags(1) + q_frags(2) + q_frags(3)
    prev = qlag
    for cch in range(6):
        wb(10)
        if cch in (1, 4):
            xi = x_issue(0 if cch == 1 else 1)
            fill = {0: xi[0:3], 1: xi[3:4], 2: xi[4:7], 3: xi[7:10]}
        else:
            wi = w_issue({0: 3, 2: 0, 3: 1, 5: 2}[cch])
            fill = {0: wi[0:3], 1: wi[3:4], 2: wi[4:6]}
        if cch in (2, 5):
            xr = x_reads(1 if cch == 2 else 0)
            fill = merge(fill, {3: xr[0:1], 4: xr[1:2], 5: xr[2:3], 6: xr[3:4]})
        prev = untag(pipe_step(A, prev, allf[8 * cch:8 * cch + 8], fill))
    A('s_add_u32 %s, %s, 1' % (s(sCnt), s(sCnt))); A('s_cmp_lt_u32 %s, 5' % s(sCnt)); A('s_cbranch_scc1 L_q2loop')
    body2 = A.lines[m1:]
    checks.append(('q2loop', body2 + body2))
    wb()
    A('L_qend:')
    m2 = A.mark()
    stamp(2)
    for _, m in qlag: A(m)
    for i in range(4): A('v_add_u32 %s, %s, %s' % (v(vKr + i), s(sCur), v(vKa + i)))
    A('v_mov_b32 %s, 0xff800000' % v(vMref)); A('v_mov_b32 %s, 0xff800000' % v(vMthr)); A('v_mov_b32 %s, 0' % v(vMc))
    A('v_mov_b32 %s, 0' % v(vL0)); A('v_mov_b32 %s, 0' % v(vL1))
    for i in range(4): A('v_mov_b32 %s, 0' % v(P + 4 + i))
    for i in range(48):
        A('v_cvt_pk_bf16_f32 %s, %s, %s' % (v(QF + i), v(ACC + 2 * i), v(ACC + 2 * i + 1)))
    A('L_attn:')
    if cfg.prio: A('s_setprio %d' % cfg.prio)
    def k_frags():
        fr = []
        for ss in range(12):
            buf = AF + 4 * (ss % 6)
            fr.append((['ds_read_b128 %s, %s offset:%d' % (v(buf, 4), v(vKr + (ss & 3)), 128 * (ss >> 2))],
                       mfma(S, buf, QF + 4 * ss, '0' if ss == 0 else None)))
        return fr
    def v_frags():
        fr = []
        for ss in range(2):
            for dt in range(6):
                j = ss * 6 + dt; buf = AF + 4 * (j % 6)
                rds = ['ds_read_b64_tr_b16 %s, %s offset:%d' % (v(buf + 2 * vv, 2), v(vVr + (dt & 1)),
                        (16 * ss + 8 * vv) * 384 + 128 * (dt >> 1)) for vv in range(2)]
                fr.append((rds, mfma(ACC + 16 * dt, buf, P + 4 * ss)))
        return fr
    def kv_issue(srd, vd, soff):
        return ['s_cmp_ge_u32 %s, 393216' % s(soff), 's_cselect_b32 %s, %d, %s' % (s(sT0), TILE, s(sPrev)),
                's_add_u32 m0, %s, %s' % (s(sW3k), s(sT0)), 's_nop 0',
                dma(vd, srd, s(soff), 0, cfg.kv_pol), dma(vd + 1, srd, s(soff), 1024, cfg.kv_pol),
                dma(vd + 2, srd, s(soff), 2048, cfg.kv_pol),
                's_add_u32 %s, %s, %d' % (s(soff), s(soff), TILE)]
    ring_adv = ['s_mov_b32 %s, %s' % (s(sPrev), s(sCur)),
                's_add_u32 %s, %s, %d' % (s(sCur), s(sCur), TILE),
                's_cmp_ge_u32 %s, %d' % (s(sCur), NKV * TILE),
                's_cselect_b32 %s, 0, %s' % (s(sCur), s(sCur))]
    addr_k = ['v_add_u32 %s, %s, %s' % (v(vKr + i), s(sCur), v(vKa + i)) for i in range(4)]
    addr_v = ['v_add_u32 %s, %s, %s' % (v(vVr + i), s(sCur), v(vVa + i)) for i in range(2)]
    def sm_max(tag):
        t0, t1 = v(vT0), v(vT1)
        l = ['v_max3_f32 %s, %s, %s, %s' % (t0, v(S), v(S + 1), v(S + 2)),
             'v_max3_f32 %s, %s, %s, %s' % (t1, v(S + 3), v(S + 4), v(S + 5))]
        for k in range(5):
            tt = t0 if k % 2 == 0 else t1
            l.append('v_max3_f32 %s, %s, %s, %s' % (tt, tt, v(S + 6 + 2 * k), v(S + 7 + 2 * k)))
        l.append('v_max_f32 %s, %s, %s' % (t0, t0, t1))
        l.append('v_cmp_gt_f32 vcc, %s, %s' % (t0, v(vMthr)))
        l.append('s_cbranch_vccnz L_rare_%s' % tag)
        l.append('L_ret_%s:' % tag)
        return l
    def sm_exp():
        it = []
        fma = lambda j: ('v_fma_f32 %s, %s, %s, -%s' % (v(S + j), v(S + j), s(sC), v(vMc)), 1)
        ex = lambda j: ('v_exp_f32 %s, %s' % (v(S + j), v(S + j)), 2)
        ad = lambda j: ('v_add_f32 %s, %s, %s' % (v(vL0 + (j & 1)), v(vL0 + (j & 1)), v(S + j)), 1)
        for j in range(16 + 4):
            if j < 16: it.append(fma(j))
            if 0 <= j - 2 < 16: it.append(ex(j - 2))
            if 0 <= j - 4 < 16: it.append(ad(j - 4))
        return it
    cvt = lambda k: 'v_cvt_pk_bf16_f32 %s, %s, %s' % (v(P + k), v(S + 2 * k), v(S + 2 * k + 1))
    sp = spread(sm_exp(), [5, 6, 7, 8, 9, 10, 11, 100, 101])
    vfill_sm = {g: sp[g] for g in range(5, 12)}
    kfill_sm = {0: sp[100], 1: sp[101]}
    vfill_sm[11] = vfill_sm[11] + [cvt(0), cvt(1), cvt(2), cvt(3)]
    done = ' '.join(t for g in range(5, 12) for t in vfill_sm[g])
    for j in range(8): assert ('v_exp_f32 %s,' % v(S + j)) in done
    def resc(tag):
        return [cvt(4), cvt(5), cvt(6), cvt(7), 's_cmp_lg_u32 %s, 0' % s(sFlag), 's_cbranch_scc1 L_resc_%s' % tag, 'L_rret_%s:' % tag]
    rare_tags = []; resc_tags = []
    wb(0, False)
    stamp(3)
    ki = kv_issue(sK, vKd, sKoff)
    zero_acc = ['v_mov_b32 %s, 0' % v(ACC + i) for i in range(96)]
    fill = {0: ['s_cmp_eq_u32 %s, 0' % s(sG), 's_cbranch_scc1 L_k0skip'] + ki[0:7] + ['L_k0skip:', ki[7]] + ring_adv}
    for g in range(1, 9): fill[g] = zero_acc[(g - 1) * 6:g * 6]
    prev = untag(pipe_step(A, [], k_frags(), fill))
    wb(15)
    for k, (_, m) in enumerate(prev):
        A(m)
        for t in zero_acc[48 + 6 * k:54 + 6 * k]: A(t)
    for t in kv_issue(sV, vVd, sVoff) + ring_adv + addr_k + zero_acc[66:]: A(t)
    for t in sm_max('v0'): A(t)
    rare_tags.append('v0')
    for g in range(5, 12):
        for t in vfill_sm[g]: A(t)
    A('s_mov_b32 %s, 0' % s(sFlag))
    A('s_mov_b32 %s, 0' % s(sCnt))
    checks.append(('q->attn', body[-40:] + A.lines[m2:]))
    pre_loop = A.lines[-40:]
    A('L_aloop:')
    m3 = A.mark()
    pv_lag = [(None, f[1]) for f in v_frags()[-LAG:]]
    wb(15)
    fill = merge(kfill_sm, {2: resc('l'), 3: ki[0:5], 4: ki[5:6], 5: ki[6:8], 6: ring_adv, 7: addr_v})
    resc_tags.append('l')
    prev = untag(pipe_step(A, pv_lag, k_frags(), fill))
    wb(15)
    vi = kv_issue(sV, vVd, sVoff)
    fill = merge({0: vi[0:5], 1: vi[5:6], 2: vi[6:8] + ring_adv, 3: addr_k, 4: sm_max('l')}, vfill_sm)
    rare_tags.append('l')
    prev = untag(pipe_step(A, prev, v_frags(), fill))
    A('s_add_u32 %s, %s, 1' % (s(sCnt), s(sCnt))); A('s_cmp_lt_u32 %s, 15' % s(sCnt)); A('s_cbranch_scc1 L_aloop')
    abody = A.lines[m3:]
    checks.append(('aloop', pre_loop + abody + abody))
    stamp(4)
    lagpv = prev
    def st_slot(j): return SS[j % 3] if j <= 12 else SS[[3, 1, 2, 0][(j - 13) % 4]]
    def st_issue(j, part, n=3):
        off = ((j + 1) % 10) * 128 if j < 10 else 245760 + (j - 10) * 128
        off += part * n * 10240
        l = ['s_add_u32 m0, %s, %d' % (s(sW6k), st_slot(j) + part * n * 1024)]
        for i in range(n):
            l += ['s_add_u32 %s, %s, %d' % (s(sT0 + i), s(sO1), off + i * 9216), dma(vOd, sWo, s(sT0 + i), 1024 * i, cfg.wo_pol)]
        return l
    def st_load(j, i, dst):
        off = 245760 + (j - 10) * 128 + i * 10240
        return ['s_add_u32 %s, %s, %d' % (s(sT1), s(sO1), off),
                'buffer_load_dwordx4 %s, %s, %s, %s offen%s' % (v(dst, 4), v(vOd), s(sWo, 4), s(sT1), cfg.wo_pol)]
    stg = {14: 96, 15: 120, 16: 144, 17: 168, 18: 192, 19: 216}
    def attn_end(g, vm):
        base = 32 if g == 0 else 64
        if g == 0: wb(vm.need(('kv', base)))
        else: A('s_waitcnt lgkmcnt(0)')
        for k, (_, m) in enumerate(lagpv):
            A(m)
            for t in kfill_sm.get(k, []): A(t)
        for t in resc('e%d' % g)[4:] + ring_adv + addr_v: A(t)
        resc_tags.append('e%d' % g)
        for t in ['v_add_f32 %s, %s, %s' % (v(vT0), v(vL0), v(vL1)),
                  'v_mov_b32 %s, %s' % (v(vT1), v(vT0)), 's_nop 1',
                  'v_permlane32_swap_b32 %s, %s' % (v(vT0), v(vT1)),
                  'v_add_f32 %s, %s, %s' % (v(vT0), v(vT0), v(vT1)),
                  'v_rcp_f32 %s, %s' % (v(vF), v(vT0)),
                  'v_add_u32 %s, %s, %s' % (v(vOr), s(sEx), v(vL16)),
                  'v_mov_b32 %s, %s' % (v(vF + 1), v(vF))]: A(t)
        ld = []
        if g == 0: ld = [st_issue(0, 0)]; vm.add(('st', 0), 3)
        else: ld = [st_load(14, i, stg[14] + 4 * i) for i in range(6)]; vm.add(('st', 14), 6)
        for i in range(8): A('v_pk_mul_f32 %s, %s, %s' % (v(S + 2 * i, 2), v(S + 2 * i, 2), v(vF, 2)))
        for k in range(8): A(cvt(k))
        for i in range(48):
            A('v_pk_mul_f32 %s, %s, %s' % (v(ACC + 2 * i, 2), v(ACC + 2 * i, 2), v(vF, 2)))
            if i % 8 == 0 and i // 8 < len(ld):
                for t in ld[i // 8]: A(t)
        wb(vm.need(('kv', base + 1)), False)
        if g == 0:
            ii = st_issue(0, 1); fill = {3: ii[0:3], 4: ii[3:5], 5: ii[5:7]}
            vm.add(('st', 0), 3)
        else:
            fill = {2 + i: st_load(15, i, stg[15] + 4 * i) for i in range(6)}
            vm.add(('st', 15), 6)
        prev = untag(pipe_step(A, [], v_frags(), fill))
        wb(vm.need(('kv', base + 2)) if g == 0 else vm.need(('kv', 69)))
        for _, m in prev: A(m)
        if cfg.prio: A('s_setprio 0')
        if g == 0:
            for t in st_issue(1, 0): A(t)
            vm.add(('st', 1), 3)
            for i in range(48): A('v_cvt_pk_bf16_f32 %s, %s, %s' % (v(QF + i), v(ACC + 2 * i), v(ACC + 2 * i + 1)))
        else:
            A('s_nop 5')
            for dt in range(6):
                for k in range(8):
                    A('v_cvt_pk_bf16_f32 %s, %s, %s' % (v(ACC + 16 * dt + k), v(ACC + 16 * dt + 2 * k), v(ACC + 16 * dt + 2 * k + 1)))
                for u in range(2):
                    A('ds_write_b128 %s, %s offset:%d' % (v(vOr), v(ACC + 16 * dt + 4 * u, 4), 1024 * (2 * dt + u)))
                if cfg.early16:
                    for q in (2 * dt, 2 * dt + 1):
                        for t in st_load(16 + q // 6, q % 6, stg[16 + q // 6] + 4 * (q % 6)): A(t)
            if cfg.early16: vm.add(('st', 16), 6); vm.add(('st', 17), 6)
    A('s_cmp_lg_u32 %s, 0' % s(sG)); A('s_cbranch_scc1 L_g2tail')
    m5 = A.mark()
    vm = Vm([('kv', p) for p in range(32, 38) for _ in range(3)])
    attn_end(0, vm)
    stamp(5)
    def o_frags(acc, zero, extra=None):
        fr = []
        for ss in range(12):
            buf = AF + 4 * (ss % 6)
            rds = ['ds_read_b64_tr_b16 %s, %s offset:%d' % (v(buf + 2 * vv, 2), v(vOr), 2048 * ss + 1024 * vv) for vv in range(2)]
            if extra: rds = [extra(ss)] + rds
            fr.append((rds, mfma(acc, buf, QF + 4 * ss, '0' if (ss == 0 and zero) else None)))
        return fr
    def next_addr(u):
        if u % 2 == 0: return 'v_add_u32 %s, %d, %s' % (v(vOr), st_slot(u // 2), v(vOa))
        return 'v_xor_b32 %s, 64, %s' % (v(vOr), v(vOr))
    def pack_to(dst, acc):
        return ['v_cvt_pk_bf16_f32 %s, %s, %s' % (v(dst + k), v(acc + 2 * k), v(acc + 2 * k + 1)) for k in range(8)]
    wb(vm.need(('kv', 35)), False)
    for t in st_issue(1, 1): A(t)
    vm.add(('st', 1), 3)
    allo = []
    for n in range(20):
        f = o_frags(TACC[n & 1], True)
        f[0] = ([next_addr(n)] + f[0][0], f[0][1])
        allo += f
    gfill = {}
    for n in range(18):
        pk = pack_to(stash(n + 2), TACC[n & 1])
        gfill[12 * n + 11 + 4] = pk[0:4]; gfill[12 * n + 11 + 5] = pk[4:8]
    CH = cfg.och; nch = 240 // CH
    assert 240 % CH == 0 and 56 + nch <= 82
    pend = [(2, 0), (2, 1)]
    rel = 0
    prev = []
    for st in range(56, 85):
        k = st - 56
        w = None
        if k < nch: w = vm.need(('st', (CH * k + CH - 1) // 24))
        if w is None and st <= 57: w = vm.need(('kv', st - 20))
        wb(w, k <= nch)
        while rel < 10 and CH * k >= 24 * (rel + 1):
            pend += [(rel + 3, 0), (rel + 3, 1)]; rel += 1
        if st == 82: pend += [(13, 0), (13, 1)]
        ii = []
        if pend:
            j, hh = pend.pop(0)
            ii = st_issue(j, hh); vm.add(('st', j), 3)
        if k < nch:
            fill = {0: ii[0:3], 1: ii[3:5], 2: ii[5:7]}
            first = CH * k - len(prev)
            for gi in range(first, CH * k + CH - LAG):
                if gi in gfill: fill = merge(fill, {gi - first: gfill[gi]})
            prev = untag(pipe_step(A, prev, allo[CH * k:CH * k + CH], fill))
        else:
            if k == nch:
                for _, m in prev: A(m)
            for t in ii: A(t)
    assert not pend and rel == 10
    A(next_addr(20))
    A('v_add_u32 %s, %s, %s' % (v(vOd), s(sEx), v(vL16)))
    stamp(6)
    wb(vm.need(('st', 10)), False)
    wb(None, False)
    stamp(7)
    prev = []
    def outreg(t): return TACC[t & 1] if t in (0, 19) else stash(t + 1)
    def store(t):
        o = outreg(t)
        l = []
        for hh in range(2):
            l.append(['s_add_u32 %s, %s, %d' % (s(sT0), s(sSt), 8192 * t + 1024 * hh),
                      's_mov_b64 exec, %s' % s(sMask, 2),
                      'buffer_store_dwordx4 %s, %s, %s, %s offen%s' % (v(o + 4 * hh, 4), v(vL16), s(sP, 4), s(sT0), cfg.st_pol),
                      's_mov_b64 exec, -1'])
        return l
    def unpack(t):
        acc = TACC[t & 1]; sr = stash(t); un = []
        for k in list(range(4, 8)) + list(range(0, 4)):
            un.append('v_lshlrev_b32 %s, 16, %s' % (v(acc + 2 * k), v(sr + k)))
            un.append('v_and_b32 %s, 0xffff0000, %s' % (v(acc + 2 * k + 1), v(sr + k)))
        return un
    carry = {}
    nst = 1
    for u in range(20):
        reset = True
        if u % 2 == 0 and u > 0: wb(vm.need(('st', 10 + u // 2)))
        elif u > 0: reset = False
        fill = dict(carry); carry = {}
        if u >= 1:
            pk = pack_to(outreg(u - 1), TACC[(u - 1) & 1])
            un = unpack(u + 1) if u + 1 < 20 else [None] * 0
            fill = merge(fill, {5: pk[0:4], 6: pk[4:8], 9: un[0:4], 10: un[4:8], 11: un[8:12]})
            carry = {0: un[12:16]}
            if u == 1:
                sl = store(0); fill = merge(fill, {6: sl[0], 8: sl[1]}); vm.add('store', 2)
            gaps = [1, 3, 7, 10, 2, 4]; gi = 0
            cnt = 0
            while u >= cfg.st_delay and nst <= u - 2 and cnt < cfg.st_rate:
                sl = store(nst)
                fill = merge(fill, {gaps[gi]: sl[0], gaps[gi + 1]: sl[1]}); gi += 2
                vm.add('store', 2); nst += 1; cnt += 1
        last = 8 if u == 0 else 11
        if u < 19: fill = merge(fill, {last: [next_addr(20 + u + 1)]})
        extra = None
        if u == 0:
            extra = lambda ss: 'ds_read_b128 %s, %s offset:%d' % (v(QF + 4 * ss, 4), v(vOd), 1024 * ss)
        prev = pipe_step(A, untag(prev) if reset else prev, o_frags(TACC[u & 1], False, extra), fill, reset=reset, tagp='t%d' % u)
    A('s_waitcnt lgkmcnt(0)')
    for _, m in prev: A(m)
    while nst <= 18:
        for l in store(nst):
            for t in l: A(t)
        nst += 1
    A('s_nop 4')
    for t in pack_to(outreg(19), TACC[1]): A(t)
    for l in store(19):
        for t in l: A(t)
    checks.append(('g1 oproj', abody[-40:] + A.lines[m5:]))
    stamp(8)
    A('s_branch L_fin')
    A('L_g2tail:')
    m6 = A.mark()
    vm = Vm([('kv', p) for p in range(64, 70) for _ in range(3)])
    attn_end(1, vm)
    stamp(5); stamp(6)
    wb()
    stamp(7)
    for j in range(18 if cfg.early16 else 16, 20):
        for i in range(6):
            for t in st_load(j, i, stg[j] + 4 * i): A(t)
        vm.add(('st', j), 6)
    A('v_add_u32 %s, %s, %s' % (v(vOa), s(sW6k), v(vL16)))
    for j in range(10, 19):
        if 14 <= j + 3 <= 19:
            A('v_add_u32 %s, %d, %s' % (v(vOr), st_slot(j + 3), v(vOa)))
            A('s_waitcnt vmcnt(%d)' % vm.need(('st', j + 3)))
            for i in range(6): A('ds_write_b128 %s, %s offset:%d' % (v(vOr), v(stg[j + 3] + 4 * i, 4), 1024 * i))
        wb()
    checks.append(('g2 tail', abody[-40:] + A.lines[m6:]))
    stamp(8)
    A('L_fin:')
    if cfg.stamp:
        stamp(9)
        A('s_waitcnt vmcnt(0)')
        stamp(10); stamp(12, True)
        A('s_mov_b32 %s, s14' % s(sP)); A('s_mov_b32 %s, s15' % s(sP + 1)); A('s_mov_b32 %s, 402653184' % s(sP + 2))
        A('s_lshl_b32 %s, s2, 3' % s(sT0)); A('s_add_u32 %s, %s, %s' % (s(sT0), s(sT0), s(sW8)))
        A('s_lshl_b32 %s, %s, 7' % (s(sT0), s(sT0))); A('s_add_u32 %s, %s, %d' % (s(sT0), s(sT0), 64 << 20))
        if cfg.stamp == 3:
            A('s_lshl_b32 %s, s2, 3' % s(sT1)); A('s_add_u32 %s, %s, %s' % (s(sT1), s(sT1), s(sW8)))
            A('s_lshl_b32 %s, %s, 11' % (s(sT1), s(sT1))); A('s_add_u32 %s, %s, %d' % (s(sT1), s(sT1), 65 << 20))
            A('v_lshrrev_b32 v1, 2, %s' % v(vL16))
            for i in range(4):
                A('buffer_store_dword v%d, v1, %s, %s offen offset:%d' % (252 + i, s(sP, 4), s(sT1), 256 * i))
        A('v_mov_b32 v1, 0')
        A('s_mov_b64 exec, 1')
        for i in range(26):
            A('v_mov_b32 v0, %s' % s(76 + i))
            A('buffer_store_dword v0, v1, %s, %s offen offset:%d' % (s(sP, 4), s(sT0), 4 * i))
    A('L_end:')
    A('s_endpgm')
    A.trace = False
    for tag in rare_tags:
        m8 = A.mark()
        A('L_rare_%s:' % tag)
        A('v_mov_b32 %s, %s' % (v(vT1), v(vT0)))
        A('s_nop 1')
        A('v_permlane32_swap_b32 %s, %s' % (v(vT0), v(vT1)))
        A('v_max3_f32 %s, %s, %s, %s' % (v(vT0), v(vT0), v(vT1), v(vMref)))
        A('v_sub_f32 %s, %s, %s' % (v(vT1), v(vMref), v(vT0)))
        A('v_mul_f32 %s, %s, %s' % (v(vT1), s(sC), v(vT1)))
        A('v_exp_f32 %s, %s' % (v(vF), v(vT1)))
        A('v_mov_b32 %s, %s' % (v(vMref), v(vT0)))
        A('v_mul_f32 %s, %s, %s' % (v(vMc), s(sC), v(vT0)))
        A('v_add_f32 %s, %s, %s' % (v(vMthr), s(sTc), v(vT0)))
        A('v_mul_f32 %s, %s, %s' % (v(vL0), v(vL0), v(vF)))
        A('v_mul_f32 %s, %s, %s' % (v(vL1), v(vL1), v(vF)))
        A('v_mov_b32 %s, %s' % (v(vF + 1), v(vF)))
        A('s_mov_b32 %s, 1' % s(sFlag))
        A('s_branch L_ret_%s' % tag)
        checks.append(('rare', A.lines[m8:]))
    for tag in resc_tags:
        A('L_resc_%s:' % tag)
        A('s_nop 15')
        for i in range(48): A('v_pk_mul_f32 %s, %s, %s' % (v(ACC + 2 * i, 2), v(ACC + 2 * i, 2), v(vF, 2)))
        A('s_mov_b32 %s, 0' % s(sFlag))
        A('s_nop 1')
        A('s_branch L_rret_%s' % tag)
    A('.globl mha_k2_kernel'); A('.p2align 8'); A('.type mha_k2_kernel,@function'); A('mha_k2_kernel:')
    m9 = A.mark()
    A('s_cmp_ge_u32 s2, 256'); A('s_cbranch_scc1 L_end2')
    A('s_load_dwordx2 s[4:5], s[0:1], 40')
    A('s_load_dwordx2 s[8:9], s[0:1], 56')
    A('v_readfirstlane_b32 s20, v0')
    A('v_and_b32 v2, 63, v0')
    A('s_lshr_b32 s20, s20, 6')
    A('s_lshr_b32 s13, s2, 4')
    A('s_and_b32 s14, s2, 15'); A('s_mul_i32 s14, s14, 5'); A('s_add_u32 s14, s14, s20')
    A('s_and_b32 s21, s14, 3')
    A('s_lshr_b32 s22, s14, 2')
    A('v_lshlrev_b32 v3, 4, v2')
    A('v_and_b32 v4, 31, v2')
    A('s_lshl_b32 s21, s21, 5')
    A('v_add_u32 v4, s21, v4')
    A('v_cmp_gt_u32 vcc, 112, v4')
    A('v_mul_u32_u24 v5, 1280, v4')
    A('v_lshrrev_b32 v6, 5, v2')
    A('v_lshl_add_u32 v5, v6, 5, v5')
    A('s_mul_i32 s15, s13, %d' % (16 * 163840))
    A('s_lshl_b32 s16, s14, 11'); A('s_add_u32 s15, s15, s16')
    A('s_mul_i32 s17, s13, 143360'); A('s_lshl_b32 s16, s22, 6'); A('s_add_u32 s17, s17, s16')
    A('s_mov_b32 s6, 2293760'); A('s_mov_b32 s7, 0x20000')
    A('s_mov_b32 s10, %d' % (256 * 163840)); A('s_mov_b32 s11, 0x20000')
    A('s_and_saveexec_b64 s[18:19], vcc')
    A('s_waitcnt lgkmcnt(0)')
    for p in range(16):
        A('buffer_load_dwordx4 %s, v3, s[8:11], s15 offen%s' % (v(32 + 8 * p, 4), cfg.r_pol))
        A('buffer_load_dwordx4 %s, v3, s[8:11], s15 offen offset:1024%s' % (v(36 + 8 * p, 4), cfg.r_pol))
        if p < 15: A('s_add_u32 s15, s15, 163840')
    for p in range(16):
        A('s_waitcnt vmcnt(%d)' % (2 * (15 - p)))
        for k in range(8):
            src = 32 + 8 * p + k
            if p == 0:
                A('v_lshlrev_b32 %s, 16, %s' % (v(8 + 2 * k), v(src)))
                A('v_and_b32 %s, 0xffff0000, %s' % (v(9 + 2 * k), v(src)))
            else:
                tt = 24 + 2 * (k & 1)
                A('v_lshlrev_b32 %s, 16, %s' % (v(tt), v(src)))
                A('v_and_b32 %s, 0xffff0000, %s' % (v(tt + 1), v(src)))
                A('v_pk_add_f32 %s, %s, %s' % (v(8 + 2 * k, 2), v(8 + 2 * k, 2), v(tt, 2)))
    for k in range(8): A('v_cvt_pk_bf16_f32 %s, %s, %s' % (v(24 + k), v(8 + 2 * k), v(9 + 2 * k)))
    A('buffer_store_dwordx4 v[24:27], v5, s[4:7], s17 offen')
    A('buffer_store_dwordx4 v[28:31], v5, s[4:7], s17 offen offset:16')
    checks.append(('k2', A.lines[m9:]))
    A('L_end2:')
    A('s_endpgm')
    A('.section .rodata,"a"')
    for name, nv, ns in (('mha_k1_kernel', 256, 102 if cfg.stamp else 80), ('mha_k2_kernel', 160, 24)):
        A('.p2align 6')
        A('.amdhsa_kernel %s' % name)
        A('  .amdhsa_next_free_vgpr %d' % nv); A('  .amdhsa_next_free_sgpr %d' % ns); A('  .amdhsa_accum_offset %d' % nv)
        A('  .amdhsa_group_segment_fixed_size 0'); A('  .amdhsa_kernarg_size 64'); A('  .amdhsa_user_sgpr_count 2')
        A('  .amdhsa_user_sgpr_kernarg_segment_ptr 1'); A('  .amdhsa_system_sgpr_workgroup_id_x 1')
        A('.end_amdhsa_kernel')
    nerr = 0
    for name, seq in checks:
        for e in check_seq(seq, name):
            print(e); nerr += 1
    assert nerr == 0, 'hazards'
    open(fname, 'w').write(A.text())

if __name__ == '__main__':
    cfg = Cfg()
    out = sys.argv[1] if len(sys.argv) > 1 else 'k.s'
    for kv in sys.argv[2:]:
        k, val = kv.split('=', 1)
        cur = getattr(cfg, k)
        setattr(cfg, k, type(cur)(val.replace('_', ' ')) if isinstance(cur, str) else type(cur)(val))
    gen(cfg, out)
```

```python
import sys, math, struct
from asmlib import Asm, check_seq, Ins, Vm

def f32bits(x): return struct.unpack('<I', struct.pack('<f', x))[0]

class Cfg:
    kv_pol = ' nt'
    wq_pol = ''
    wo_pol = ''
    x_pol = ''
    st_pol = ' sc1'
    r_pol = ''
    thr = 8.0
    prio = 0
    kv_at = 0
    codepf = 1
    early16 = 1
    st_delay = 4
    st_rate = 2
    och = 10
    nostore = 0
    noload = 0
    warm = 0
    warm_step = 80
    warm_pol = ''
    kv_every = 3
    stamp = 0
    k2 = 1

TILE = 12288
NKV = 7
WBASE = NKV * TILE
XBASE = WBASE + 4 * TILE
XSLOT = 14336
LDS = 163840
LAG = 3
SS = [WBASE, WBASE + 24576, WBASE + 49152, 49152]

ACC = 0; QF = 96; S = 144; P = 160; AF = 168
vKa = 192; vKr = 196; vVa = 200; vVr = 202; vWa = 204; vXa = 206
vKd = 210; vVd = 213; vWd = 216; vXd = 219
vMref = 224; vMc = 225; vMthr = 226; vL0 = 227; vL1 = 228; vF = 230; vT0 = 232; vT1 = 233
T = 236
vOd = 248; vOa = 249; vOr = 250; vL16 = 251
TACC = [216, 232]
def stash(t):
    i = t - 2
    if i < 12: return 8 * i
    if i < 15: return 144 + 8 * (i - 12)
    return 192 + 8 * (i - 15)
sX = 16; sK = 20; sV = 24; sWq = 28; sWo = 32; sP = 36
sW8 = 40; sG = 41; sWv = 42; sB = 43; sHp = 44; sW3k = 45; sXm0 = 46; sXm1 = 47; sXa1 = 48; sCnt = 49
sWoff = 50; sXoff = 51; sCur = 52; sPrev = 53; sKoff = 54; sVoff = 55; sC = 56; sTc = 57; sFlag = 58
sW6k = 59; sO1 = 60; sSt = 61; sEx = 62; sMask = 64; sT0 = 66; sT1 = 67; sT2 = 68; sHi = 69

def v(i, n=1): return 'v%d' % i if n == 1 else 'v[%d:%d]' % (i, i + n - 1)
def s(i, n=1): return 's%d' % i if n == 1 else 's[%d:%d]' % (i, i + n - 1)
def mfma(d, a, b, c=None):
    return 'v_mfma_f32_32x32x16_bf16 %s, %s, %s, %s' % (v(d, 16), v(a, 4), v(b, 4), v(d, 16) if c is None else c)

def pipe_step(A, prev, frags, fill, lag=LAG, reset=True, tagp='f'):
    n = len(frags)
    if reset: A.lds_reset()
    nxt = 0
    def rd():
        nonlocal nxt
        if nxt < n:
            for t in frags[nxt][0]:
                if t.startswith('ds_'): A.lds(t, (tagp, nxt))
                else: A(t)
            nxt += 1
    for _ in range(5 - len(prev)): rd()
    for t in fill.get(-1, []): emit(A, t)
    seq = list(prev) + [((tagp, j), frags[j][1]) for j in range(n - lag)]
    for k, (tag, m) in enumerate(seq):
        A.wait_lds(tag)
        A(m)
        rd()
        for t in fill.get(k, []): emit(A, t)
    assert nxt == n
    return [((tagp, j), frags[j][1]) for j in range(n - lag, n)]

def untag(prev): return [(None, m) for _, m in prev]

def emit(A, t):
    if isinstance(t, tuple): A.lds(t[0], t[1])
    else: A(t)

def spread(items, gaps):
    tot = sum(c for _, c in items)
    out = {g: [] for g in gaps}
    acc = 0.0
    for t, c in items:
        gi = min(len(gaps) - 1, int((acc + c / 2.0) / tot * len(gaps)))
        out[gaps[gi]].append(t); acc += c
    return out

def merge(*ds):
    out = {}
    for d in ds:
        for k, l in d.items(): out.setdefault(k, []).extend(l)
    return out

def dma(voff, srd, soff, off, pol):
    return 'buffer_load_dwordx4 %s, %s, %s offen offset:%d%s lds' % (v(voff), s(srd, 4), soff, off, pol)

def gen(cfg, fname):
    A = Asm()
    def stamp(i, real=False):
        if cfg.stamp == 5 and i in (1, 3, 4, 7):
            k = {1: 1, 3: 3, 4: 5, 7: 7}[i]
            A('s_memtime %s' % s(76 + 2 * k, 2)); A('s_memrealtime %s' % s(78 + 2 * k, 2)); A('s_waitcnt lgkmcnt(0)')
        elif cfg.stamp and (cfg.stamp < 3 or i in (0, 10, 11, 12)):
            A('%s %s' % ('s_memrealtime' if (real or (cfg.stamp == 2 and i not in (0, 10))) else 's_memtime', s(76 + 2 * i, 2)))
            A('s_waitcnt lgkmcnt(0)')
    def wb(vm=None, lg=True):
        t = []
        if vm is not None: t.append('vmcnt(%d)' % vm)
        if lg: t.append('lgkmcnt(0)')
        if t: A('s_waitcnt ' + ' '.join(t))
        A('s_barrier')
    checks = []
    A('; @launch kernel=mha_k1_kernel grid=(256,1,1) block=(512,1,1) lds=%d' % LDS)
    A('; @launch kernel=mha_k2_kernel grid=(256,1,1) block=(320,1,1) lds=0')
    A('.amdgcn_target "amdgcn-amd-amdhsa--gfx950"')
    A('.text'); A('.globl mha_k1_kernel'); A('.p2align 8'); A('.type mha_k1_kernel,@function'); A('mha_k1_kernel:')
    m0 = A.mark()
    A('s_cmp_ge_u32 s2, 256'); A('s_cbranch_scc1 L_end')
    A('s_load_dwordx8 s[4:11], s[0:1], 0')
    A('s_load_dwordx2 s[12:13], s[0:1], 32')
    A('s_load_dwordx2 s[14:15], s[0:1], 56')
    stamp(0); stamp(11, True)
    if cfg.stamp == 3:
        A.trace = True
        A('s_mov_b32 s75, 0')
        for i in range(252, 256): A('v_mov_b32 v%d, 0' % i)
    L = T; Hh = T + 1; I16 = T + 2; U = T + 3; a = T + 4; b = T + 5; c = T + 6; d = T + 7; e = T + 8
    A('v_readfirstlane_b32 %s, v0' % s(sW8))
    A('v_and_b32 %s, 63, v0' % v(L))
    A('s_lshr_b32 %s, %s, 6' % (s(sW8), s(sW8)))
    A('s_lshr_b32 %s, %s, 2' % (s(sG), s(sW8)))
    A('s_and_b32 %s, %s, 3' % (s(sWv), s(sW8)))
    A('s_and_b32 %s, s2, 7' % s(sT0))
    A('s_lshr_b32 %s, s2, 3' % s(sT1))
    A('s_lshr_b32 %s, %s, 1' % (s(sB), s(sT1)))
    A('s_and_b32 %s, %s, 1' % (s(sT1), s(sT1)))
    A('s_lshl_b32 %s, %s, 1' % (s(sHp), s(sT0)))
    A('s_add_u32 %s, %s, %s' % (s(sHp), s(sHp), s(sT1)))
    A('s_mul_i32 %s, %s, 3072' % (s(sW3k), s(sWv)))
    A('s_cmp_eq_u32 %s, 3' % s(sWv))
    A('s_cselect_b32 %s, 0, 2048' % s(sXm1)); A('s_cselect_b32 %s, 0, 20480' % s(sXa1))
    A('s_cselect_b32 %s, 15, 31' % s(sHi))
    A('s_cselect_b32 %s, 0xffff, -1' % s(sMask)); A('s_mov_b32 %s, %s' % (s(sMask + 1), s(sMask)))
    A('s_lshl_b32 %s, %s, 12' % (s(sXm0), s(sWv))); A('s_add_u32 %s, %s, %d' % (s(sXm0), s(sXm0), XBASE))
    A('s_add_u32 %s, %s, %s' % (s(sXm1), s(sXm1), s(sXm0)))
    A('s_mul_i32 %s, %s, %d' % (s(sT0), s(sWv), 32 * 1280))
    A('v_lshrrev_b32 %s, 3, %s' % (v(a), v(L)))
    A('v_lshrrev_b32 %s, 4, %s' % (v(b), v(L)))
    A('v_and_b32 %s, 7, %s' % (v(c), v(L)))
    A('v_xor_b32 %s, %s, %s' % (v(b), v(b), v(c)))
    A('v_mul_u32_u24 %s, 1280, %s' % (v(a), v(a)))
    A('v_add_u32 %s, %s, %s' % (v(a), s(sT0), v(a)))
    A('v_lshl_add_u32 %s, %s, 4, %s' % (v(vXd), v(b), v(a)))
    A('v_xor_b32 %s, 4, %s' % (v(b), v(b)))
    A('v_lshl_add_u32 %s, %s, 4, %s' % (v(vXd + 1), v(b), v(a)))
    A('v_add_u32 %s, %d, %s' % (v(vXd + 1), 8 * 1280 - 1024, v(vXd + 1)))
    A('s_lshl_b32 %s, %s, 3' % (s(sT0), s(sWv)))
    for p in range(3):
        A('v_add_u32 %s, %d, %s' % (v(a), 64 * p, v(L)))
        A('v_mul_u32_u24 %s, 171, %s' % (v(b), v(a)))
        A('v_lshrrev_b32 %s, 12, %s' % (v(b), v(b)))
        A('v_mul_u32_u24 %s, 24, %s' % (v(c), v(b)))
        A('v_sub_u32 %s, %s, %s' % (v(vVd + p), v(a), v(c)))
        A('v_add_u32 %s, %s, %s' % (v(vKd + p), s(sT0), v(b)))
        A('v_lshlrev_b32 %s, 1, %s' % (v(d), v(b)))
        A('v_and_b32 %s, 4, %s' % (v(d), v(d)))
        A('v_xor_b32 %s, %s, %s' % (v(d), v(vVd + p), v(d)))
        A('v_mul_u32_u24 %s, 12288, %s' % (v(e), v(vKd + p)))
        A('v_lshl_add_u32 %s, %s, 4, %s' % (v(d), v(d), v(e)))
        A('v_subrev_u32 %s, %d, %s' % (v(vWd + p), 1024 * p, v(d)))
    A('s_mul_i32 %s, %s, 143360' % (s(sT0), s(sB)))
    A('s_lshl_b32 %s, %s, 1' % (s(sT1), s(sHp))); A('s_add_u32 %s, %s, %s' % (s(sT1), s(sT1), s(sG)))
    A('s_mul_i32 %s, %s, 384' % (s(sT1), s(sT1)))
    A('s_mov_b32 %s, 143360' % s(sX + 2)); A('s_mov_b32 %s, 0x20000' % s(sX + 3))
    A('s_sub_u32 %s, 7864320, %s' % (s(sWq + 2), s(sT1))); A('s_mov_b32 %s, 0x20000' % s(sWq + 3))
    A('s_mov_b32 %s, 0' % s(sWoff)); A('s_mov_b32 %s, 0' % s(sXoff))
    A('s_waitcnt lgkmcnt(0)')
    A('s_add_u32 %s, s4, %s' % (s(sX), s(sT0))); A('s_addc_u32 %s, s5, 0' % s(sX + 1))
    A('s_add_u32 %s, s10, %s' % (s(sWq), s(sT1))); A('s_addc_u32 %s, s11, 0' % s(sWq + 1))
    def x_issue(slot):
        return ['s_add_u32 m0, %s, %d' % (s(sXm0), slot * XSLOT),
                's_add_u32 %s, %s, %s' % (s(sT1), s(sXoff), s(sXa1)),
                dma(vXd, sX, s(sXoff), 0, cfg.x_pol), dma(vXd + 1, sX, s(sXoff), 1024, cfg.x_pol),
                's_add_u32 m0, %s, %d' % (s(sXm1), slot * XSLOT),
                's_add_u32 %s, %s, 128' % (s(sXoff), s(sXoff)),
                dma(vXd, sX, s(sT1), 0, cfg.x_pol), dma(vXd + 1, sX, s(sT1), 1024, cfg.x_pol),
                's_cmp_ge_u32 %s, 1280' % s(sXoff),
                's_cselect_b32 %s, 0x40000000, %s' % (s(sXoff), s(sXoff))]
    def w_issue(slot):
        return ['s_add_u32 m0, %s, %d' % (s(sW3k), WBASE + slot * TILE), 's_nop 0',
                dma(vWd, sWq, s(sWoff), 0, cfg.wq_pol), dma(vWd + 1, sWq, s(sWoff), 1024, cfg.wq_pol),
                dma(vWd + 2, sWq, s(sWoff), 2048, cfg.wq_pol),
                's_add_u32 %s, %s, %d' % (s(sWoff), s(sWoff), 32 * 12288)]
    def x_reads(slot):
        return [('ds_read_b128 %s, %s offset:%d' % (v(QF + 16 * slot + 4 * s3, 4), v(vXa + s3), slot * XSLOT), 'x') for s3 in range(4)]
    qpro = [x_issue(0), w_issue(0), x_issue(1), w_issue(1), w_issue(2)]
    A('s_cmp_eq_u32 %s, 0' % s(sG)); A('s_cbranch_scc0 L_p0')
    for l in qpro[:3]:
        for t in l: A(t)
    A('s_branch L_p1')
    A('L_p0:')
    if cfg.codepf:
        A('s_getpc_b64 %s' % s(70, 2))
        A('L_pc:')
        A('s_and_b32 %s, %s, 7' % (s(sT1), s(sB))); A('s_lshl_b32 %s, %s, 2' % (s(sT1), s(sT1)))
        A('s_add_u32 %s, %s, %s' % (s(sT1), s(sT1), s(sWv)))
        A('s_mul_i32 %s, %s, CODE_SHARE-0' % (s(sT1), s(sT1)))
        A('v_lshlrev_b32 %s, 7, %s' % (v(b), v(L)))
        A('v_min_u32 %s, CODE_SHARE-128, %s' % (v(b), v(b)))
        A('v_add_u32 %s, %s, %s' % (v(b), s(sT1), v(b)))
        A('v_min_u32 %s, CODE_LAST-0, %s' % (v(b), v(b)))
        A('global_load_dword %s, %s, %s' % (v(S + 1), v(b), s(70, 2)))
    if cfg.warm & 2:
        A('s_and_b32 %s, %s, 1' % (s(sT1), s(sHp))); A('s_lshl_b32 %s, %s, 2' % (s(sT1), s(sT1)))
        A('s_add_u32 %s, %s, %s' % (s(sT1), s(sT1), s(sWv)))
        A('s_mul_i32 %s, %s, %d' % (s(sT1), s(sT1), 14 * 1280))
        A('v_lshlrev_b32 %s, 7, %s' % (v(b), v(L)))
        A('v_min_u32 %s, %d, %s' % (v(c), 11 * 128, v(b)))
        A('buffer_load_dword %s, %s, %s, %s offen%s' % (v(S), v(b), s(sX, 4), s(sT1), cfg.x_pol))
        A('s_add_u32 %s, %s, 8192' % (s(sT1), s(sT1)))
        A('buffer_load_dword %s, %s, %s, %s offen%s' % (v(S), v(b), s(sX, 4), s(sT1), cfg.x_pol))
        A('s_add_u32 %s, %s, 8192' % (s(sT1), s(sT1)))
        A('buffer_load_dword %s, %s, %s, %s offen%s' % (v(S), v(c), s(sX, 4), s(sT1), cfg.x_pol))
    if cfg.warm & 4:
        A('s_mul_i32 %s, %s, 8960' % (s(sT1), s(sHp)))
        A('s_mul_i32 %s, %s, 2304' % (s(sT2), s(sWv))); A('s_add_u32 %s, %s, %s' % (s(sT1), s(sT1), s(sT2)))
        A('v_min_u32 %s, 17, %s' % (v(b), v(L)))
        A('v_lshlrev_b32 %s, 7, %s' % (v(b), v(b)))
        A('buffer_load_dword %s, %s, %s, %s offen%s' % (v(S), v(b), s(sX, 4), s(sT1), cfg.x_pol))
    if cfg.warm & 1:
        A('s_lshl_b32 %s, %s, 2' % (s(sT1), s(sB))); A('s_add_u32 %s, %s, %s' % (s(sT1), s(sT1), s(sWv)))
        A('s_mul_i32 %s, %s, %d' % (s(sT1), s(sT1), 10 * 12288))
        A('s_mul_i32 %s, %s, 768' % (s(sT2), s(sHp))); A('s_add_u32 %s, %s, %s' % (s(sT1), s(sT1), s(sT2)))
        A('s_mov_b32 %s, s10' % s(sWo)); A('s_mov_b32 %s, s11' % s(sWo + 1))
        A('s_mov_b32 %s, 7864320' % s(sWo + 2)); A('s_mov_b32 %s, 0x20000' % s(sWo + 3))
        A('v_min_u32 %s, 59, %s' % (v(a), v(L)))
        A('v_mul_u32_u24 %s, 43, %s' % (v(b), v(a)))
        A('v_lshrrev_b32 %s, 8, %s' % (v(b), v(b)))
        A('v_mul_u32_u24 %s, %d, %s' % (v(b), 12288 - 768, v(b)))
        A('v_lshl_add_u32 %s, %s, 7, %s' % (v(b), v(a), v(b)))
        A('buffer_load_dword %s, %s, %s, %s offen%s' % (v(S), v(b), s(sWo, 4), s(sT1), cfg.warm_pol))
    A('L_p1:')
    A('s_lshl_b32 %s, %s, 4' % (s(sT0), s(sB))); A('s_add_u32 %s, %s, %s' % (s(sT0), s(sT0), s(sHp)))
    A('s_mul_i32 %s, %s, 393216' % (s(sT1), s(sT0)))
    A('s_add_u32 %s, s6, %s' % (s(sK), s(sT1))); A('s_addc_u32 %s, s7, 0' % s(sK + 1))
    A('s_mov_b32 %s, 393216' % s(sK + 2)); A('s_mov_b32 %s, 0x20000' % s(sK + 3))
    A('s_add_u32 %s, s8, %s' % (s(sV), s(sT1))); A('s_addc_u32 %s, s9, 0' % s(sV + 1))
    A('s_mov_b32 %s, 393216' % s(sV + 2)); A('s_mov_b32 %s, 0x20000' % s(sV + 3))
    A('s_mul_i32 %s, %s, 163840' % (s(sT1), s(sT0)))
    A('s_add_u32 %s, s14, %s' % (s(sP), s(sT1))); A('s_addc_u32 %s, s15, 0' % s(sP + 1))
    A('s_mov_b32 %s, 163840' % s(sP + 2)); A('s_mov_b32 %s, 0x20000' % s(sP + 3))
    A('s_mov_b32 %s, s12' % s(sWo)); A('s_mov_b32 %s, s13' % s(sWo + 1))
    A('s_mov_b32 %s, 7864320' % s(sWo + 2)); A('s_mov_b32 %s, 0x20000' % s(sWo + 3))
    A('s_mul_i32 %s, %s, 491520' % (s(sO1), s(sHp)))
    A('s_mul_i32 %s, %s, 6144' % (s(sW6k), s(sWv)))
    A('s_mul_i32 %s, %s, %d' % (s(sEx), s(sWv), TILE))
    A('s_lshl_b32 %s, %s, 11' % (s(sSt), s(sWv)))
    for p in range(3):
        A('v_mul_u32_u24 %s, 384, %s' % (v(e), v(vKd + p)))
        A('v_subrev_u32 %s, %d, %s' % (v(e), 1024 * p, v(e)))
        A('v_bfe_u32 %s, %s, 1, 3' % (v(d), v(vKd + p)))
        A('v_lshlrev_b32 %s, 2, %s' % (v(c), v(d)))
        A('v_and_b32 %s, 4, %s' % (v(c), v(c)))
        A('v_xor_b32 %s, %s, %s' % (v(d), v(vVd + p), v(d)))
        A('v_xor_b32 %s, %s, %s' % (v(c), v(vVd + p), v(c)))
        A('v_lshl_add_u32 %s, %s, 4, %s' % (v(vKd + p), v(d), v(e)))
        A('v_lshl_add_u32 %s, %s, 4, %s' % (v(vVd + p), v(c), v(e)))
    A('v_lshrrev_b32 %s, 5, %s' % (v(Hh), v(L)))
    A('v_and_b32 %s, 15, %s' % (v(I16), v(L)))
    A('v_bfe_u32 %s, %s, 4, 1' % (v(U), v(L)))
    A('v_and_b32 %s, 31, %s' % (v(a), v(L)))
    A('v_bfe_u32 %s, %s, 1, 3' % (v(b), v(a)))
    A('v_xor_b32 %s, %s, %s' % (v(b), v(b), v(Hh)))
    A('v_mul_u32_u24 %s, 384, %s' % (v(a), v(a)))
    for s3 in range(4):
        A('v_xor_b32 %s, %d, %s' % (v(c), 2 * s3, v(b)))
        A('v_lshl_add_u32 %s, %s, 4, %s' % (v(vKa + s3), v(c), v(a)))
    A('v_and_b32 %s, %s, %s' % (v(a), s(sHi), v(L)))
    A('v_lshlrev_b32 %s, 7, %s' % (v(a), v(a)))
    A('v_add_u32 %s, %s, %s' % (v(a), s(sXm0), v(a)))
    for s3 in range(4):
        A('v_xor_b32 %s, %d, %s' % (v(c), 2 * s3, v(b)))
        A('v_lshl_add_u32 %s, %s, 4, %s' % (v(vXa + s3), v(c), v(a)))
    A('v_lshrrev_b32 %s, 2, %s' % (v(a), v(I16)))
    A('v_lshl_add_u32 %s, %s, 2, %s' % (v(b), v(Hh), v(a)))
    A('v_mul_u32_u24 %s, 384, %s' % (v(c), v(b)))
    A('v_lshl_add_u32 %s, %s, 5, %s' % (v(c), v(U), v(c)))
    A('v_and_b32 %s, 3, %s' % (v(d), v(I16)))
    A('v_lshl_add_u32 %s, %s, 3, %s' % (v(c), v(d), v(c)))
    A('v_lshrrev_b32 %s, 3, %s' % (v(e), v(I16)))
    A('v_lshl_add_u32 %s, %s, 6, %s' % (v(vVa), v(e), v(c)))
    A('v_xor_b32 %s, 64, %s' % (v(vVa + 1), v(vVa)))
    A('v_lshlrev_b32 %s, 7, %s' % (v(c), v(b)))
    A('v_lshl_add_u32 %s, %s, 6, %s' % (v(c), v(e), v(c)))
    A('v_lshl_add_u32 %s, %s, 4, %s' % (v(c), v(U), v(c)))
    A('v_and_b32 %s, 1, %s' % (v(d), v(I16)))
    A('v_lshl_add_u32 %s, %s, 5, %s' % (v(c), v(d), v(c)))
    A('v_bfe_u32 %s, %s, 1, 1' % (v(b), v(I16)))
    A('v_lshl_add_u32 %s, %s, 3, %s' % (v(vOa), v(b), v(c)))
    A('v_lshl_add_u32 %s, %s, 3, %s' % (v(a), v(Hh), v(a)))
    A('v_mul_u32_u24 %s, 384, %s' % (v(c), v(a)))
    A('v_lshl_add_u32 %s, %s, 5, %s' % (v(c), v(U), v(c)))
    A('v_lshl_add_u32 %s, %s, 4, %s' % (v(c), v(d), v(c)))
    A('v_lshl_add_u32 %s, %s, 3, %s' % (v(c), v(b), v(c)))
    A('v_add_u32 %s, %d, %s' % (v(c), WBASE, v(c)))
    A('v_lshl_add_u32 %s, %s, 6, %s' % (v(vWa), v(e), v(c)))
    A('v_xor_b32 %s, 64, %s' % (v(vWa + 1), v(vWa)))
    A('s_mul_i32 %s, %s, %d' % (s(sT0), s(sWv), 48 * 1280))
    A('v_lshrrev_b32 %s, 3, %s' % (v(a), v(L)))
    A('v_mul_u32_u24 %s, 1280, %s' % (v(a), v(a)))
    A('v_and_b32 %s, 7, %s' % (v(b), v(L)))
    A('v_lshlrev_b32 %s, 2, %s' % (v(c), v(U)))
    A('v_xor_b32 %s, %s, %s' % (v(b), v(b), v(c)))
    A('v_lshlrev_b32 %s, 4, %s' % (v(b), v(b)))
    A('v_add3_u32 %s, %s, %s, %s' % (v(vOd), v(a), v(b), s(sT0)))
    A('v_lshlrev_b32 %s, 4, %s' % (v(vL16), v(L)))
    cc = math.log2(math.e) / math.sqrt(192.0)
    A('s_mov_b32 %s, 0x%08x' % (s(sC), f32bits(cc)))
    A('s_mov_b32 %s, 0x%08x' % (s(sTc), f32bits(cfg.thr / cc)))
    A('s_mov_b32 %s, 0' % s(sFlag))
    A('s_mul_i32 %s, %s, %d' % (s(sCur), s(sG), (32 % NKV) * TILE))
    A('s_mul_i32 %s, %s, %d' % (s(sPrev), s(sG), (6 - 31 % NKV) * TILE))
    A('s_sub_u32 %s, %d, %s' % (s(sPrev), 6 * TILE, s(sPrev)))
    A('s_mul_i32 %s, %s, %d' % (s(sT0), s(sG), 16 * TILE))
    A('s_add_u32 %s, %s, %d' % (s(sKoff), s(sT0), 3 * TILE))
    A('s_add_u32 %s, %s, %d' % (s(sVoff), s(sT0), 2 * TILE))
    for i in list(range(ACC, ACC + 96)) + list(range(QF + 28, QF + 32)) + list(range(AF + 12, AF + 24)): A('v_mov_b32 %s, 0' % v(i))
    def q_frags(r):
        fr = []
        for ss in range(2):
            for dt in range(6):
                j = ss * 6 + dt; buf = AF + 4 * (j % 6)
                rds = ['ds_read_b64_tr_b16 %s, %s offset:%d' % (v(buf + 2 * vv, 2), v(vWa + (dt & 1)),
                        r * TILE + (16 * ss + 4 * vv) * 384 + 128 * (dt >> 1)) for vv in range(2)]
                fr.append((rds, mfma(ACC + 16 * dt, buf, QF + 16 * (r >> 1) + 4 * ((r & 1) * 2 + ss))))
        return fr
    qlag = [(None, f[1]) for f in q_frags(3)[-LAG:]]
    A('s_mov_b32 %s, 0' % s(sCnt))
    A('s_cmp_eq_u32 %s, 0' % s(sG)); A('s_cbranch_scc0 L_g2a')
    for l in qpro[3:]:
        for t in l: A(t)
    stamp(1)
    A('s_waitcnt vmcnt(13)')
    for t in x_reads(0): A(t[0])
    checks.append(('prologue', A.lines[m0:]))
    def q1_iter(final):
        prev = qlag
        for r in range(4):
            wb(10 if not final else [10, 6, 3, 0][r])
            fill = {}
            if r % 2 == 0:
                xi = x_issue(r >> 1); wi = w_issue((r + 3) & 3)
                if not final: fill = {0: xi[0:3], 1: xi[3:4], 2: xi[4:7], 3: xi[7:8], 4: wi[0:3], 5: wi[3:4], 6: wi[4:6]}
                elif r == 0: fill = {0: wi[0:3], 1: wi[3:4], 2: wi[4:6]}
            else:
                wi = w_issue((r + 3) & 3); xr = x_reads(((r + 1) >> 1) & 1)
                if not final: fill = {0: wi[0:3], 1: wi[3:4], 2: wi[4:6]}
                if not final or r == 1: fill = merge(fill, {5: xr[0:1], 6: xr[1:2], 7: xr[2:3], 8: xr[3:4]})
            prev = untag(pipe_step(A, prev, q_frags(r), fill))
    A('L_qloop:')
    m1 = A.mark()
    q1_iter(False)
    A('s_add_u32 %s, %s, 1' % (s(sCnt), s(sCnt))); A('s_cmp_lt_u32 %s, 4' % s(sCnt)); A('s_cbranch_scc1 L_qloop')
    body = A.lines[m1:]
    checks.append(('qloop', body + body))
    m1 = A.mark()
    q1_iter(True)
    A('s_waitcnt lgkmcnt(0)')
    A('s_branch L_qend')
    checks.append(('qloop end', body[-40:] + A.lines[m1:]))
    body = A.lines[m1:]
    A('L_g2a:')
    kv0 = ((sK, vKd, 0, 0), (sK, vKd, 1, 2), (sV, vVd, 0, 3), (sK, vKd, 2, 4), (sV, vVd, 1, 5), (sK, vKd, 3, 6))
    m1 = A.mark()
    for st in range(21):
        wb(13 if st == 20 else None, False)
        for i in range(6):
            if cfg.kv_at + i * cfg.kv_every == st:
                srd, vd, tile, slot = kv0[i]
                A('s_add_u32 m0, %s, %d' % (s(sW3k), slot * TILE))
                A('s_mov_b32 %s, %d' % (s(sT1), tile * TILE))
                for p in range(3): A(dma(vd + p, srd, s(sT1), 1024 * p, cfg.kv_pol))
        for l in {16: [x_issue(0)], 17: [w_issue(0)], 18: [w_issue(1), x_issue(1)], 19: [w_issue(2)]}.get(st, []):
            for t in l: A(t)
    assert cfg.kv_at + 5 * cfg.kv_every < 16
    stamp(1)
    for t in x_reads(0): A(t[0])
    checks.append(('g2 pro', A.lines[m1:]))
    A('L_q2loop:')
    m1 = A.mark()
    allf = q_frags(0) + q_frags(1) + q_frags(2) + q_frags(3)
    prev = qlag
    for cch in range(6):
        wb(10)
        if cch in (1, 4):
            xi = x_issue(0 if cch == 1 else 1)
            fill = {0: xi[0:3], 1: xi[3:4], 2: xi[4:7], 3: xi[7:10]}
        else:
            wi = w_issue({0: 3, 2: 0, 3: 1, 5: 2}[cch])
            fill = {0: wi[0:3], 1: wi[3:4], 2: wi[4:6]}
        if cch in (2, 5):
            xr = x_reads(1 if cch == 2 else 0)
            fill = merge(fill, {3: xr[0:1], 4: xr[1:2], 5: xr[2:3], 6: xr[3:4]})
        prev = untag(pipe_step(A, prev, allf[8 * cch:8 * cch + 8], fill))
    A('s_add_u32 %s, %s, 1' % (s(sCnt), s(sCnt))); A('s_cmp_lt_u32 %s, 5' % s(sCnt)); A('s_cbranch_scc1 L_q2loop')
    body2 = A.lines[m1:]
    checks.append(('q2loop', body2 + body2))
    wb()
    A('L_qend:')
    m2 = A.mark()
    stamp(2)
    for _, m in qlag: A(m)
    for i in range(4): A('v_add_u32 %s, %s, %s' % (v(vKr + i), s(sCur), v(vKa + i)))
    A('v_mov_b32 %s, 0xff800000' % v(vMref)); A('v_mov_b32 %s, 0xff800000' % v(vMthr)); A('v_mov_b32 %s, 0' % v(vMc))
    A('v_mov_b32 %s, 0' % v(vL0)); A('v_mov_b32 %s, 0' % v(vL1))
    for i in range(4): A('v_mov_b32 %s, 0' % v(P + 4 + i))
    for i in range(48):
        A('v_cvt_pk_bf16_f32 %s, %s, %s' % (v(QF + i), v(ACC + 2 * i), v(ACC + 2 * i + 1)))
    A('L_attn:')
    if cfg.prio: A('s_setprio %d' % cfg.prio)
    def k_frags():
        fr = []
        for ss in range(12):
            buf = AF + 4 * (ss % 6)
            fr.append((['ds_read_b128 %s, %s offset:%d' % (v(buf, 4), v(vKr + (ss & 3)), 128 * (ss >> 2))],
                       mfma(S, buf, QF + 4 * ss, '0' if ss == 0 else None)))
        return fr
    def v_frags():
        fr = []
        for ss in range(2):
            for dt in range(6):
                j = ss * 6 + dt; buf = AF + 4 * (j % 6)
                rds = ['ds_read_b64_tr_b16 %s, %s offset:%d' % (v(buf + 2 * vv, 2), v(vVr + (dt & 1)),
                        (16 * ss + 8 * vv) * 384 + 128 * (dt >> 1)) for vv in range(2)]
                fr.append((rds, mfma(ACC + 16 * dt, buf, P + 4 * ss)))
        return fr
    def kv_issue(srd, vd, soff):
        return ['s_cmp_ge_u32 %s, 393216' % s(soff), 's_cselect_b32 %s, %d, %s' % (s(sT0), TILE, s(sPrev)),
                's_add_u32 m0, %s, %s' % (s(sW3k), s(sT0)), 's_nop 0',
                dma(vd, srd, s(soff), 0, cfg.kv_pol), dma(vd + 1, srd, s(soff), 1024, cfg.kv_pol),
                dma(vd + 2, srd, s(soff), 2048, cfg.kv_pol),
                's_add_u32 %s, %s, %d' % (s(soff), s(soff), TILE)]
    ring_adv = ['s_mov_b32 %s, %s' % (s(sPrev), s(sCur)),
                's_add_u32 %s, %s, %d' % (s(sCur), s(sCur), TILE),
                's_cmp_ge_u32 %s, %d' % (s(sCur), NKV * TILE),
                's_cselect_b32 %s, 0, %s' % (s(sCur), s(sCur))]
    addr_k = ['v_add_u32 %s, %s, %s' % (v(vKr + i), s(sCur), v(vKa + i)) for i in range(4)]
    addr_v = ['v_add_u32 %s, %s, %s' % (v(vVr + i), s(sCur), v(vVa + i)) for i in range(2)]
    def sm_max(tag):
        t0, t1 = v(vT0), v(vT1)
        l = ['v_max3_f32 %s, %s, %s, %s' % (t0, v(S), v(S + 1), v(S + 2)),
             'v_max3_f32 %s, %s, %s, %s' % (t1, v(S + 3), v(S + 4), v(S + 5))]
        for k in range(5):
            tt = t0 if k % 2 == 0 else t1
            l.append('v_max3_f32 %s, %s, %s, %s' % (tt, tt, v(S + 6 + 2 * k), v(S + 7 + 2 * k)))
        l.append('v_max_f32 %s, %s, %s' % (t0, t0, t1))
        l.append('v_cmp_gt_f32 vcc, %s, %s' % (t0, v(vMthr)))
        l.append('s_cbranch_vccnz L_rare_%s' % tag)
        l.append('L_ret_%s:' % tag)
        return l
    def sm_exp():
        it = []
        fma = lambda j: ('v_fma_f32 %s, %s, %s, -%s' % (v(S + j), v(S + j), s(sC), v(vMc)), 1)
        ex = lambda j: ('v_exp_f32 %s, %s' % (v(S + j), v(S + j)), 2)
        ad = lambda j: ('v_add_f32 %s, %s, %s' % (v(vL0 + (j & 1)), v(vL0 + (j & 1)), v(S + j)), 1)
        for j in range(16 + 4):
            if j < 16: it.append(fma(j))
            if 0 <= j - 2 < 16: it.append(ex(j - 2))
            if 0 <= j - 4 < 16: it.append(ad(j - 4))
        return it
    cvt = lambda k: 'v_cvt_pk_bf16_f32 %s, %s, %s' % (v(P + k), v(S + 2 * k), v(S + 2 * k + 1))
    sp = spread(sm_exp(), [5, 6, 7, 8, 9, 10, 11, 100, 101])
    vfill_sm = {g: sp[g] for g in range(5, 12)}
    kfill_sm = {0: sp[100], 1: sp[101]}
    vfill_sm[11] = vfill_sm[11] + [cvt(0), cvt(1), cvt(2), cvt(3)]
    done = ' '.join(t for g in range(5, 12) for t in vfill_sm[g])
    for j in range(8): assert ('v_exp_f32 %s,' % v(S + j)) in done
    def resc(tag):
        return [cvt(4), cvt(5), cvt(6), cvt(7), 's_cmp_lg_u32 %s, 0' % s(sFlag), 's_cbranch_scc1 L_resc_%s' % tag, 'L_rret_%s:' % tag]
    rare_tags = []; resc_tags = []
    wb(0, False)
    stamp(3)
    ki = kv_issue(sK, vKd, sKoff)
    zero_acc = ['v_mov_b32 %s, 0' % v(ACC + i) for i in range(96)]
    fill = {0: ['s_cmp_eq_u32 %s, 0' % s(sG), 's_cbranch_scc1 L_k0skip'] + ki[0:7] + ['L_k0skip:', ki[7]] + ring_adv}
    for g in range(1, 9): fill[g] = zero_acc[(g - 1) * 6:g * 6]
    prev = untag(pipe_step(A, [], k_frags(), fill))
    wb(15)
    for k, (_, m) in enumerate(prev):
        A(m)
        for t in zero_acc[48 + 6 * k:54 + 6 * k]: A(t)
    for t in kv_issue(sV, vVd, sVoff) + ring_adv + addr_k + zero_acc[66:]: A(t)
    for t in sm_max('v0'): A(t)
    rare_tags.append('v0')
    for g in range(5, 12):
        for t in vfill_sm[g]: A(t)
    A('s_mov_b32 %s, 0' % s(sFlag))
    A('s_mov_b32 %s, 0' % s(sCnt))
    checks.append(('q->attn', body[-40:] + A.lines[m2:]))
    pre_loop = A.lines[-40:]
    A('L_aloop:')
    m3 = A.mark()
    pv_lag = [(None, f[1]) for f in v_frags()[-LAG:]]
    wb(15)
    fill = merge(kfill_sm, {2: resc('l'), 3: ki[0:5], 4: ki[5:6], 5: ki[6:8], 6: ring_adv, 7: addr_v})
    resc_tags.append('l')
    prev = untag(pipe_step(A, pv_lag, k_frags(), fill))
    wb(15)
    vi = kv_issue(sV, vVd, sVoff)
    fill = merge({0: vi[0:5], 1: vi[5:6], 2: vi[6:8] + ring_adv, 3: addr_k, 4: sm_max('l')}, vfill_sm)
    rare_tags.append('l')
    prev = untag(pipe_step(A, prev, v_frags(), fill))
    A('s_add_u32 %s, %s, 1' % (s(sCnt), s(sCnt))); A('s_cmp_lt_u32 %s, 15' % s(sCnt)); A('s_cbranch_scc1 L_aloop')
    abody = A.lines[m3:]
    checks.append(('aloop', pre_loop + abody + abody))
    stamp(4)
    lagpv = prev
    def st_slot(j): return SS[j % 3] if j <= 12 else SS[[3, 1, 2, 0][(j - 13) % 4]]
    def st_issue(j, part, n=3):
        off = ((j + 1) % 10) * 128 if j < 10 else 245760 + (j - 10) * 128
        off += part * n * 10240
        l = ['s_add_u32 m0, %s, %d' % (s(sW6k), st_slot(j) + part * n * 1024)]
        for i in range(n):
            l += ['s_add_u32 %s, %s, %d' % (s(sT0 + i), s(sO1), off + i * 9216), dma(vOd, sWo, s(sT0 + i), 1024 * i, cfg.wo_pol)]
        return l
    def st_load(j, i, dst):
        off = 245760 + (j - 10) * 128 + i * 10240
        return ['s_add_u32 %s, %s, %d' % (s(sT1), s(sO1), off),
                'buffer_load_dwordx4 %s, %s, %s, %s offen%s' % (v(dst, 4), v(vOd), s(sWo, 4), s(sT1), cfg.wo_pol)]
    stg = {14: 96, 15: 120, 16: 144, 17: 168, 18: 192, 19: 216}
    def attn_end(g, vm):
        base = 32 if g == 0 else 64
        if g == 0: wb(vm.need(('kv', base)))
        else: A('s_waitcnt lgkmcnt(0)')
        for k, (_, m) in enumerate(lagpv):
            A(m)
            for t in kfill_sm.get(k, []): A(t)
        for t in resc('e%d' % g)[4:] + ring_adv + addr_v: A(t)
        resc_tags.append('e%d' % g)
        for t in ['v_add_f32 %s, %s, %s' % (v(vT0), v(vL0), v(vL1)),
                  'v_mov_b32 %s, %s' % (v(vT1), v(vT0)), 's_nop 1',
                  'v_permlane32_swap_b32 %s, %s' % (v(vT0), v(vT1)),
                  'v_add_f32 %s, %s, %s' % (v(vT0), v(vT0), v(vT1)),
                  'v_rcp_f32 %s, %s' % (v(vF), v(vT0)),
                  'v_add_u32 %s, %s, %s' % (v(vOr), s(sEx), v(vL16)),
                  'v_mov_b32 %s, %s' % (v(vF + 1), v(vF))]: A(t)
        ld = []
        if g == 0: ld = [st_issue(0, 0)]; vm.add(('st', 0), 3)
        else: ld = [st_load(14, i, stg[14] + 4 * i) for i in range(6)]; vm.add(('st', 14), 6)
        for i in range(8): A('v_pk_mul_f32 %s, %s, %s' % (v(S + 2 * i, 2), v(S + 2 * i, 2), v(vF, 2)))
        for k in range(8): A(cvt(k))
        for i in range(48):
            A('v_pk_mul_f32 %s, %s, %s' % (v(ACC + 2 * i, 2), v(ACC + 2 * i, 2), v(vF, 2)))
            if i % 8 == 0 and i // 8 < len(ld):
                for t in ld[i // 8]: A(t)
        wb(vm.need(('kv', base + 1)), False)
        if g == 0:
            ii = st_issue(0, 1); fill = {3: ii[0:3], 4: ii[3:5], 5: ii[5:7]}
            vm.add(('st', 0), 3)
        else:
            fill = {2 + i: st_load(15, i, stg[15] + 4 * i) for i in range(6)}
            vm.add(('st', 15), 6)
        prev = untag(pipe_step(A, [], v_frags(), fill))
        wb(vm.need(('kv', base + 2)) if g == 0 else vm.need(('kv', 69)))
        for _, m in prev: A(m)
        if cfg.prio: A('s_setprio 0')
        if g == 0:
            for t in st_issue(1, 0): A(t)
            vm.add(('st', 1), 3)
            for i in range(48): A('v_cvt_pk_bf16_f32 %s, %s, %s' % (v(QF + i), v(ACC + 2 * i), v(ACC + 2 * i + 1)))
        else:
            A('s_nop 5')
            for dt in range(6):
                for k in range(8):
                    A('v_cvt_pk_bf16_f32 %s, %s, %s' % (v(ACC + 16 * dt + k), v(ACC + 16 * dt + 2 * k), v(ACC + 16 * dt + 2 * k + 1)))
                for u in range(2):
                    A('ds_write_b128 %s, %s offset:%d' % (v(vOr), v(ACC + 16 * dt + 4 * u, 4), 1024 * (2 * dt + u)))
                if cfg.early16:
                    for q in (2 * dt, 2 * dt + 1):
                        for t in st_load(16 + q // 6, q % 6, stg[16 + q // 6] + 4 * (q % 6)): A(t)
            if cfg.early16: vm.add(('st', 16), 6); vm.add(('st', 17), 6)
    A('s_cmp_lg_u32 %s, 0' % s(sG)); A('s_cbranch_scc1 L_g2tail')
    m5 = A.mark()
    vm = Vm([('kv', p) for p in range(32, 38) for _ in range(3)])
    attn_end(0, vm)
    stamp(5)
    def o_frags(acc, zero, extra=None):
        fr = []
        for ss in range(12):
            buf = AF + 4 * (ss % 6)
            rds = ['ds_read_b64_tr_b16 %s, %s offset:%d' % (v(buf + 2 * vv, 2), v(vOr), 2048 * ss + 1024 * vv) for vv in range(2)]
            if extra: rds = [extra(ss)] + rds
            fr.append((rds, mfma(acc, buf, QF + 4 * ss, '0' if (ss == 0 and zero) else None)))
        return fr
    def next_addr(u):
        if u % 2 == 0: return 'v_add_u32 %s, %d, %s' % (v(vOr), st_slot(u // 2), v(vOa))
        return 'v_xor_b32 %s, 64, %s' % (v(vOr), v(vOr))
    def pack_to(dst, acc):
        return ['v_cvt_pk_bf16_f32 %s, %s, %s' % (v(dst + k), v(acc + 2 * k), v(acc + 2 * k + 1)) for k in range(8)]
    wb(vm.need(('kv', 35)), False)
    for t in st_issue(1, 1): A(t)
    vm.add(('st', 1), 3)
    allo = []
    for n in range(20):
        f = o_frags(TACC[n & 1], True)
        f[0] = ([next_addr(n)] + f[0][0], f[0][1])
        allo += f
    gfill = {}
    for n in range(18):
        pk = pack_to(stash(n + 2), TACC[n & 1])
        gfill[12 * n + 11 + 4] = pk[0:4]; gfill[12 * n + 11 + 5] = pk[4:8]
    CH = cfg.och; nch = 240 // CH
    assert 240 % CH == 0 and 56 + nch <= 82
    pend = [(2, 0), (2, 1)]
    rel = 0
    prev = []
    for st in range(56, 85):
        k = st - 56
        w = None
        if k < nch: w = vm.need(('st', (CH * k + CH - 1) // 24))
        if w is None and st <= 57: w = vm.need(('kv', st - 20))
        wb(w, k <= nch)
        while rel < 10 and CH * k >= 24 * (rel + 1):
            pend += [(rel + 3, 0), (rel + 3, 1)]; rel += 1
        if st == 82: pend += [(13, 0), (13, 1)]
        ii = []
        if pend:
            j, hh = pend.pop(0)
            ii = st_issue(j, hh); vm.add(('st', j), 3)
        if k < nch:
            fill = {0: ii[0:3], 1: ii[3:5], 2: ii[5:7]}
            first = CH * k - len(prev)
            for gi in range(first, CH * k + CH - LAG):
                if gi in gfill: fill = merge(fill, {gi - first: gfill[gi]})
            prev = untag(pipe_step(A, prev, allo[CH * k:CH * k + CH], fill))
        else:
            if k == nch:
                for _, m in prev: A(m)
            for t in ii: A(t)
    assert not pend and rel == 10
    A(next_addr(20))
    A('v_add_u32 %s, %s, %s' % (v(vOd), s(sEx), v(vL16)))
    stamp(6)
    wb(vm.need(('st', 10)), False)
    wb(None, False)
    stamp(7)
    prev = []
    def outreg(t): return TACC[t & 1] if t in (0, 19) else stash(t + 1)
    def store(t):
        o = outreg(t)
        l = []
        for hh in range(2):
            l.append(['s_add_u32 %s, %s, %d' % (s(sT0), s(sSt), 8192 * t + 1024 * hh),
                      's_mov_b64 exec, %s' % s(sMask, 2),
                      'buffer_store_dwordx4 %s, %s, %s, %s offen%s' % (v(o + 4 * hh, 4), v(vL16), s(sP, 4), s(sT0), cfg.st_pol),
                      's_mov_b64 exec, -1'])
        return l
    def unpack(t):
        acc = TACC[t & 1]; sr = stash(t); un = []
        for k in list(range(4, 8)) + list(range(0, 4)):
            un.append('v_lshlrev_b32 %s, 16, %s' % (v(acc + 2 * k), v(sr + k)))
            un.append('v_and_b32 %s, 0xffff0000, %s' % (v(acc + 2 * k + 1), v(sr + k)))
        return un
    carry = {}
    nst = 1
    for u in range(20):
        reset = True
        if u % 2 == 0 and u > 0: wb(vm.need(('st', 10 + u // 2)))
        elif u > 0: reset = False
        fill = dict(carry); carry = {}
        if u >= 1:
            pk = pack_to(outreg(u - 1), TACC[(u - 1) & 1])
            un = unpack(u + 1) if u + 1 < 20 else [None] * 0
            fill = merge(fill, {5: pk[0:4], 6: pk[4:8], 9: un[0:4], 10: un[4:8], 11: un[8:12]})
            carry = {0: un[12:16]}
            if u == 1:
                sl = store(0); fill = merge(fill, {6: sl[0], 8: sl[1]}); vm.add('store', 2)
            gaps = [1, 3, 7, 10, 2, 4]; gi = 0
            cnt = 0
            while u >= cfg.st_delay and nst <= u - 2 and cnt < cfg.st_rate:
                sl = store(nst)
                fill = merge(fill, {gaps[gi]: sl[0], gaps[gi + 1]: sl[1]}); gi += 2
                vm.add('store', 2); nst += 1; cnt += 1
        last = 8 if u == 0 else 11
        if u < 19: fill = merge(fill, {last: [next_addr(20 + u + 1)]})
        extra = None
        if u == 0:
            extra = lambda ss: 'ds_read_b128 %s, %s offset:%d' % (v(QF + 4 * ss, 4), v(vOd), 1024 * ss)
        prev = pipe_step(A, untag(prev) if reset else prev, o_frags(TACC[u & 1], False, extra), fill, reset=reset, tagp='t%d' % u)
    A('s_waitcnt lgkmcnt(0)')
    for _, m in prev: A(m)
    while nst <= 18:
        for l in store(nst):
            for t in l: A(t)
        nst += 1
    A('s_nop 4')
    for t in pack_to(outreg(19), TACC[1]): A(t)
    for l in store(19):
        for t in l: A(t)
    checks.append(('g1 oproj', abody[-40:] + A.lines[m5:]))
    stamp(8)
    A('s_branch L_fin')
    A('L_g2tail:')
    m6 = A.mark()
    vm = Vm([('kv', p) for p in range(64, 70) for _ in range(3)])
    attn_end(1, vm)
    stamp(5); stamp(6)
    wb()
    stamp(7)
    for j in range(18 if cfg.early16 else 16, 20):
        for i in range(6):
            for t in st_load(j, i, stg[j] + 4 * i): A(t)
        vm.add(('st', j), 6)
    A('v_add_u32 %s, %s, %s' % (v(vOa), s(sW6k), v(vL16)))
    for j in range(10, 19):
        if 14 <= j + 3 <= 19:
            A('v_add_u32 %s, %d, %s' % (v(vOr), st_slot(j + 3), v(vOa)))
            A('s_waitcnt vmcnt(%d)' % vm.need(('st', j + 3)))
            for i in range(6): A('ds_write_b128 %s, %s offset:%d' % (v(vOr), v(stg[j + 3] + 4 * i, 4), 1024 * i))
        wb()
    checks.append(('g2 tail', abody[-40:] + A.lines[m6:]))
    stamp(8)
    A('L_fin:')
    if cfg.stamp:
        stamp(9)
        A('s_waitcnt vmcnt(0)')
        stamp(10); stamp(12, True)
        A('s_mov_b32 %s, s14' % s(sP)); A('s_mov_b32 %s, s15' % s(sP + 1)); A('s_mov_b32 %s, 402653184' % s(sP + 2))
        A('s_lshl_b32 %s, s2, 3' % s(sT0)); A('s_add_u32 %s, %s, %s' % (s(sT0), s(sT0), s(sW8)))
        A('s_lshl_b32 %s, %s, 7' % (s(sT0), s(sT0))); A('s_add_u32 %s, %s, %d' % (s(sT0), s(sT0), 64 << 20))
        if cfg.stamp == 3:
            A('s_lshl_b32 %s, s2, 3' % s(sT1)); A('s_add_u32 %s, %s, %s' % (s(sT1), s(sT1), s(sW8)))
            A('s_lshl_b32 %s, %s, 11' % (s(sT1), s(sT1))); A('s_add_u32 %s, %s, %d' % (s(sT1), s(sT1), 65 << 20))
            A('v_lshrrev_b32 v1, 2, %s' % v(vL16))
            for i in range(4):
                A('buffer_store_dword v%d, v1, %s, %s offen offset:%d' % (252 + i, s(sP, 4), s(sT1), 256 * i))
        A('v_mov_b32 v1, 0')
        A('s_mov_b64 exec, 1')
        for i in range(26):
            A('v_mov_b32 v0, %s' % s(76 + i))
            A('buffer_store_dword v0, v1, %s, %s offen offset:%d' % (s(sP, 4), s(sT0), 4 * i))
    A('L_end:')
    A('s_endpgm')
    A.trace = False
    for tag in rare_tags:
        m8 = A.mark()
        A('L_rare_%s:' % tag)
        A('v_mov_b32 %s, %s' % (v(vT1), v(vT0)))
        A('s_nop 1')
        A('v_permlane32_swap_b32 %s, %s' % (v(vT0), v(vT1)))
        A('v_max3_f32 %s, %s, %s, %s' % (v(vT0), v(vT0), v(vT1), v(vMref)))
        A('v_sub_f32 %s, %s, %s' % (v(vT1), v(vMref), v(vT0)))
        A('v_mul_f32 %s, %s, %s' % (v(vT1), s(sC), v(vT1)))
        A('v_exp_f32 %s, %s' % (v(vF), v(vT1)))
        A('v_mov_b32 %s, %s' % (v(vMref), v(vT0)))
        A('v_mul_f32 %s, %s, %s' % (v(vMc), s(sC), v(vT0)))
        A('v_add_f32 %s, %s, %s' % (v(vMthr), s(sTc), v(vT0)))
        A('v_mul_f32 %s, %s, %s' % (v(vL0), v(vL0), v(vF)))
        A('v_mul_f32 %s, %s, %s' % (v(vL1), v(vL1), v(vF)))
        A('v_mov_b32 %s, %s' % (v(vF + 1), v(vF)))
        A('s_mov_b32 %s, 1' % s(sFlag))
        A('s_branch L_ret_%s' % tag)
        checks.append(('rare', A.lines[m8:]))
    for tag in resc_tags:
        A('L_resc_%s:' % tag)
        A('s_nop 15')
        for i in range(48): A('v_pk_mul_f32 %s, %s, %s' % (v(ACC + 2 * i, 2), v(ACC + 2 * i, 2), v(vF, 2)))
        A('s_mov_b32 %s, 0' % s(sFlag))
        A('s_nop 1')
        A('s_branch L_rret_%s' % tag)
    A('.globl mha_k2_kernel'); A('.p2align 8'); A('.type mha_k2_kernel,@function'); A('mha_k2_kernel:')
    m9 = A.mark()
    A('s_cmp_ge_u32 s2, 256'); A('s_cbranch_scc1 L_end2')
    A('s_load_dwordx2 s[4:5], s[0:1], 40')
    A('s_load_dwordx2 s[8:9], s[0:1], 56')
    A('v_readfirstlane_b32 s20, v0')
    A('v_and_b32 v2, 63, v0')
    A('s_lshr_b32 s20, s20, 6')
    A('s_lshr_b32 s13, s2, 4')
    A('s_and_b32 s14, s2, 15'); A('s_mul_i32 s14, s14, 5'); A('s_add_u32 s14, s14, s20')
    A('s_and_b32 s21, s14, 3')
    A('s_lshr_b32 s22, s14, 2')
    A('v_lshlrev_b32 v3, 4, v2')
    A('v_and_b32 v4, 31, v2')
    A('s_lshl_b32 s21, s21, 5')
    A('v_add_u32 v4, s21, v4')
    A('v_cmp_gt_u32 vcc, 112, v4')
    A('v_mul_u32_u24 v5, 1280, v4')
    A('v_lshrrev_b32 v6, 5, v2')
    A('v_lshl_add_u32 v5, v6, 5, v5')
    A('s_mul_i32 s15, s13, %d' % (16 * 163840))
    A('s_lshl_b32 s16, s14, 11'); A('s_add_u32 s15, s15, s16')
    A('s_mul_i32 s17, s13, 143360'); A('s_lshl_b32 s16, s22, 6'); A('s_add_u32 s17, s17, s16')
    A('s_mov_b32 s6, 2293760'); A('s_mov_b32 s7, 0x20000')
    A('s_mov_b32 s10, %d' % (256 * 163840)); A('s_mov_b32 s11, 0x20000')
    A('s_and_saveexec_b64 s[18:19], vcc')
    A('s_waitcnt lgkmcnt(0)')
    for p in range(16):
        A('buffer_load_dwordx4 %s, v3, s[8:11], s15 offen%s' % (v(32 + 8 * p, 4), cfg.r_pol))
        A('buffer_load_dwordx4 %s, v3, s[8:11], s15 offen offset:1024%s' % (v(36 + 8 * p, 4), cfg.r_pol))
        if p < 15: A('s_add_u32 s15, s15, 163840')
    for p in range(16):
        A('s_waitcnt vmcnt(%d)' % (2 * (15 - p)))
        for k in range(8):
            src = 32 + 8 * p + k
            if p == 0:
                A('v_lshlrev_b32 %s, 16, %s' % (v(8 + 2 * k), v(src)))
                A('v_and_b32 %s, 0xffff0000, %s' % (v(9 + 2 * k), v(src)))
            else:
                tt = 24 + 2 * (k & 1)
                A('v_lshlrev_b32 %s, 16, %s' % (v(tt), v(src)))
                A('v_and_b32 %s, 0xffff0000, %s' % (v(tt + 1), v(src)))
                A('v_pk_add_f32 %s, %s, %s' % (v(8 + 2 * k, 2), v(8 + 2 * k, 2), v(tt, 2)))
    for k in range(8): A('v_cvt_pk_bf16_f32 %s, %s, %s' % (v(24 + k), v(8 + 2 * k), v(9 + 2 * k)))
    A('buffer_store_dwordx4 v[24:27], v5, s[4:7], s17 offen')
    A('buffer_store_dwordx4 v[28:31], v5, s[4:7], s17 offen offset:16')
    checks.append(('k2', A.lines[m9:]))
    A('L_end2:')
    A('s_endpgm')
    if cfg.codepf:
        A('.set CODE_LAST, L_end2-L_pc')
        A('.set CODE_SHARE, ((L_end2-L_pc)/32/128+1)*128')
    A('.section .rodata,"a"')
    for name, nv, ns in (('mha_k1_kernel', 256, 102 if cfg.stamp else 80), ('mha_k2_kernel', 160, 24)):
        A('.p2align 6')
        A('.amdhsa_kernel %s' % name)
        A('  .amdhsa_next_free_vgpr %d' % nv); A('  .amdhsa_next_free_sgpr %d' % ns); A('  .amdhsa_accum_offset %d' % nv)
        A('  .amdhsa_group_segment_fixed_size 0'); A('  .amdhsa_kernarg_size 64'); A('  .amdhsa_user_sgpr_count 2')
        A('  .amdhsa_user_sgpr_kernarg_segment_ptr 1'); A('  .amdhsa_system_sgpr_workgroup_id_x 1')
        A('.end_amdhsa_kernel')
    nerr = 0
    for name, seq in checks:
        for e in check_seq(seq, name):
            print(e); nerr += 1
    assert nerr == 0, 'hazards'
    open(fname, 'w').write(A.text())

if __name__ == '__main__':
    cfg = Cfg()
    out = sys.argv[1] if len(sys.argv) > 1 else 'k.s'
    for kv in sys.argv[2:]:
        k, val = kv.split('=', 1)
        cur = getattr(cfg, k)
        setattr(cfg, k, type(cur)(val.replace('_', ' ')) if isinstance(cur, str) else type(cur)(val))
    gen(cfg, out)
```

```python
import sys, math, struct
from asmlib import Asm, check_seq, Ins, Vm

def f32bits(x): return struct.unpack('<I', struct.pack('<f', x))[0]

class Cfg:
    kv_pol = ' nt'
    wq_pol = ''
    wo_pol = ''
    x_pol = ''
    st_pol = ' sc1'
    r_pol = ''
    thr = 8.0
    prio = 0
    kv_at = 0
    dbg = 0
    extra_k = 0
    codepf = 1
    early16 = 1
    st_delay = 4
    st_rate = 2
    och = 10
    nostore = 0
    noload = 0
    warm = 0
    warm_step = 80
    warm_pol = ''
    kv_every = 3
    stamp = 0
    k2 = 1

TILE = 12288
NKV = 7
WBASE = NKV * TILE
XBASE = WBASE + 4 * TILE
XSLOT = 14336
LDS = 163840
LAG = 3
SS = [WBASE, WBASE + 24576, WBASE + 49152, 49152]

ACC = 0; QF = 96; S = 144; P = 160; AF = 168
vKa = 192; vKr = 196; vVa = 200; vVr = 202; vWa = 204; vXa = 206
vKd = 210; vVd = 213; vWd = 216; vXd = 219
vMref = 224; vMc = 225; vMthr = 226; vL0 = 227; vL1 = 228; vF = 230; vT0 = 232; vT1 = 233
T = 236
vOd = 248; vOa = 249; vOr = 250; vL16 = 251
TACC = [216, 232]
def stash(t):
    i = t - 2
    if i < 12: return 8 * i
    if i < 15: return 144 + 8 * (i - 12)
    return 192 + 8 * (i - 15)
sX = 16; sK = 20; sV = 24; sWq = 28; sWo = 32; sP = 36
sW8 = 40; sG = 41; sWv = 42; sB = 43; sHp = 44; sW3k = 45; sXm0 = 46; sXm1 = 47; sXa1 = 48; sCnt = 49
sWoff = 50; sXoff = 51; sCur = 52; sPrev = 53; sKoff = 54; sVoff = 55; sC = 56; sTc = 57; sFlag = 58
sW6k = 59; sO1 = 60; sSt = 61; sEx = 62; sMask = 64; sT0 = 66; sT1 = 67; sT2 = 68; sHi = 69

def v(i, n=1): return 'v%d' % i if n == 1 else 'v[%d:%d]' % (i, i + n - 1)
def s(i, n=1): return 's%d' % i if n == 1 else 's[%d:%d]' % (i, i + n - 1)
def mfma(d, a, b, c=None):
    return 'v_mfma_f32_32x32x16_bf16 %s, %s, %s, %s' % (v(d, 16), v(a, 4), v(b, 4), v(d, 16) if c is None else c)

def pipe_step(A, prev, frags, fill, lag=LAG, reset=True, tagp='f'):
    n = len(frags)
    if reset: A.lds_reset()
    nxt = 0
    def rd():
        nonlocal nxt
        if nxt < n:
            for t in frags[nxt][0]:
                if t.startswith('ds_'): A.lds(t, (tagp, nxt))
                else: A(t)
            nxt += 1
    for _ in range(5 - len(prev)): rd()
    for t in fill.get(-1, []): emit(A, t)
    seq = list(prev) + [((tagp, j), frags[j][1]) for j in range(n - lag)]
    for k, (tag, m) in enumerate(seq):
        A.wait_lds(tag)
        A(m)
        rd()
        for t in fill.get(k, []): emit(A, t)
    assert nxt == n
    return [((tagp, j), frags[j][1]) for j in range(n - lag, n)]

def untag(prev): return [(None, m) for _, m in prev]

def emit(A, t):
    if isinstance(t, tuple): A.lds(t[0], t[1])
    else: A(t)

def spread(items, gaps):
    tot = sum(c for _, c in items)
    out = {g: [] for g in gaps}
    acc = 0.0
    for t, c in items:
        gi = min(len(gaps) - 1, int((acc + c / 2.0) / tot * len(gaps)))
        out[gaps[gi]].append(t); acc += c
    return out

def merge(*ds):
    out = {}
    for d in ds:
        for k, l in d.items(): out.setdefault(k, []).extend(l)
    return out

def dma(voff, srd, soff, off, pol):
    return 'buffer_load_dwordx4 %s, %s, %s offen offset:%d%s lds' % (v(voff), s(srd, 4), soff, off, pol)

def gen(cfg, fname):
    A = Asm()
    def stamp(i, real=False):
        if cfg.stamp == 5 and i in (1, 3, 4, 7):
            k = {1: 1, 3: 3, 4: 5, 7: 7}[i]
            A('s_memtime %s' % s(76 + 2 * k, 2)); A('s_memrealtime %s' % s(78 + 2 * k, 2)); A('s_waitcnt lgkmcnt(0)')
        elif cfg.stamp and (cfg.stamp < 3 or i in (0, 10, 11, 12)):
            A('%s %s' % ('s_memrealtime' if (real or (cfg.stamp == 2 and i not in (0, 10))) else 's_memtime', s(76 + 2 * i, 2)))
            A('s_waitcnt lgkmcnt(0)')
    def wb(vm=None, lg=True):
        t = []
        if vm is not None: t.append('vmcnt(%d)' % vm)
        if lg: t.append('lgkmcnt(0)')
        if t: A('s_waitcnt ' + ' '.join(t))
        A('s_barrier')
    checks = []
    A('; @launch kernel=mha_k1_kernel grid=(256,1,1) block=(512,1,1) lds=%d' % LDS)
    A('; @launch kernel=mha_k2_kernel grid=(256,1,1) block=(320,1,1) lds=0')
    for _ in range(cfg.extra_k): A('; @launch kernel=mha_k3_kernel grid=(256,1,1) block=(64,1,1) lds=0')
    A('.amdgcn_target "amdgcn-amd-amdhsa--gfx950"')
    A('.text'); A('.globl mha_k1_kernel'); A('.p2align 8'); A('.type mha_k1_kernel,@function'); A('mha_k1_kernel:')
    m0 = A.mark()
    A('s_cmp_ge_u32 s2, 256'); A('s_cbranch_scc1 L_end')
    A('s_load_dwordx8 s[4:11], s[0:1], 0')
    A('s_load_dwordx2 s[12:13], s[0:1], 32')
    A('s_load_dwordx2 s[14:15], s[0:1], 56')
    stamp(0); stamp(11, True)
    if cfg.stamp == 3:
        A.trace = True
        A('s_mov_b32 s75, 0')
        for i in range(252, 256): A('v_mov_b32 v%d, 0' % i)
    L = T; Hh = T + 1; I16 = T + 2; U = T + 3; a = T + 4; b = T + 5; c = T + 6; d = T + 7; e = T + 8
    A('v_readfirstlane_b32 %s, v0' % s(sW8))
    A('v_and_b32 %s, 63, v0' % v(L))
    A('s_lshr_b32 %s, %s, 6' % (s(sW8), s(sW8)))
    A('s_lshr_b32 %s, %s, 2' % (s(sG), s(sW8)))
    A('s_and_b32 %s, %s, 3' % (s(sWv), s(sW8)))
    A('s_and_b32 %s, s2, 7' % s(sT0))
    A('s_lshr_b32 %s, s2, 3' % s(sT1))
    A('s_lshr_b32 %s, %s, 1' % (s(sB), s(sT1)))
    A('s_and_b32 %s, %s, 1' % (s(sT1), s(sT1)))
    A('s_lshl_b32 %s, %s, 1' % (s(sHp), s(sT0)))
    A('s_add_u32 %s, %s, %s' % (s(sHp), s(sHp), s(sT1)))
    A('s_mul_i32 %s, %s, 3072' % (s(sW3k), s(sWv)))
    A('s_cmp_eq_u32 %s, 3' % s(sWv))
    A('s_cselect_b32 %s, 0, 2048' % s(sXm1)); A('s_cselect_b32 %s, 0, 20480' % s(sXa1))
    A('s_cselect_b32 %s, 15, 31' % s(sHi))
    A('s_cselect_b32 %s, 0xffff, -1' % s(sMask)); A('s_mov_b32 %s, %s' % (s(sMask + 1), s(sMask)))
    A('s_lshl_b32 %s, %s, 12' % (s(sXm0), s(sWv))); A('s_add_u32 %s, %s, %d' % (s(sXm0), s(sXm0), XBASE))
    A('s_add_u32 %s, %s, %s' % (s(sXm1), s(sXm1), s(sXm0)))
    A('s_mul_i32 %s, %s, %d' % (s(sT0), s(sWv), 32 * 1280))
    A('v_lshrrev_b32 %s, 3, %s' % (v(a), v(L)))
    A('v_lshrrev_b32 %s, 4, %s' % (v(b), v(L)))
    A('v_and_b32 %s, 7, %s' % (v(c), v(L)))
    A('v_xor_b32 %s, %s, %s' % (v(b), v(b), v(c)))
    A('v_mul_u32_u24 %s, 1280, %s' % (v(a), v(a)))
    A('v_add_u32 %s, %s, %s' % (v(a), s(sT0), v(a)))
    A('v_lshl_add_u32 %s, %s, 4, %s' % (v(vXd), v(b), v(a)))
    A('v_xor_b32 %s, 4, %s' % (v(b), v(b)))
    A('v_lshl_add_u32 %s, %s, 4, %s' % (v(vXd + 1), v(b), v(a)))
    A('v_add_u32 %s, %d, %s' % (v(vXd + 1), 8 * 1280 - 1024, v(vXd + 1)))
    A('s_lshl_b32 %s, %s, 3' % (s(sT0), s(sWv)))
    for p in range(3):
        A('v_add_u32 %s, %d, %s' % (v(a), 64 * p, v(L)))
        A('v_mul_u32_u24 %s, 171, %s' % (v(b), v(a)))
        A('v_lshrrev_b32 %s, 12, %s' % (v(b), v(b)))
        A('v_mul_u32_u24 %s, 24, %s' % (v(c), v(b)))
        A('v_sub_u32 %s, %s, %s' % (v(vVd + p), v(a), v(c)))
        A('v_add_u32 %s, %s, %s' % (v(vKd + p), s(sT0), v(b)))
        A('v_lshlrev_b32 %s, 1, %s' % (v(d), v(b)))
        A('v_and_b32 %s, 4, %s' % (v(d), v(d)))
        A('v_xor_b32 %s, %s, %s' % (v(d), v(vVd + p), v(d)))
        A('v_mul_u32_u24 %s, 12288, %s' % (v(e), v(vKd + p)))
        A('v_lshl_add_u32 %s, %s, 4, %s' % (v(d), v(d), v(e)))
        A('v_subrev_u32 %s, %d, %s' % (v(vWd + p), 1024 * p, v(d)))
    A('s_mul_i32 %s, %s, 143360' % (s(sT0), s(sB)))
    A('s_lshl_b32 %s, %s, 1' % (s(sT1), s(sHp))); A('s_add_u32 %s, %s, %s' % (s(sT1), s(sT1), s(sG)))
    A('s_mul_i32 %s, %s, 384' % (s(sT1), s(sT1)))
    A('s_mov_b32 %s, 143360' % s(sX + 2)); A('s_mov_b32 %s, 0x20000' % s(sX + 3))
    A('s_sub_u32 %s, 7864320, %s' % (s(sWq + 2), s(sT1))); A('s_mov_b32 %s, 0x20000' % s(sWq + 3))
    A('s_mov_b32 %s, 0' % s(sWoff)); A('s_mov_b32 %s, 0' % s(sXoff))
    A('s_waitcnt lgkmcnt(0)')
    A('s_add_u32 %s, s4, %s' % (s(sX), s(sT0))); A('s_addc_u32 %s, s5, 0' % s(sX + 1))
    A('s_add_u32 %s, s10, %s' % (s(sWq), s(sT1))); A('s_addc_u32 %s, s11, 0' % s(sWq + 1))
    def x_issue(slot):
        return ['s_add_u32 m0, %s, %d' % (s(sXm0), slot * XSLOT),
                's_add_u32 %s, %s, %s' % (s(sT1), s(sXoff), s(sXa1)),
                dma(vXd, sX, s(sXoff), 0, cfg.x_pol), dma(vXd + 1, sX, s(sXoff), 1024, cfg.x_pol),
                's_add_u32 m0, %s, %d' % (s(sXm1), slot * XSLOT),
                's_add_u32 %s, %s, 128' % (s(sXoff), s(sXoff)),
                dma(vXd, sX, s(sT1), 0, cfg.x_pol), dma(vXd + 1, sX, s(sT1), 1024, cfg.x_pol),
                's_cmp_ge_u32 %s, 1280' % s(sXoff),
                's_cselect_b32 %s, 0x40000000, %s' % (s(sXoff), s(sXoff))]
    def w_issue(slot):
        return ['s_add_u32 m0, %s, %d' % (s(sW3k), WBASE + slot * TILE), 's_nop 0',
                dma(vWd, sWq, s(sWoff), 0, cfg.wq_pol), dma(vWd + 1, sWq, s(sWoff), 1024, cfg.wq_pol),
                dma(vWd + 2, sWq, s(sWoff), 2048, cfg.wq_pol),
                's_add_u32 %s, %s, %d' % (s(sWoff), s(sWoff), 32 * 12288)]
    def x_reads(slot):
        return [('ds_read_b128 %s, %s offset:%d' % (v(QF + 16 * slot + 4 * s3, 4), v(vXa + s3), slot * XSLOT), 'x') for s3 in range(4)]
    qpro = [x_issue(0), w_issue(0), x_issue(1), w_issue(1), w_issue(2)]
    A('s_cmp_eq_u32 %s, 0' % s(sG)); A('s_cbranch_scc0 L_p0')
    for l in qpro[:3]:
        for t in l: A(t)
    A('s_branch L_p1')
    A('L_p0:')
    if cfg.codepf:
        A('s_getpc_b64 %s' % s(70, 2))
        A('L_pc:')
        A('s_and_b32 %s, %s, 7' % (s(sT1), s(sB))); A('s_lshl_b32 %s, %s, 2' % (s(sT1), s(sT1)))
        A('s_add_u32 %s, %s, %s' % (s(sT1), s(sT1), s(sWv)))
        A('s_mul_i32 %s, %s, CODE_SHARE-0' % (s(sT1), s(sT1)))
        A('v_lshlrev_b32 %s, 7, %s' % (v(b), v(L)))
        A('v_min_u32 %s, CODE_SHARE-128, %s' % (v(b), v(b)))
        A('v_add_u32 %s, %s, %s' % (v(b), s(sT1), v(b)))
        A('v_min_u32 %s, CODE_LAST-0, %s' % (v(b), v(b)))
        A('global_load_dword %s, %s, %s' % (v(S + 1), v(b), s(70, 2)))
    if cfg.warm & 2:
        A('s_and_b32 %s, %s, 1' % (s(sT1), s(sHp))); A('s_lshl_b32 %s, %s, 2' % (s(sT1), s(sT1)))
        A('s_add_u32 %s, %s, %s' % (s(sT1), s(sT1), s(sWv)))
        A('s_mul_i32 %s, %s, %d' % (s(sT1), s(sT1), 14 * 1280))
        A('v_lshlrev_b32 %s, 7, %s' % (v(b), v(L)))
        A('v_min_u32 %s, %d, %s' % (v(c), 11 * 128, v(b)))
        A('buffer_load_dword %s, %s, %s, %s offen%s' % (v(S), v(b), s(sX, 4), s(sT1), cfg.x_pol))
        A('s_add_u32 %s, %s, 8192' % (s(sT1), s(sT1)))
        A('buffer_load_dword %s, %s, %s, %s offen%s' % (v(S), v(b), s(sX, 4), s(sT1), cfg.x_pol))
        A('s_add_u32 %s, %s, 8192' % (s(sT1), s(sT1)))
        A('buffer_load_dword %s, %s, %s, %s offen%s' % (v(S), v(c), s(sX, 4), s(sT1), cfg.x_pol))
    if cfg.warm & 4:
        A('s_mul_i32 %s, %s, 8960' % (s(sT1), s(sHp)))
        A('s_mul_i32 %s, %s, 2304' % (s(sT2), s(sWv))); A('s_add_u32 %s, %s, %s' % (s(sT1), s(sT1), s(sT2)))
        A('v_min_u32 %s, 17, %s' % (v(b), v(L)))
        A('v_lshlrev_b32 %s, 7, %s' % (v(b), v(b)))
        A('buffer_load_dword %s, %s, %s, %s offen%s' % (v(S), v(b), s(sX, 4), s(sT1), cfg.x_pol))
    if cfg.warm & 1:
        A('s_lshl_b32 %s, %s, 2' % (s(sT1), s(sB))); A('s_add_u32 %s, %s, %s' % (s(sT1), s(sT1), s(sWv)))
        A('s_mul_i32 %s, %s, %d' % (s(sT1), s(sT1), 10 * 12288))
        A('s_mul_i32 %s, %s, 768' % (s(sT2), s(sHp))); A('s_add_u32 %s, %s, %s' % (s(sT1), s(sT1), s(sT2)))
        A('s_mov_b32 %s, s10' % s(sWo)); A('s_mov_b32 %s, s11' % s(sWo + 1))
        A('s_mov_b32 %s, 7864320' % s(sWo + 2)); A('s_mov_b32 %s, 0x20000' % s(sWo + 3))
        A('v_min_u32 %s, 59, %s' % (v(a), v(L)))
        A('v_mul_u32_u24 %s, 43, %s' % (v(b), v(a)))
        A('v_lshrrev_b32 %s, 8, %s' % (v(b), v(b)))
        A('v_mul_u32_u24 %s, %d, %s' % (v(b), 12288 - 768, v(b)))
        A('v_lshl_add_u32 %s, %s, 7, %s' % (v(b), v(a), v(b)))
        A('buffer_load_dword %s, %s, %s, %s offen%s' % (v(S), v(b), s(sWo, 4), s(sT1), cfg.warm_pol))
    A('L_p1:')
    A('s_lshl_b32 %s, %s, 4' % (s(sT0), s(sB))); A('s_add_u32 %s, %s, %s' % (s(sT0), s(sT0), s(sHp)))
    A('s_mul_i32 %s, %s, 393216' % (s(sT1), s(sT0)))
    A('s_add_u32 %s, s6, %s' % (s(sK), s(sT1))); A('s_addc_u32 %s, s7, 0' % s(sK + 1))
    A('s_mov_b32 %s, 393216' % s(sK + 2)); A('s_mov_b32 %s, 0x20000' % s(sK + 3))
    A('s_add_u32 %s, s8, %s' % (s(sV), s(sT1))); A('s_addc_u32 %s, s9, 0' % s(sV + 1))
    A('s_mov_b32 %s, 393216' % s(sV + 2)); A('s_mov_b32 %s, 0x20000' % s(sV + 3))
    A('s_mul_i32 %s, %s, 163840' % (s(sT1), s(sT0)))
    A('s_add_u32 %s, s14, %s' % (s(sP), s(sT1))); A('s_addc_u32 %s, s15, 0' % s(sP + 1))
    A('s_mov_b32 %s, 163840' % s(sP + 2)); A('s_mov_b32 %s, 0x20000' % s(sP + 3))
    A('s_mov_b32 %s, s12' % s(sWo)); A('s_mov_b32 %s, s13' % s(sWo + 1))
    A('s_mov_b32 %s, 7864320' % s(sWo + 2)); A('s_mov_b32 %s, 0x20000' % s(sWo + 3))
    A('s_mul_i32 %s, %s, 491520' % (s(sO1), s(sHp)))
    A('s_mul_i32 %s, %s, 6144' % (s(sW6k), s(sWv)))
    A('s_mul_i32 %s, %s, %d' % (s(sEx), s(sWv), TILE))
    A('s_lshl_b32 %s, %s, 11' % (s(sSt), s(sWv)))
    for p in range(3):
        A('v_mul_u32_u24 %s, 384, %s' % (v(e), v(vKd + p)))
        A('v_subrev_u32 %s, %d, %s' % (v(e), 1024 * p, v(e)))
        A('v_bfe_u32 %s, %s, 1, 3' % (v(d), v(vKd + p)))
        A('v_lshlrev_b32 %s, 2, %s' % (v(c), v(d)))
        A('v_and_b32 %s, 4, %s' % (v(c), v(c)))
        A('v_xor_b32 %s, %s, %s' % (v(d), v(vVd + p), v(d)))
        A('v_xor_b32 %s, %s, %s' % (v(c), v(vVd + p), v(c)))
        A('v_lshl_add_u32 %s, %s, 4, %s' % (v(vKd + p), v(d), v(e)))
        A('v_lshl_add_u32 %s, %s, 4, %s' % (v(vVd + p), v(c), v(e)))
    A('v_lshrrev_b32 %s, 5, %s' % (v(Hh), v(L)))
    A('v_and_b32 %s, 15, %s' % (v(I16), v(L)))
    A('v_bfe_u32 %s, %s, 4, 1' % (v(U), v(L)))
    A('v_and_b32 %s, 31, %s' % (v(a), v(L)))
    A('v_bfe_u32 %s, %s, 1, 3' % (v(b), v(a)))
    A('v_xor_b32 %s, %s, %s' % (v(b), v(b), v(Hh)))
    A('v_mul_u32_u24 %s, 384, %s' % (v(a), v(a)))
    for s3 in range(4):
        A('v_xor_b32 %s, %d, %s' % (v(c), 2 * s3, v(b)))
        A('v_lshl_add_u32 %s, %s, 4, %s' % (v(vKa + s3), v(c), v(a)))
    A('v_and_b32 %s, %s, %s' % (v(a), s(sHi), v(L)))
    A('v_lshlrev_b32 %s, 7, %s' % (v(a), v(a)))
    A('v_add_u32 %s, %s, %s' % (v(a), s(sXm0), v(a)))
    for s3 in range(4):
        A('v_xor_b32 %s, %d, %s' % (v(c), 2 * s3, v(b)))
        A('v_lshl_add_u32 %s, %s, 4, %s' % (v(vXa + s3), v(c), v(a)))
    A('v_lshrrev_b32 %s, 2, %s' % (v(a), v(I16)))
    A('v_lshl_add_u32 %s, %s, 2, %s' % (v(b), v(Hh), v(a)))
    A('v_mul_u32_u24 %s, 384, %s' % (v(c), v(b)))
    A('v_lshl_add_u32 %s, %s, 5, %s' % (v(c), v(U), v(c)))
    A('v_and_b32 %s, 3, %s' % (v(d), v(I16)))
    A('v_lshl_add_u32 %s, %s, 3, %s' % (v(c), v(d), v(c)))
    A('v_lshrrev_b32 %s, 3, %s' % (v(e), v(I16)))
    A('v_lshl_add_u32 %s, %s, 6, %s' % (v(vVa), v(e), v(c)))
    A('v_xor_b32 %s, 64, %s' % (v(vVa + 1), v(vVa)))
    A('v_lshlrev_b32 %s, 7, %s' % (v(c), v(b)))
    A('v_lshl_add_u32 %s, %s, 6, %s' % (v(c), v(e), v(c)))
    A('v_lshl_add_u32 %s, %s, 4, %s' % (v(c), v(U), v(c)))
    A('v_and_b32 %s, 1, %s' % (v(d), v(I16)))
    A('v_lshl_add_u32 %s, %s, 5, %s' % (v(c), v(d), v(c)))
    A('v_bfe_u32 %s, %s, 1, 1' % (v(b), v(I16)))
    A('v_lshl_add_u32 %s, %s, 3, %s' % (v(vOa), v(b), v(c)))
    A('v_lshl_add_u32 %s, %s, 3, %s' % (v(a), v(Hh), v(a)))
    A('v_mul_u32_u24 %s, 384, %s' % (v(c), v(a)))
    A('v_lshl_add_u32 %s, %s, 5, %s' % (v(c), v(U), v(c)))
    A('v_lshl_add_u32 %s, %s, 4, %s' % (v(c), v(d), v(c)))
    A('v_lshl_add_u32 %s, %s, 3, %s' % (v(c), v(b), v(c)))
    A('v_add_u32 %s, %d, %s' % (v(c), WBASE, v(c)))
    A('v_lshl_add_u32 %s, %s, 6, %s' % (v(vWa), v(e), v(c)))
    A('v_xor_b32 %s, 64, %s' % (v(vWa + 1), v(vWa)))
    A('s_mul_i32 %s, %s, %d' % (s(sT0), s(sWv), 48 * 1280))
    A('v_lshrrev_b32 %s, 3, %s' % (v(a), v(L)))
    A('v_mul_u32_u24 %s, 1280, %s' % (v(a), v(a)))
    A('v_and_b32 %s, 7, %s' % (v(b), v(L)))
    A('v_lshlrev_b32 %s, 2, %s' % (v(c), v(U)))
    A('v_xor_b32 %s, %s, %s' % (v(b), v(b), v(c)))
    A('v_lshlrev_b32 %s, 4, %s' % (v(b), v(b)))
    A('v_add3_u32 %s, %s, %s, %s' % (v(vOd), v(a), v(b), s(sT0)))
    A('v_lshlrev_b32 %s, 4, %s' % (v(vL16), v(L)))
    cc = math.log2(math.e) / math.sqrt(192.0)
    A('s_mov_b32 %s, 0x%08x' % (s(sC), f32bits(cc)))
    A('s_mov_b32 %s, 0x%08x' % (s(sTc), f32bits(cfg.thr / cc)))
    A('s_mov_b32 %s, 0' % s(sFlag))
    A('s_mul_i32 %s, %s, %d' % (s(sCur), s(sG), (32 % NKV) * TILE))
    A('s_mul_i32 %s, %s, %d' % (s(sPrev), s(sG), (6 - 31 % NKV) * TILE))
    A('s_sub_u32 %s, %d, %s' % (s(sPrev), 6 * TILE, s(sPrev)))
    A('s_mul_i32 %s, %s, %d' % (s(sT0), s(sG), 16 * TILE))
    A('s_add_u32 %s, %s, %d' % (s(sKoff), s(sT0), 3 * TILE))
    A('s_add_u32 %s, %s, %d' % (s(sVoff), s(sT0), 2 * TILE))
    for i in list(range(ACC, ACC + 96)) + list(range(QF + 28, QF + 32)) + list(range(AF + 12, AF + 24)): A('v_mov_b32 %s, 0' % v(i))
    def q_frags(r):
        fr = []
        for ss in range(2):
            for dt in range(6):
                j = ss * 6 + dt; buf = AF + 4 * (j % 6)
                rds = ['ds_read_b64_tr_b16 %s, %s offset:%d' % (v(buf + 2 * vv, 2), v(vWa + (dt & 1)),
                        r * TILE + (16 * ss + 4 * vv) * 384 + 128 * (dt >> 1)) for vv in range(2)]
                fr.append((rds, mfma(ACC + 16 * dt, buf, QF + 16 * (r >> 1) + 4 * ((r & 1) * 2 + ss))))
        return fr
    qlag = [(None, f[1]) for f in q_frags(3)[-LAG:]]
    A('s_mov_b32 %s, 0' % s(sCnt))
    A('s_cmp_eq_u32 %s, 0' % s(sG)); A('s_cbranch_scc0 L_g2a')
    for l in qpro[3:]:
        for t in l: A(t)
    stamp(1)
    A('s_waitcnt vmcnt(13)')
    for t in x_reads(0): A(t[0])
    checks.append(('prologue', A.lines[m0:]))
    def q1_iter(final):
        prev = qlag
        for r in range(4):
            wb(10 if not final else [10, 6, 3, 0][r])
            fill = {}
            if r % 2 == 0:
                xi = x_issue(r >> 1); wi = w_issue((r + 3) & 3)
                if not final: fill = {0: xi[0:3], 1: xi[3:4], 2: xi[4:7], 3: xi[7:8], 4: wi[0:3], 5: wi[3:4], 6: wi[4:6]}
                elif r == 0: fill = {0: wi[0:3], 1: wi[3:4], 2: wi[4:6]}
            else:
                wi = w_issue((r + 3) & 3); xr = x_reads(((r + 1) >> 1) & 1)
                if not final: fill = {0: wi[0:3], 1: wi[3:4], 2: wi[4:6]}
                if not final or r == 1: fill = merge(fill, {5: xr[0:1], 6: xr[1:2], 7: xr[2:3], 8: xr[3:4]})
            prev = untag(pipe_step(A, prev, q_frags(r), fill))
    A('L_qloop:')
    m1 = A.mark()
    q1_iter(False)
    A('s_add_u32 %s, %s, 1' % (s(sCnt), s(sCnt))); A('s_cmp_lt_u32 %s, 4' % s(sCnt)); A('s_cbranch_scc1 L_qloop')
    body = A.lines[m1:]
    checks.append(('qloop', body + body))
    m1 = A.mark()
    q1_iter(True)
    A('s_waitcnt lgkmcnt(0)')
    A('s_branch L_qend')
    checks.append(('qloop end', body[-40:] + A.lines[m1:]))
    body = A.lines[m1:]
    A('L_g2a:')
    kv0 = ((sK, vKd, 0, 0), (sK, vKd, 1, 2), (sV, vVd, 0, 3), (sK, vKd, 2, 4), (sV, vVd, 1, 5), (sK, vKd, 3, 6))
    m1 = A.mark()
    for st in range(21):
        wb(13 if st == 20 else None, False)
        for i in range(6):
            if cfg.kv_at + i * cfg.kv_every == st:
                srd, vd, tile, slot = kv0[i]
                A('s_add_u32 m0, %s, %d' % (s(sW3k), slot * TILE))
                A('s_mov_b32 %s, %d' % (s(sT1), tile * TILE))
                for p in range(3): A(dma(vd + p, srd, s(sT1), 1024 * p, cfg.kv_pol))
        for l in {16: [x_issue(0)], 17: [w_issue(0)], 18: [w_issue(1), x_issue(1)], 19: [w_issue(2)]}.get(st, []):
            for t in l: A(t)
    assert cfg.kv_at + 5 * cfg.kv_every < 16
    stamp(1)
    for t in x_reads(0): A(t[0])
    checks.append(('g2 pro', A.lines[m1:]))
    A('L_q2loop:')
    m1 = A.mark()
    allf = q_frags(0) + q_frags(1) + q_frags(2) + q_frags(3)
    prev = qlag
    for cch in range(6):
        wb(10)
        if cch in (1, 4):
            xi = x_issue(0 if cch == 1 else 1)
            fill = {0: xi[0:3], 1: xi[3:4], 2: xi[4:7], 3: xi[7:10]}
        else:
            wi = w_issue({0: 3, 2: 0, 3: 1, 5: 2}[cch])
            fill = {0: wi[0:3], 1: wi[3:4], 2: wi[4:6]}
        if cch in (2, 5):
            xr = x_reads(1 if cch == 2 else 0)
            fill = merge(fill, {3: xr[0:1], 4: xr[1:2], 5: xr[2:3], 6: xr[3:4]})
        prev = untag(pipe_step(A, prev, allf[8 * cch:8 * cch + 8], fill))
    A('s_add_u32 %s, %s, 1' % (s(sCnt), s(sCnt))); A('s_cmp_lt_u32 %s, 5' % s(sCnt)); A('s_cbranch_scc1 L_q2loop')
    body2 = A.lines[m1:]
    checks.append(('q2loop', body2 + body2))
    wb()
    A('L_qend:')
    m2 = A.mark()
    stamp(2)
    for _, m in qlag: A(m)
    for i in range(4): A('v_add_u32 %s, %s, %s' % (v(vKr + i), s(sCur), v(vKa + i)))
    A('v_mov_b32 %s, 0xff800000' % v(vMref)); A('v_mov_b32 %s, 0xff800000' % v(vMthr)); A('v_mov_b32 %s, 0' % v(vMc))
    A('v_mov_b32 %s, 0' % v(vL0)); A('v_mov_b32 %s, 0' % v(vL1))
    for i in range(4): A('v_mov_b32 %s, 0' % v(P + 4 + i))
    for i in range(48):
        A('v_cvt_pk_bf16_f32 %s, %s, %s' % (v(QF + i), v(ACC + 2 * i), v(ACC + 2 * i + 1)))
    A('L_attn:')
    if cfg.prio: A('s_setprio %d' % cfg.prio)
    def k_frags():
        fr = []
        for ss in range(12):
            buf = AF + 4 * (ss % 6)
            fr.append((['ds_read_b128 %s, %s offset:%d' % (v(buf, 4), v(vKr + (ss & 3)), 128 * (ss >> 2))],
                       mfma(S, buf, QF + 4 * ss, '0' if ss == 0 else None)))
        return fr
    def v_frags():
        fr = []
        for ss in range(2):
            for dt in range(6):
                j = ss * 6 + dt; buf = AF + 4 * (j % 6)
                rds = ['ds_read_b64_tr_b16 %s, %s offset:%d' % (v(buf + 2 * vv, 2), v(vVr + (dt & 1)),
                        (16 * ss + 8 * vv) * 384 + 128 * (dt >> 1)) for vv in range(2)]
                fr.append((rds, mfma(ACC + 16 * dt, buf, P + 4 * ss)))
        return fr
    def kv_issue(srd, vd, soff):
        return ['s_cmp_ge_u32 %s, 393216' % s(soff), 's_cselect_b32 %s, %d, %s' % (s(sT0), TILE, s(sPrev)),
                's_add_u32 m0, %s, %s' % (s(sW3k), s(sT0)), 's_nop 0',
                dma(vd, srd, s(soff), 0, cfg.kv_pol), dma(vd + 1, srd, s(soff), 1024, cfg.kv_pol),
                dma(vd + 2, srd, s(soff), 2048, cfg.kv_pol),
                's_add_u32 %s, %s, %d' % (s(soff), s(soff), TILE)]
    ring_adv = ['s_mov_b32 %s, %s' % (s(sPrev), s(sCur)),
                's_add_u32 %s, %s, %d' % (s(sCur), s(sCur), TILE),
                's_cmp_ge_u32 %s, %d' % (s(sCur), NKV * TILE),
                's_cselect_b32 %s, 0, %s' % (s(sCur), s(sCur))]
    addr_k = ['v_add_u32 %s, %s, %s' % (v(vKr + i), s(sCur), v(vKa + i)) for i in range(4)]
    addr_v = ['v_add_u32 %s, %s, %s' % (v(vVr + i), s(sCur), v(vVa + i)) for i in range(2)]
    def sm_max(tag):
        t0, t1 = v(vT0), v(vT1)
        l = ['v_max3_f32 %s, %s, %s, %s' % (t0, v(S), v(S + 1), v(S + 2)),
             'v_max3_f32 %s, %s, %s, %s' % (t1, v(S + 3), v(S + 4), v(S + 5))]
        for k in range(5):
            tt = t0 if k % 2 == 0 else t1
            l.append('v_max3_f32 %s, %s, %s, %s' % (tt, tt, v(S + 6 + 2 * k), v(S + 7 + 2 * k)))
        l.append('v_max_f32 %s, %s, %s' % (t0, t0, t1))
        l.append('v_cmp_gt_f32 vcc, %s, %s' % (t0, v(vMthr)))
        l.append('s_cbranch_vccnz L_rare_%s' % tag)
        l.append('L_ret_%s:' % tag)
        return l
    def sm_exp():
        it = []
        fma = lambda j: ('v_fma_f32 %s, %s, %s, -%s' % (v(S + j), v(S + j), s(sC), v(vMc)), 1)
        ex = lambda j: ('v_exp_f32 %s, %s' % (v(S + j), v(S + j)), 2)
        ad = lambda j: ('v_add_f32 %s, %s, %s' % (v(vL0 + (j & 1)), v(vL0 + (j & 1)), v(S + j)), 1)
        for j in range(16 + 4):
            if j < 16: it.append(fma(j))
            if 0 <= j - 2 < 16: it.append(ex(j - 2))
            if 0 <= j - 4 < 16: it.append(ad(j - 4))
        return it
    cvt = lambda k: 'v_cvt_pk_bf16_f32 %s, %s, %s' % (v(P + k), v(S + 2 * k), v(S + 2 * k + 1))
    sp = spread(sm_exp(), [5, 6, 7, 8, 9, 10, 11, 100, 101])
    vfill_sm = {g: sp[g] for g in range(5, 12)}
    kfill_sm = {0: sp[100], 1: sp[101]}
    vfill_sm[11] = vfill_sm[11] + [cvt(0), cvt(1), cvt(2), cvt(3)]
    done = ' '.join(t for g in range(5, 12) for t in vfill_sm[g])
    for j in range(8): assert ('v_exp_f32 %s,' % v(S + j)) in done
    def resc(tag):
        return [cvt(4), cvt(5), cvt(6), cvt(7), 's_cmp_lg_u32 %s, 0' % s(sFlag), 's_cbranch_scc1 L_resc_%s' % tag, 'L_rret_%s:' % tag]
    rare_tags = []; resc_tags = []
    wb(0, False)
    stamp(3)
    ki = kv_issue(sK, vKd, sKoff)
    zero_acc = ['v_mov_b32 %s, 0' % v(ACC + i) for i in range(96)]
    fill = {0: ['s_cmp_eq_u32 %s, 0' % s(sG), 's_cbranch_scc1 L_k0skip'] + ki[0:7] + ['L_k0skip:', ki[7]] + ring_adv}
    for g in range(1, 9): fill[g] = zero_acc[(g - 1) * 6:g * 6]
    prev = untag(pipe_step(A, [], k_frags(), fill))
    wb(15)
    for k, (_, m) in enumerate(prev):
        A(m)
        for t in zero_acc[48 + 6 * k:54 + 6 * k]: A(t)
    for t in kv_issue(sV, vVd, sVoff) + ring_adv + addr_k + zero_acc[66:]: A(t)
    for t in sm_max('v0'): A(t)
    rare_tags.append('v0')
    for g in range(5, 12):
        for t in vfill_sm[g]: A(t)
    A('s_mov_b32 %s, 0' % s(sFlag))
    A('s_mov_b32 %s, 0' % s(sCnt))
    checks.append(('q->attn', body[-40:] + A.lines[m2:]))
    pre_loop = A.lines[-40:]
    A('L_aloop:')
    m3 = A.mark()
    pv_lag = [(None, f[1]) for f in v_frags()[-LAG:]]
    wb(15)
    fill = merge(kfill_sm, {2: resc('l'), 3: ki[0:5], 4: ki[5:6], 5: ki[6:8], 6: ring_adv, 7: addr_v})
    resc_tags.append('l')
    prev = untag(pipe_step(A, pv_lag, k_frags(), fill))
    wb(15)
    vi = kv_issue(sV, vVd, sVoff)
    fill = merge({0: vi[0:5], 1: vi[5:6], 2: vi[6:8] + ring_adv, 3: addr_k, 4: sm_max('l')}, vfill_sm)
    rare_tags.append('l')
    prev = untag(pipe_step(A, prev, v_frags(), fill))
    A('s_add_u32 %s, %s, 1' % (s(sCnt), s(sCnt))); A('s_cmp_lt_u32 %s, 15' % s(sCnt)); A('s_cbranch_scc1 L_aloop')
    abody = A.lines[m3:]
    checks.append(('aloop', pre_loop + abody + abody))
    stamp(4)
    lagpv = prev
    def st_slot(j): return SS[j % 3] if j <= 12 else SS[[3, 1, 2, 0][(j - 13) % 4]]
    def st_issue(j, part, n=3):
        off = ((j + 1) % 10) * 128 if j < 10 else 245760 + (j - 10) * 128
        off += part * n * 10240
        l = ['s_add_u32 m0, %s, %d' % (s(sW6k), st_slot(j) + part * n * 1024)]
        for i in range(n):
            l += ['s_add_u32 %s, %s, %d' % (s(sT0 + i), s(sO1), off + i * 9216), dma(vOd, sWo, s(sT0 + i), 1024 * i, cfg.wo_pol)]
        return l
    def st_load(j, i, dst):
        off = 245760 + (j - 10) * 128 + i * 10240
        return ['s_add_u32 %s, %s, %d' % (s(sT1), s(sO1), off),
                'buffer_load_dwordx4 %s, %s, %s, %s offen%s' % (v(dst, 4), v(vOd), s(sWo, 4), s(sT1), cfg.wo_pol)]
    stg = {14: 96, 15: 120, 16: 144, 17: 168, 18: 192, 19: 216}
    def attn_end(g, vm):
        base = 32 if g == 0 else 64
        if g == 0: wb(vm.need(('kv', base)))
        else: A('s_waitcnt lgkmcnt(0)')
        for k, (_, m) in enumerate(lagpv):
            A(m)
            for t in kfill_sm.get(k, []): A(t)
        for t in resc('e%d' % g)[4:] + ring_adv + addr_v: A(t)
        resc_tags.append('e%d' % g)
        for t in ['v_add_f32 %s, %s, %s' % (v(vT0), v(vL0), v(vL1)),
                  'v_mov_b32 %s, %s' % (v(vT1), v(vT0)), 's_nop 1',
                  'v_permlane32_swap_b32 %s, %s' % (v(vT0), v(vT1)),
                  'v_add_f32 %s, %s, %s' % (v(vT0), v(vT0), v(vT1)),
                  'v_rcp_f32 %s, %s' % (v(vF), v(vT0)),
                  'v_add_u32 %s, %s, %s' % (v(vOr), s(sEx), v(vL16)),
                  'v_mov_b32 %s, %s' % (v(vF + 1), v(vF))]: A(t)
        ld = []
        if g == 0: ld = [st_issue(0, 0)]; vm.add(('st', 0), 3)
        else: ld = [st_load(14, i, stg[14] + 4 * i) for i in range(6)]; vm.add(('st', 14), 6)
        for i in range(8): A('v_pk_mul_f32 %s, %s, %s' % (v(S + 2 * i, 2), v(S + 2 * i, 2), v(vF, 2)))
        for k in range(8): A(cvt(k))
        for i in range(48):
            A('v_pk_mul_f32 %s, %s, %s' % (v(ACC + 2 * i, 2), v(ACC + 2 * i, 2), v(vF, 2)))
            if i % 8 == 0 and i // 8 < len(ld):
                for t in ld[i // 8]: A(t)
        wb(vm.need(('kv', base + 1)), False)
        if g == 0:
            ii = st_issue(0, 1); fill = {3: ii[0:3], 4: ii[3:5], 5: ii[5:7]}
            vm.add(('st', 0), 3)
        else:
            fill = {2 + i: st_load(15, i, stg[15] + 4 * i) for i in range(6)}
            vm.add(('st', 15), 6)
        prev = untag(pipe_step(A, [], v_frags(), fill))
        wb(vm.need(('kv', base + 2)) if g == 0 else vm.need(('kv', 69)))
        for _, m in prev: A(m)
        if cfg.prio: A('s_setprio 0')
        if g == 0:
            for t in st_issue(1, 0): A(t)
            vm.add(('st', 1), 3)
            for i in range(48): A('v_cvt_pk_bf16_f32 %s, %s, %s' % (v(QF + i), v(ACC + 2 * i), v(ACC + 2 * i + 1)))
        else:
            A('s_nop 5')
            for dt in range(6):
                for k in range(8):
                    A('v_cvt_pk_bf16_f32 %s, %s, %s' % (v(ACC + 16 * dt + k), v(ACC + 16 * dt + 2 * k), v(ACC + 16 * dt + 2 * k + 1)))
                for u in range(2):
                    A('ds_write_b128 %s, %s offset:%d' % (v(vOr), v(ACC + 16 * dt + 4 * u, 4), 1024 * (2 * dt + u)))
                if cfg.early16:
                    for q in (2 * dt, 2 * dt + 1):
                        for t in st_load(16 + q // 6, q % 6, stg[16 + q // 6] + 4 * (q % 6)): A(t)
            if cfg.early16: vm.add(('st', 16), 6); vm.add(('st', 17), 6)
    A('s_cmp_lg_u32 %s, 0' % s(sG)); A('s_cbranch_scc1 L_g2tail')
    m5 = A.mark()
    vm = Vm([('kv', p) for p in range(32, 38) for _ in range(3)])
    attn_end(0, vm)
    stamp(5)
    def o_frags(acc, zero, extra=None):
        fr = []
        for ss in range(12):
            buf = AF + 4 * (ss % 6)
            rds = ['ds_read_b64_tr_b16 %s, %s offset:%d' % (v(buf + 2 * vv, 2), v(vOr), 2048 * ss + 1024 * vv) for vv in range(2)]
            if extra: rds = [extra(ss)] + rds
            fr.append((rds, mfma(acc, buf, QF + 4 * ss, '0' if (ss == 0 and zero) else None)))
        return fr
    def next_addr(u):
        if u % 2 == 0: return 'v_add_u32 %s, %d, %s' % (v(vOr), st_slot(u // 2), v(vOa))
        return 'v_xor_b32 %s, 64, %s' % (v(vOr), v(vOr))
    def pack_to(dst, acc):
        return ['v_cvt_pk_bf16_f32 %s, %s, %s' % (v(dst + k), v(acc + 2 * k), v(acc + 2 * k + 1)) for k in range(8)]
    wb(vm.need(('kv', 35)), False)
    for t in st_issue(1, 1): A(t)
    vm.add(('st', 1), 3)
    allo = []
    for n in range(20):
        f = o_frags(TACC[n & 1], True)
        f[0] = ([next_addr(n)] + f[0][0], f[0][1])
        allo += f
    gfill = {}
    for n in range(18):
        pk = pack_to(stash(n + 2), TACC[n & 1])
        gfill[12 * n + 11 + 4] = pk[0:4]; gfill[12 * n + 11 + 5] = pk[4:8]
    CH = cfg.och; nch = 240 // CH
    assert 240 % CH == 0 and 56 + nch <= 82
    pend = [(2, 0), (2, 1)]
    rel = 0
    prev = []
    for st in range(56, 85):
        k = st - 56
        w = None
        if k < nch: w = vm.need(('st', (CH * k + CH - 1) // 24))
        if w is None and st <= 57: w = vm.need(('kv', st - 20))
        wb(w, k <= nch)
        while rel < 10 and CH * k >= 24 * (rel + 1):
            pend += [(rel + 3, 0), (rel + 3, 1)]; rel += 1
        if st == 82: pend += [(13, 0), (13, 1)]
        ii = []
        if pend:
            j, hh = pend.pop(0)
            ii = st_issue(j, hh); vm.add(('st', j), 3)
        if k < nch:
            fill = {0: ii[0:3], 1: ii[3:5], 2: ii[5:7]}
            first = CH * k - len(prev)
            for gi in range(first, CH * k + CH - LAG):
                if gi in gfill: fill = merge(fill, {gi - first: gfill[gi]})
            prev = untag(pipe_step(A, prev, allo[CH * k:CH * k + CH], fill))
        else:
            if k == nch:
                for _, m in prev: A(m)
            for t in ii: A(t)
    assert not pend and rel == 10
    A(next_addr(20))
    A('v_add_u32 %s, %s, %s' % (v(vOd), s(sEx), v(vL16)))
    stamp(6)
    wb(vm.need(('st', 10)), False)
    wb(None, False)
    stamp(7)
    prev = []
    def outreg(t): return TACC[t & 1] if t in (0, 19) else stash(t + 1)
    def store(t):
        o = outreg(t)
        l = []
        for hh in range(2):
            l.append(['s_add_u32 %s, %s, %d' % (s(sT0), s(sSt), 8192 * t + 1024 * hh),
                      's_mov_b64 exec, %s' % s(sMask, 2),
                      'buffer_store_dwordx4 %s, %s, %s, %s offen%s' % (v(o + 4 * hh, 4), v(vL16), s(sP, 4), s(sT0), cfg.st_pol),
                      's_mov_b64 exec, -1'])
        return l
    def unpack(t):
        acc = TACC[t & 1]; sr = stash(t); un = []
        for k in list(range(4, 8)) + list(range(0, 4)):
            un.append('v_lshlrev_b32 %s, 16, %s' % (v(acc + 2 * k), v(sr + k)))
            un.append('v_and_b32 %s, 0xffff0000, %s' % (v(acc + 2 * k + 1), v(sr + k)))
        return un
    carry = {}
    nst = 1
    for u in range(20):
        reset = True
        if u % 2 == 0 and u > 0: wb(vm.need(('st', 10 + u // 2)))
        elif u > 0: reset = False
        fill = dict(carry); carry = {}
        if u >= 1:
            pk = pack_to(outreg(u - 1), TACC[(u - 1) & 1])
            un = unpack(u + 1) if u + 1 < 20 else [None] * 0
            fill = merge(fill, {5: pk[0:4], 6: pk[4:8], 9: un[0:4], 10: un[4:8], 11: un[8:12]})
            carry = {0: un[12:16]}
            if u == 1:
                sl = store(0); fill = merge(fill, {6: sl[0], 8: sl[1]}); vm.add('store', 2)
            gaps = [1, 3, 7, 10, 2, 4]; gi = 0
            cnt = 0
            while u >= cfg.st_delay and nst <= u - 2 and cnt < cfg.st_rate:
                sl = store(nst)
                fill = merge(fill, {gaps[gi]: sl[0], gaps[gi + 1]: sl[1]}); gi += 2
                vm.add('store', 2); nst += 1; cnt += 1
        last = 8 if u == 0 else 11
        if u < 19: fill = merge(fill, {last: [next_addr(20 + u + 1)]})
        extra = None
        if u == 0:
            extra = lambda ss: 'ds_read_b128 %s, %s offset:%d' % (v(QF + 4 * ss, 4), v(vOd), 1024 * ss)
        prev = pipe_step(A, untag(prev) if reset else prev, o_frags(TACC[u & 1], False, extra), fill, reset=reset, tagp='t%d' % u)
    A('s_waitcnt lgkmcnt(0)')
    for _, m in prev: A(m)
    while nst <= 18:
        for l in store(nst):
            for t in l: A(t)
        nst += 1
    A('s_nop 4')
    for t in pack_to(outreg(19), TACC[1]): A(t)
    for l in store(19):
        for t in l: A(t)
    checks.append(('g1 oproj', abody[-40:] + A.lines[m5:]))
    stamp(8)
    A('s_branch L_fin')
    A('L_g2tail:')
    m6 = A.mark()
    vm = Vm([('kv', p) for p in range(64, 70) for _ in range(3)])
    attn_end(1, vm)
    stamp(5); stamp(6)
    wb()
    stamp(7)
    for j in range(18 if cfg.early16 else 16, 20):
        for i in range(6):
            for t in st_load(j, i, stg[j] + 4 * i): A(t)
        vm.add(('st', j), 6)
    A('v_add_u32 %s, %s, %s' % (v(vOa), s(sW6k), v(vL16)))
    for j in range(10, 19):
        if 14 <= j + 3 <= 19:
            A('v_add_u32 %s, %d, %s' % (v(vOr), st_slot(j + 3), v(vOa)))
            A('s_waitcnt vmcnt(%d)' % vm.need(('st', j + 3)))
            for i in range(6): A('ds_write_b128 %s, %s offset:%d' % (v(vOr), v(stg[j + 3] + 4 * i, 4), 1024 * i))
        wb()
    checks.append(('g2 tail', abody[-40:] + A.lines[m6:]))
    stamp(8)
    A('L_fin:')
    if cfg.stamp:
        stamp(9)
        A('s_waitcnt vmcnt(0)')
        stamp(10); stamp(12, True)
        A('s_mov_b32 %s, s14' % s(sP)); A('s_mov_b32 %s, s15' % s(sP + 1)); A('s_mov_b32 %s, 402653184' % s(sP + 2))
        A('s_lshl_b32 %s, s2, 3' % s(sT0)); A('s_add_u32 %s, %s, %s' % (s(sT0), s(sT0), s(sW8)))
        A('s_lshl_b32 %s, %s, 7' % (s(sT0), s(sT0))); A('s_add_u32 %s, %s, %d' % (s(sT0), s(sT0), 64 << 20))
        if cfg.stamp == 3:
            A('s_lshl_b32 %s, s2, 3' % s(sT1)); A('s_add_u32 %s, %s, %s' % (s(sT1), s(sT1), s(sW8)))
            A('s_lshl_b32 %s, %s, 11' % (s(sT1), s(sT1))); A('s_add_u32 %s, %s, %d' % (s(sT1), s(sT1), 65 << 20))
            A('v_lshrrev_b32 v1, 2, %s' % v(vL16))
            for i in range(4):
                A('buffer_store_dword v%d, v1, %s, %s offen offset:%d' % (252 + i, s(sP, 4), s(sT1), 256 * i))
        A('v_mov_b32 v1, 0')
        A('s_mov_b64 exec, 1')
        if cfg.dbg:
            A('s_cmp_lg_u32 %s, 0' % s(sW8)); A('s_cbranch_scc1 L_end')
            A('s_mov_b32 %s, 0' % s(sT0))
            A('s_cmp_eq_u32 s2, 0'); A('s_cbranch_scc1 L_dbgw')
            A('s_mov_b32 %s, 32' % s(sT0))
            A('s_cmp_eq_u32 s2, 133'); A('s_cbranch_scc0 L_end')
            A('L_dbgw:')
            A('s_load_dwordx2 %s, s[0:1], 48' % s(sP, 2)); A('s_mov_b32 %s, 256' % s(sP + 2)); A('s_waitcnt lgkmcnt(0)')
            for k, i in enumerate((2, 4, 6, 8, 12)):
                A('s_sub_u32 %s, %s, %s' % (s(sT1), s(76 + 2 * i), s(76 + 22)))
                A('v_mov_b32 v0, %s' % s(sT1))
                A('buffer_store_dword v0, v1, %s, %s offen offset:%d' % (s(sP, 4), s(sT0), 4 * k))
            A('s_sub_u32 %s, %s, %s' % (s(sT1), s(76 + 20), s(76)))
            A('v_mov_b32 v0, %s' % s(sT1))
            A('buffer_store_dword v0, v1, %s, %s offen offset:20' % (s(sP, 4), s(sT0)))
            A('s_getreg_b32 %s, hwreg(HW_REG_XCC_ID)' % s(sT1))
            A('v_mov_b32 v0, %s' % s(sT1))
            A('buffer_store_dword v0, v1, %s, %s offen offset:24' % (s(sP, 4), s(sT0)))
            A('s_branch L_end')
        for i in range(26):
            A('v_mov_b32 v0, %s' % s(76 + i))
            A('buffer_store_dword v0, v1, %s, %s offen offset:%d' % (s(sP, 4), s(sT0), 4 * i))
    A('L_end:')
    A('s_endpgm')
    A.trace = False
    for tag in rare_tags:
        m8 = A.mark()
        A('L_rare_%s:' % tag)
        A('v_mov_b32 %s, %s' % (v(vT1), v(vT0)))
        A('s_nop 1')
        A('v_permlane32_swap_b32 %s, %s' % (v(vT0), v(vT1)))
        A('v_max3_f32 %s, %s, %s, %s' % (v(vT0), v(vT0), v(vT1), v(vMref)))
        A('v_sub_f32 %s, %s, %s' % (v(vT1), v(vMref), v(vT0)))
        A('v_mul_f32 %s, %s, %s' % (v(vT1), s(sC), v(vT1)))
        A('v_exp_f32 %s, %s' % (v(vF), v(vT1)))
        A('v_mov_b32 %s, %s' % (v(vMref), v(vT0)))
        A('v_mul_f32 %s, %s, %s' % (v(vMc), s(sC), v(vT0)))
        A('v_add_f32 %s, %s, %s' % (v(vMthr), s(sTc), v(vT0)))
        A('v_mul_f32 %s, %s, %s' % (v(vL0), v(vL0), v(vF)))
        A('v_mul_f32 %s, %s, %s' % (v(vL1), v(vL1), v(vF)))
        A('v_mov_b32 %s, %s' % (v(vF + 1), v(vF)))
        A('s_mov_b32 %s, 1' % s(sFlag))
        A('s_branch L_ret_%s' % tag)
        checks.append(('rare', A.lines[m8:]))
    for tag in resc_tags:
        A('L_resc_%s:' % tag)
        A('s_nop 15')
        for i in range(48): A('v_pk_mul_f32 %s, %s, %s' % (v(ACC + 2 * i, 2), v(ACC + 2 * i, 2), v(vF, 2)))
        A('s_mov_b32 %s, 0' % s(sFlag))
        A('s_nop 1')
        A('s_branch L_rret_%s' % tag)
    A('.globl mha_k2_kernel'); A('.p2align 8'); A('.type mha_k2_kernel,@function'); A('mha_k2_kernel:')
    m9 = A.mark()
    A('s_cmp_ge_u32 s2, 256'); A('s_cbranch_scc1 L_end2')
    A('s_load_dwordx2 s[4:5], s[0:1], 40')
    A('s_load_dwordx2 s[8:9], s[0:1], 56')
    A('v_readfirstlane_b32 s20, v0')
    A('v_and_b32 v2, 63, v0')
    A('s_lshr_b32 s20, s20, 6')
    A('s_lshr_b32 s13, s2, 4')
    A('s_and_b32 s14, s2, 15'); A('s_mul_i32 s14, s14, 5'); A('s_add_u32 s14, s14, s20')
    A('s_and_b32 s21, s14, 3')
    A('s_lshr_b32 s22, s14, 2')
    A('v_lshlrev_b32 v3, 4, v2')
    A('v_and_b32 v4, 31, v2')
    A('s_lshl_b32 s21, s21, 5')
    A('v_add_u32 v4, s21, v4')
    A('v_cmp_gt_u32 vcc, 112, v4')
    A('v_mul_u32_u24 v5, 1280, v4')
    A('v_lshrrev_b32 v6, 5, v2')
    A('v_lshl_add_u32 v5, v6, 5, v5')
    A('s_mul_i32 s15, s13, %d' % (16 * 163840))
    A('s_lshl_b32 s16, s14, 11'); A('s_add_u32 s15, s15, s16')
    A('s_mul_i32 s17, s13, 143360'); A('s_lshl_b32 s16, s22, 6'); A('s_add_u32 s17, s17, s16')
    A('s_mov_b32 s6, 2293760'); A('s_mov_b32 s7, 0x20000')
    A('s_mov_b32 s10, %d' % (256 * 163840)); A('s_mov_b32 s11, 0x20000')
    A('s_and_saveexec_b64 s[18:19], vcc')
    A('s_waitcnt lgkmcnt(0)')
    for p in range(16):
        A('buffer_load_dwordx4 %s, v3, s[8:11], s15 offen%s' % (v(32 + 8 * p, 4), cfg.r_pol))
        A('buffer_load_dwordx4 %s, v3, s[8:11], s15 offen offset:1024%s' % (v(36 + 8 * p, 4), cfg.r_pol))
        if p < 15: A('s_add_u32 s15, s15, 163840')
    for p in range(16):
        A('s_waitcnt vmcnt(%d)' % (2 * (15 - p)))
        for k in range(8):
            src = 32 + 8 * p + k
            if p == 0:
                A('v_lshlrev_b32 %s, 16, %s' % (v(8 + 2 * k), v(src)))
                A('v_and_b32 %s, 0xffff0000, %s' % (v(9 + 2 * k), v(src)))
            else:
                tt = 24 + 2 * (k & 1)
                A('v_lshlrev_b32 %s, 16, %s' % (v(tt), v(src)))
                A('v_and_b32 %s, 0xffff0000, %s' % (v(tt + 1), v(src)))
                A('v_pk_add_f32 %s, %s, %s' % (v(8 + 2 * k, 2), v(8 + 2 * k, 2), v(tt, 2)))
    for k in range(8): A('v_cvt_pk_bf16_f32 %s, %s, %s' % (v(24 + k), v(8 + 2 * k), v(9 + 2 * k)))
    A('buffer_store_dwordx4 v[24:27], v5, s[4:7], s17 offen')
    A('buffer_store_dwordx4 v[28:31], v5, s[4:7], s17 offen offset:16')
    checks.append(('k2', A.lines[m9:]))
    A('L_end2:')
    A('s_endpgm')
    if cfg.codepf:
        A('.set CODE_LAST, L_end2-L_pc')
        A('.set CODE_SHARE, ((L_end2-L_pc)/32/128+1)*128')
    kl = [('mha_k1_kernel', 256, 102 if cfg.stamp else 80), ('mha_k2_kernel', 160, 24)]
    if cfg.extra_k:
        A('.globl mha_k3_kernel'); A('.p2align 8'); A('.type mha_k3_kernel,@function'); A('mha_k3_kernel:'); A('s_endpgm')
        kl.append(('mha_k3_kernel', 8, 8))
    A('.section .rodata,"a"')
    for name, nv, ns in kl:
        A('.p2align 6')
        A('.amdhsa_kernel %s' % name)
        A('  .amdhsa_next_free_vgpr %d' % nv); A('  .amdhsa_next_free_sgpr %d' % ns); A('  .amdhsa_accum_offset %d' % nv)
        A('  .amdhsa_group_segment_fixed_size 0'); A('  .amdhsa_kernarg_size 64'); A('  .amdhsa_user_sgpr_count 2')
        A('  .amdhsa_user_sgpr_kernarg_segment_ptr 1'); A('  .amdhsa_system_sgpr_workgroup_id_x 1')
        A('.end_amdhsa_kernel')
    nerr = 0
    for name, seq in checks:
        for e in check_seq(seq, name):
            print(e); nerr += 1
    assert nerr == 0, 'hazards'
    open(fname, 'w').write(A.text())

if __name__ == '__main__':
    cfg = Cfg()
    out = sys.argv[1] if len(sys.argv) > 1 else 'k.s'
    for kv in sys.argv[2:]:
        k, val = kv.split('=', 1)
        cur = getattr(cfg, k)
        setattr(cfg, k, type(cur)(val.replace('_', ' ')) if isinstance(cur, str) else type(cur)(val))
    gen(cfg, out)
```

```python
import sys, math, struct
from asmlib import Asm, check_seq, Ins, Vm

def f32bits(x): return struct.unpack('<I', struct.pack('<f', x))[0]

class Cfg:
    kv_pol = ' nt'
    wq_pol = ''
    wo_pol = ''
    x_pol = ''
    st_pol = ' sc1'
    r_pol = ''
    thr = 8.0
    prio = 0
    kv_at = 0
    dbg = 0
    extra_k = 0
    codepf = 1
    early16 = 1
    st_delay = 4
    st_rate = 2
    och = 10
    nostore = 0
    noload = 0
    warm = 0
    warm_step = 80
    warm_pol = ''
    kv_every = 3
    stamp = 0
    k2 = 1

TILE = 12288
NKV = 7
WBASE = NKV * TILE
XBASE = WBASE + 4 * TILE
XSLOT = 14336
LDS = 163840
LAG = 3
SS = [WBASE, WBASE + 24576, WBASE + 49152, 49152]

ACC = 0; QF = 96; S = 144; P = 160; AF = 168
vKa = 192; vKr = 196; vVa = 200; vVr = 202; vWa = 204; vXa = 206
vKd = 210; vVd = 213; vWd = 216; vXd = 219
vMref = 224; vMc = 225; vMthr = 226; vL0 = 227; vL1 = 228; vF = 230; vT0 = 232; vT1 = 233
T = 236
vOd = 248; vOa = 249; vOr = 250; vL16 = 251
TACC = [216, 232]
def stash(t):
    i = t - 2
    if i < 12: return 8 * i
    if i < 15: return 144 + 8 * (i - 12)
    return 192 + 8 * (i - 15)
sX = 16; sK = 20; sV = 24; sWq = 28; sWo = 32; sP = 36
sW8 = 40; sG = 41; sWv = 42; sB = 43; sHp = 44; sW3k = 45; sXm0 = 46; sXm1 = 47; sXa1 = 48; sCnt = 49
sWoff = 50; sXoff = 51; sCur = 52; sPrev = 53; sKoff = 54; sVoff = 55; sC = 56; sTc = 57; sFlag = 58
sW6k = 59; sO1 = 60; sSt = 61; sEx = 62; sMask = 64; sT0 = 66; sT1 = 67; sT2 = 68; sHi = 69

def v(i, n=1): return 'v%d' % i if n == 1 else 'v[%d:%d]' % (i, i + n - 1)
def s(i, n=1): return 's%d' % i if n == 1 else 's[%d:%d]' % (i, i + n - 1)
def mfma(d, a, b, c=None):
    return 'v_mfma_f32_32x32x16_bf16 %s, %s, %s, %s' % (v(d, 16), v(a, 4), v(b, 4), v(d, 16) if c is None else c)

def pipe_step(A, prev, frags, fill, lag=LAG, reset=True, tagp='f'):
    n = len(frags)
    if reset: A.lds_reset()
    nxt = 0
    def rd():
        nonlocal nxt
        if nxt < n:
            for t in frags[nxt][0]:
                if t.startswith('ds_'): A.lds(t, (tagp, nxt))
                else: A(t)
            nxt += 1
    for _ in range(5 - len(prev)): rd()
    for t in fill.get(-1, []): emit(A, t)
    seq = list(prev) + [((tagp, j), frags[j][1]) for j in range(n - lag)]
    for k, (tag, m) in enumerate(seq):
        A.wait_lds(tag)
        A(m)
        rd()
        for t in fill.get(k, []): emit(A, t)
    assert nxt == n
    return [((tagp, j), frags[j][1]) for j in range(n - lag, n)]

def untag(prev): return [(None, m) for _, m in prev]

def emit(A, t):
    if isinstance(t, tuple): A.lds(t[0], t[1])
    else: A(t)

def spread(items, gaps):
    tot = sum(c for _, c in items)
    out = {g: [] for g in gaps}
    acc = 0.0
    for t, c in items:
        gi = min(len(gaps) - 1, int((acc + c / 2.0) / tot * len(gaps)))
        out[gaps[gi]].append(t); acc += c
    return out

def merge(*ds):
    out = {}
    for d in ds:
        for k, l in d.items(): out.setdefault(k, []).extend(l)
    return out

def dma(voff, srd, soff, off, pol):
    return 'buffer_load_dwordx4 %s, %s, %s offen offset:%d%s lds' % (v(voff), s(srd, 4), soff, off, pol)

def gen(cfg, fname):
    A = Asm()
    def stamp(i, real=False):
        if cfg.stamp == 5 and i in (1, 3, 4, 7):
            k = {1: 1, 3: 3, 4: 5, 7: 7}[i]
            A('s_memtime %s' % s(76 + 2 * k, 2)); A('s_memrealtime %s' % s(78 + 2 * k, 2)); A('s_waitcnt lgkmcnt(0)')
        elif cfg.stamp and (cfg.stamp < 3 or i in (0, 10, 11, 12)):
            A('%s %s' % ('s_memrealtime' if (real or (cfg.stamp == 2 and i not in (0, 10))) else 's_memtime', s(76 + 2 * i, 2)))
            A('s_waitcnt lgkmcnt(0)')
    def wb(vm=None, lg=True):
        t = []
        if vm is not None: t.append('vmcnt(%d)' % vm)
        if lg: t.append('lgkmcnt(0)')
        if t: A('s_waitcnt ' + ' '.join(t))
        A('s_barrier')
    checks = []
    A('; @launch kernel=mha_k1_kernel grid=(256,1,1) block=(512,1,1) lds=%d' % LDS)
    A('; @launch kernel=mha_k2_kernel grid=(256,1,1) block=(320,1,1) lds=0')
    for _ in range(cfg.extra_k): A('; @launch kernel=mha_k3_kernel grid=(256,1,1) block=(64,1,1) lds=0')
    A('.amdgcn_target "amdgcn-amd-amdhsa--gfx950"')
    A('.text'); A('.globl mha_k1_kernel'); A('.p2align 8'); A('.type mha_k1_kernel,@function'); A('mha_k1_kernel:')
    m0 = A.mark()
    A('s_cmp_ge_u32 s2, 256'); A('s_cbranch_scc1 L_end')
    A('s_load_dwordx8 s[4:11], s[0:1], 0')
    A('s_load_dwordx2 s[12:13], s[0:1], 32')
    A('s_load_dwordx2 s[14:15], s[0:1], 56')
    stamp(0); stamp(11, True)
    if cfg.stamp == 3:
        A.trace = True
        A('s_mov_b32 s75, 0')
        for i in range(252, 256): A('v_mov_b32 v%d, 0' % i)
    L = T; Hh = T + 1; I16 = T + 2; U = T + 3; a = T + 4; b = T + 5; c = T + 6; d = T + 7; e = T + 8
    A('v_readfirstlane_b32 %s, v0' % s(sW8))
    A('v_and_b32 %s, 63, v0' % v(L))
    A('s_lshr_b32 %s, %s, 6' % (s(sW8), s(sW8)))
    A('s_lshr_b32 %s, %s, 2' % (s(sG), s(sW8)))
    A('s_and_b32 %s, %s, 3' % (s(sWv), s(sW8)))
    A('s_and_b32 %s, s2, 7' % s(sT0))
    A('s_lshr_b32 %s, s2, 3' % s(sT1))
    A('s_lshr_b32 %s, %s, 1' % (s(sB), s(sT1)))
    A('s_and_b32 %s, %s, 1' % (s(sT1), s(sT1)))
    A('s_lshl_b32 %s, %s, 1' % (s(sHp), s(sT0)))
    A('s_add_u32 %s, %s, %s' % (s(sHp), s(sHp), s(sT1)))
    A('s_mul_i32 %s, %s, 3072' % (s(sW3k), s(sWv)))
    A('s_cmp_eq_u32 %s, 3' % s(sWv))
    A('s_cselect_b32 %s, 0, 2048' % s(sXm1)); A('s_cselect_b32 %s, 0, 20480' % s(sXa1))
    A('s_cselect_b32 %s, 15, 31' % s(sHi))
    A('s_cselect_b32 %s, 0xffff, -1' % s(sMask)); A('s_mov_b32 %s, %s' % (s(sMask + 1), s(sMask)))
    A('s_lshl_b32 %s, %s, 12' % (s(sXm0), s(sWv))); A('s_add_u32 %s, %s, %d' % (s(sXm0), s(sXm0), XBASE))
    A('s_add_u32 %s, %s, %s' % (s(sXm1), s(sXm1), s(sXm0)))
    A('s_mul_i32 %s, %s, %d' % (s(sT0), s(sWv), 32 * 1280))
    A('v_lshrrev_b32 %s, 3, %s' % (v(a), v(L)))
    A('v_lshrrev_b32 %s, 4, %s' % (v(b), v(L)))
    A('v_and_b32 %s, 7, %s' % (v(c), v(L)))
    A('v_xor_b32 %s, %s, %s' % (v(b), v(b), v(c)))
    A('v_mul_u32_u24 %s, 1280, %s' % (v(a), v(a)))
    A('v_add_u32 %s, %s, %s' % (v(a), s(sT0), v(a)))
    A('v_lshl_add_u32 %s, %s, 4, %s' % (v(vXd), v(b), v(a)))
    A('v_xor_b32 %s, 4, %s' % (v(b), v(b)))
    A('v_lshl_add_u32 %s, %s, 4, %s' % (v(vXd + 1), v(b), v(a)))
    A('v_add_u32 %s, %d, %s' % (v(vXd + 1), 8 * 1280 - 1024, v(vXd + 1)))
    A('s_lshl_b32 %s, %s, 3' % (s(sT0), s(sWv)))
    for p in range(3):
        A('v_add_u32 %s, %d, %s' % (v(a), 64 * p, v(L)))
        A('v_mul_u32_u24 %s, 171, %s' % (v(b), v(a)))
        A('v_lshrrev_b32 %s, 12, %s' % (v(b), v(b)))
        A('v_mul_u32_u24 %s, 24, %s' % (v(c), v(b)))
        A('v_sub_u32 %s, %s, %s' % (v(vVd + p), v(a), v(c)))
        A('v_add_u32 %s, %s, %s' % (v(vKd + p), s(sT0), v(b)))
        A('v_lshlrev_b32 %s, 1, %s' % (v(d), v(b)))
        A('v_and_b32 %s, 4, %s' % (v(d), v(d)))
        A('v_xor_b32 %s, %s, %s' % (v(d), v(vVd + p), v(d)))
        A('v_mul_u32_u24 %s, 12288, %s' % (v(e), v(vKd + p)))
        A('v_lshl_add_u32 %s, %s, 4, %s' % (v(d), v(d), v(e)))
        A('v_subrev_u32 %s, %d, %s' % (v(vWd + p), 1024 * p, v(d)))
    A('s_mul_i32 %s, %s, 143360' % (s(sT0), s(sB)))
    A('s_lshl_b32 %s, %s, 1' % (s(sT1), s(sHp))); A('s_add_u32 %s, %s, %s' % (s(sT1), s(sT1), s(sG)))
    A('s_mul_i32 %s, %s, 384' % (s(sT1), s(sT1)))
    A('s_mov_b32 %s, 143360' % s(sX + 2)); A('s_mov_b32 %s, 0x20000' % s(sX + 3))
    A('s_sub_u32 %s, 7864320, %s' % (s(sWq + 2), s(sT1))); A('s_mov_b32 %s, 0x20000' % s(sWq + 3))
    A('s_mov_b32 %s, 0' % s(sWoff)); A('s_mov_b32 %s, 0' % s(sXoff))
    A('s_waitcnt lgkmcnt(0)')
    A('s_add_u32 %s, s4, %s' % (s(sX), s(sT0))); A('s_addc_u32 %s, s5, 0' % s(sX + 1))
    A('s_add_u32 %s, s10, %s' % (s(sWq), s(sT1))); A('s_addc_u32 %s, s11, 0' % s(sWq + 1))
    def x_issue(slot):
        return ['s_add_u32 m0, %s, %d' % (s(sXm0), slot * XSLOT),
                's_add_u32 %s, %s, %s' % (s(sT1), s(sXoff), s(sXa1)),
                dma(vXd, sX, s(sXoff), 0, cfg.x_pol), dma(vXd + 1, sX, s(sXoff), 1024, cfg.x_pol),
                's_add_u32 m0, %s, %d' % (s(sXm1), slot * XSLOT),
                's_add_u32 %s, %s, 128' % (s(sXoff), s(sXoff)),
                dma(vXd, sX, s(sT1), 0, cfg.x_pol), dma(vXd + 1, sX, s(sT1), 1024, cfg.x_pol),
                's_cmp_ge_u32 %s, 1280' % s(sXoff),
                's_cselect_b32 %s, 0x40000000, %s' % (s(sXoff), s(sXoff))]
    def w_issue(slot):
        return ['s_add_u32 m0, %s, %d' % (s(sW3k), WBASE + slot * TILE), 's_nop 0',
                dma(vWd, sWq, s(sWoff), 0, cfg.wq_pol), dma(vWd + 1, sWq, s(sWoff), 1024, cfg.wq_pol),
                dma(vWd + 2, sWq, s(sWoff), 2048, cfg.wq_pol),
                's_add_u32 %s, %s, %d' % (s(sWoff), s(sWoff), 32 * 12288)]
    def x_reads(slot):
        return [('ds_read_b128 %s, %s offset:%d' % (v(QF + 16 * slot + 4 * s3, 4), v(vXa + s3), slot * XSLOT), 'x') for s3 in range(4)]
    qpro = [x_issue(0), w_issue(0), x_issue(1), w_issue(1), w_issue(2)]
    A('s_cmp_eq_u32 %s, 0' % s(sG)); A('s_cbranch_scc0 L_p0')
    for l in qpro[:3]:
        for t in l: A(t)
    A('s_branch L_p1')
    A('L_p0:')
    if cfg.codepf:
        A('s_getpc_b64 %s' % s(70, 2))
        A('L_pc:')
        A('s_and_b32 %s, %s, 7' % (s(sT1), s(sB))); A('s_lshl_b32 %s, %s, 2' % (s(sT1), s(sT1)))
        A('s_add_u32 %s, %s, %s' % (s(sT1), s(sT1), s(sWv)))
        A('s_mul_i32 %s, %s, CODE_SHARE-0' % (s(sT1), s(sT1)))
        A('v_lshlrev_b32 %s, 7, %s' % (v(b), v(L)))
        A('v_min_u32 %s, CODE_SHARE-128, %s' % (v(b), v(b)))
        A('v_add_u32 %s, %s, %s' % (v(b), s(sT1), v(b)))
        A('v_min_u32 %s, CODE_LAST-0, %s' % (v(b), v(b)))
        A('global_load_dword %s, %s, %s' % (v(S + 1), v(b), s(70, 2)))
    if cfg.warm & 2:
        A('s_and_b32 %s, %s, 1' % (s(sT1), s(sHp))); A('s_lshl_b32 %s, %s, 2' % (s(sT1), s(sT1)))
        A('s_add_u32 %s, %s, %s' % (s(sT1), s(sT1), s(sWv)))
        A('s_mul_i32 %s, %s, %d' % (s(sT1), s(sT1), 14 * 1280))
        A('v_lshlrev_b32 %s, 7, %s' % (v(b), v(L)))
        A('v_min_u32 %s, %d, %s' % (v(c), 11 * 128, v(b)))
        A('buffer_load_dword %s, %s, %s, %s offen%s' % (v(S), v(b), s(sX, 4), s(sT1), cfg.x_pol))
        A('s_add_u32 %s, %s, 8192' % (s(sT1), s(sT1)))
        A('buffer_load_dword %s, %s, %s, %s offen%s' % (v(S), v(b), s(sX, 4), s(sT1), cfg.x_pol))
        A('s_add_u32 %s, %s, 8192' % (s(sT1), s(sT1)))
        A('buffer_load_dword %s, %s, %s, %s offen%s' % (v(S), v(c), s(sX, 4), s(sT1), cfg.x_pol))
    if cfg.warm & 4:
        A('s_mul_i32 %s, %s, 8960' % (s(sT1), s(sHp)))
        A('s_mul_i32 %s, %s, 2304' % (s(sT2), s(sWv))); A('s_add_u32 %s, %s, %s' % (s(sT1), s(sT1), s(sT2)))
        A('v_min_u32 %s, 17, %s' % (v(b), v(L)))
        A('v_lshlrev_b32 %s, 7, %s' % (v(b), v(b)))
        A('buffer_load_dword %s, %s, %s, %s offen%s' % (v(S), v(b), s(sX, 4), s(sT1), cfg.x_pol))
    if cfg.warm & 1:
        A('s_lshl_b32 %s, %s, 2' % (s(sT1), s(sB))); A('s_add_u32 %s, %s, %s' % (s(sT1), s(sT1), s(sWv)))
        A('s_mul_i32 %s, %s, %d' % (s(sT1), s(sT1), 10 * 12288))
        A('s_mul_i32 %s, %s, 768' % (s(sT2), s(sHp))); A('s_add_u32 %s, %s, %s' % (s(sT1), s(sT1), s(sT2)))
        A('s_mov_b32 %s, s10' % s(sWo)); A('s_mov_b32 %s, s11' % s(sWo + 1))
        A('s_mov_b32 %s, 7864320' % s(sWo + 2)); A('s_mov_b32 %s, 0x20000' % s(sWo + 3))
        A('v_min_u32 %s, 59, %s' % (v(a), v(L)))
        A('v_mul_u32_u24 %s, 43, %s' % (v(b), v(a)))
        A('v_lshrrev_b32 %s, 8, %s' % (v(b), v(b)))
        A('v_mul_u32_u24 %s, %d, %s' % (v(b), 12288 - 768, v(b)))
        A('v_lshl_add_u32 %s, %s, 7, %s' % (v(b), v(a), v(b)))
        A('buffer_load_dword %s, %s, %s, %s offen%s' % (v(S), v(b), s(sWo, 4), s(sT1), cfg.warm_pol))
    A('L_p1:')
    A('s_lshl_b32 %s, %s, 4' % (s(sT0), s(sB))); A('s_add_u32 %s, %s, %s' % (s(sT0), s(sT0), s(sHp)))
    A('s_mul_i32 %s, %s, 393216' % (s(sT1), s(sT0)))
    A('s_add_u32 %s, s6, %s' % (s(sK), s(sT1))); A('s_addc_u32 %s, s7, 0' % s(sK + 1))
    A('s_mov_b32 %s, 393216' % s(sK + 2)); A('s_mov_b32 %s, 0x20000' % s(sK + 3))
    A('s_add_u32 %s, s8, %s' % (s(sV), s(sT1))); A('s_addc_u32 %s, s9, 0' % s(sV + 1))
    A('s_mov_b32 %s, 393216' % s(sV + 2)); A('s_mov_b32 %s, 0x20000' % s(sV + 3))
    A('s_mul_i32 %s, %s, 163840' % (s(sT1), s(sT0)))
    A('s_add_u32 %s, s14, %s' % (s(sP), s(sT1))); A('s_addc_u32 %s, s15, 0' % s(sP + 1))
    A('s_mov_b32 %s, 163840' % s(sP + 2)); A('s_mov_b32 %s, 0x20000' % s(sP + 3))
    A('s_mov_b32 %s, s12' % s(sWo)); A('s_mov_b32 %s, s13' % s(sWo + 1))
    A('s_mov_b32 %s, 7864320' % s(sWo + 2)); A('s_mov_b32 %s, 0x20000' % s(sWo + 3))
    A('s_mul_i32 %s, %s, 491520' % (s(sO1), s(sHp)))
    A('s_mul_i32 %s, %s, 6144' % (s(sW6k), s(sWv)))
    A('s_mul_i32 %s, %s, %d' % (s(sEx), s(sWv), TILE))
    A('s_lshl_b32 %s, %s, 11' % (s(sSt), s(sWv)))
    for p in range(3):
        A('v_mul_u32_u24 %s, 384, %s' % (v(e), v(vKd + p)))
        A('v_subrev_u32 %s, %d, %s' % (v(e), 1024 * p, v(e)))
        A('v_bfe_u32 %s, %s, 1, 3' % (v(d), v(vKd + p)))
        A('v_lshlrev_b32 %s, 2, %s' % (v(c), v(d)))
        A('v_and_b32 %s, 4, %s' % (v(c), v(c)))
        A('v_xor_b32 %s, %s, %s' % (v(d), v(vVd + p), v(d)))
        A('v_xor_b32 %s, %s, %s' % (v(c), v(vVd + p), v(c)))
        A('v_lshl_add_u32 %s, %s, 4, %s' % (v(vKd + p), v(d), v(e)))
        A('v_lshl_add_u32 %s, %s, 4, %s' % (v(vVd + p), v(c), v(e)))
    A('v_lshrrev_b32 %s, 5, %s' % (v(Hh), v(L)))
    A('v_and_b32 %s, 15, %s' % (v(I16), v(L)))
    A('v_bfe_u32 %s, %s, 4, 1' % (v(U), v(L)))
    A('v_and_b32 %s, 31, %s' % (v(a), v(L)))
    A('v_bfe_u32 %s, %s, 1, 3' % (v(b), v(a)))
    A('v_xor_b32 %s, %s, %s' % (v(b), v(b), v(Hh)))
    A('v_mul_u32_u24 %s, 384, %s' % (v(a), v(a)))
    for s3 in range(4):
        A('v_xor_b32 %s, %d, %s' % (v(c), 2 * s3, v(b)))
        A('v_lshl_add_u32 %s, %s, 4, %s' % (v(vKa + s3), v(c), v(a)))
    A('v_and_b32 %s, %s, %s' % (v(a), s(sHi), v(L)))
    A('v_lshlrev_b32 %s, 7, %s' % (v(a), v(a)))
    A('v_add_u32 %s, %s, %s' % (v(a), s(sXm0), v(a)))
    for s3 in range(4):
        A('v_xor_b32 %s, %d, %s' % (v(c), 2 * s3, v(b)))
        A('v_lshl_add_u32 %s, %s, 4, %s' % (v(vXa + s3), v(c), v(a)))
    A('v_lshrrev_b32 %s, 2, %s' % (v(a), v(I16)))
    A('v_lshl_add_u32 %s, %s, 2, %s' % (v(b), v(Hh), v(a)))
    A('v_mul_u32_u24 %s, 384, %s' % (v(c), v(b)))
    A('v_lshl_add_u32 %s, %s, 5, %s' % (v(c), v(U), v(c)))
    A('v_and_b32 %s, 3, %s' % (v(d), v(I16)))
    A('v_lshl_add_u32 %s, %s, 3, %s' % (v(c), v(d), v(c)))
    A('v_lshrrev_b32 %s, 3, %s' % (v(e), v(I16)))
    A('v_lshl_add_u32 %s, %s, 6, %s' % (v(vVa), v(e), v(c)))
    A('v_xor_b32 %s, 64, %s' % (v(vVa + 1), v(vVa)))
    A('v_lshlrev_b32 %s, 7, %s' % (v(c), v(b)))
    A('v_lshl_add_u32 %s, %s, 6, %s' % (v(c), v(e), v(c)))
    A('v_lshl_add_u32 %s, %s, 4, %s' % (v(c), v(U), v(c)))
    A('v_and_b32 %s, 1, %s' % (v(d), v(I16)))
    A('v_lshl_add_u32 %s, %s, 5, %s' % (v(c), v(d), v(c)))
    A('v_bfe_u32 %s, %s, 1, 1' % (v(b), v(I16)))
    A('v_lshl_add_u32 %s, %s, 3, %s' % (v(vOa), v(b), v(c)))
    A('v_lshl_add_u32 %s, %s, 3, %s' % (v(a), v(Hh), v(a)))
    A('v_mul_u32_u24 %s, 384, %s' % (v(c), v(a)))
    A('v_lshl_add_u32 %s, %s, 5, %s' % (v(c), v(U), v(c)))
    A('v_lshl_add_u32 %s, %s, 4, %s' % (v(c), v(d), v(c)))
    A('v_lshl_add_u32 %s, %s, 3, %s' % (v(c), v(b), v(c)))
    A('v_add_u32 %s, %d, %s' % (v(c), WBASE, v(c)))
    A('v_lshl_add_u32 %s, %s, 6, %s' % (v(vWa), v(e), v(c)))
    A('v_xor_b32 %s, 64, %s' % (v(vWa + 1), v(vWa)))
    A('s_mul_i32 %s, %s, %d' % (s(sT0), s(sWv), 48 * 1280))
    A('v_lshrrev_b32 %s, 3, %s' % (v(a), v(L)))
    A('v_mul_u32_u24 %s, 1280, %s' % (v(a), v(a)))
    A('v_and_b32 %s, 7, %s' % (v(b), v(L)))
    A('v_lshlrev_b32 %s, 2, %s' % (v(c), v(U)))
    A('v_xor_b32 %s, %s, %s' % (v(b), v(b), v(c)))
    A('v_lshlrev_b32 %s, 4, %s' % (v(b), v(b)))
    A('v_add3_u32 %s, %s, %s, %s' % (v(vOd), v(a), v(b), s(sT0)))
    A('v_lshlrev_b32 %s, 4, %s' % (v(vL16), v(L)))
    cc = math.log2(math.e) / math.sqrt(192.0)
    A('s_mov_b32 %s, 0x%08x' % (s(sC), f32bits(cc)))
    A('s_mov_b32 %s, 0x%08x' % (s(sTc), f32bits(cfg.thr / cc)))
    A('s_mov_b32 %s, 0' % s(sFlag))
    A('s_mul_i32 %s, %s, %d' % (s(sCur), s(sG), (32 % NKV) * TILE))
    A('s_mul_i32 %s, %s, %d' % (s(sPrev), s(sG), (6 - 31 % NKV) * TILE))
    A('s_sub_u32 %s, %d, %s' % (s(sPrev), 6 * TILE, s(sPrev)))
    A('s_mul_i32 %s, %s, %d' % (s(sT0), s(sG), 16 * TILE))
    A('s_add_u32 %s, %s, %d' % (s(sKoff), s(sT0), 3 * TILE))
    A('s_add_u32 %s, %s, %d' % (s(sVoff), s(sT0), 2 * TILE))
    for i in list(range(ACC, ACC + 96)) + list(range(QF + 28, QF + 32)) + list(range(AF + 12, AF + 24)): A('v_mov_b32 %s, 0' % v(i))
    def q_frags(r):
        fr = []
        for ss in range(2):
            for dt in range(6):
                j = ss * 6 + dt; buf = AF + 4 * (j % 6)
                rds = ['ds_read_b64_tr_b16 %s, %s offset:%d' % (v(buf + 2 * vv, 2), v(vWa + (dt & 1)),
                        r * TILE + (16 * ss + 4 * vv) * 384 + 128 * (dt >> 1)) for vv in range(2)]
                fr.append((rds, mfma(ACC + 16 * dt, buf, QF + 16 * (r >> 1) + 4 * ((r & 1) * 2 + ss))))
        return fr
    qlag = [(None, f[1]) for f in q_frags(3)[-LAG:]]
    A('s_mov_b32 %s, 0' % s(sCnt))
    A('s_cmp_eq_u32 %s, 0' % s(sG)); A('s_cbranch_scc0 L_g2a')
    for l in qpro[3:]:
        for t in l: A(t)
    stamp(1)
    A('s_waitcnt vmcnt(13)')
    for t in x_reads(0): A(t[0])
    checks.append(('prologue', A.lines[m0:]))
    def q1_iter(final):
        prev = qlag
        for r in range(4):
            wb(10 if not final else [10, 6, 3, 0][r])
            fill = {}
            if r % 2 == 0:
                xi = x_issue(r >> 1); wi = w_issue((r + 3) & 3)
                if not final: fill = {0: xi[0:3], 1: xi[3:4], 2: xi[4:7], 3: xi[7:8], 4: wi[0:3], 5: wi[3:4], 6: wi[4:6]}
                elif r == 0: fill = {0: wi[0:3], 1: wi[3:4], 2: wi[4:6]}
            else:
                wi = w_issue((r + 3) & 3); xr = x_reads(((r + 1) >> 1) & 1)
                if not final: fill = {0: wi[0:3], 1: wi[3:4], 2: wi[4:6]}
                if not final or r == 1: fill = merge(fill, {5: xr[0:1], 6: xr[1:2], 7: xr[2:3], 8: xr[3:4]})
            prev = untag(pipe_step(A, prev, q_frags(r), fill))
    A('L_qloop:')
    m1 = A.mark()
    q1_iter(False)
    A('s_add_u32 %s, %s, 1' % (s(sCnt), s(sCnt))); A('s_cmp_lt_u32 %s, 4' % s(sCnt)); A('s_cbranch_scc1 L_qloop')
    body = A.lines[m1:]
    checks.append(('qloop', body + body))
    m1 = A.mark()
    q1_iter(True)
    A('s_waitcnt lgkmcnt(0)')
    A('s_branch L_qend')
    checks.append(('qloop end', body[-40:] + A.lines[m1:]))
    body = A.lines[m1:]
    A('L_g2a:')
    kv0 = ((sK, vKd, 0, 0), (sK, vKd, 1, 2), (sV, vVd, 0, 3), (sK, vKd, 2, 4), (sV, vVd, 1, 5), (sK, vKd, 3, 6))
    m1 = A.mark()
    for st in range(21):
        wb(13 if st == 20 else None, False)
        for i in range(6):
            if cfg.kv_at + i * cfg.kv_every == st:
                srd, vd, tile, slot = kv0[i]
                A('s_add_u32 m0, %s, %d' % (s(sW3k), slot * TILE))
                A('s_mov_b32 %s, %d' % (s(sT1), tile * TILE))
                for p in range(3): A(dma(vd + p, srd, s(sT1), 1024 * p, cfg.kv_pol))
        for l in {16: [x_issue(0)], 17: [w_issue(0)], 18: [w_issue(1), x_issue(1)], 19: [w_issue(2)]}.get(st, []):
            for t in l: A(t)
    assert cfg.kv_at + 5 * cfg.kv_every < 16
    stamp(1)
    for t in x_reads(0): A(t[0])
    checks.append(('g2 pro', A.lines[m1:]))
    A('L_q2loop:')
    m1 = A.mark()
    allf = q_frags(0) + q_frags(1) + q_frags(2) + q_frags(3)
    prev = qlag
    for cch in range(6):
        wb(10)
        if cch in (1, 4):
            xi = x_issue(0 if cch == 1 else 1)
            fill = {0: xi[0:3], 1: xi[3:4], 2: xi[4:7], 3: xi[7:10]}
        else:
            wi = w_issue({0: 3, 2: 0, 3: 1, 5: 2}[cch])
            fill = {0: wi[0:3], 1: wi[3:4], 2: wi[4:6]}
        if cch in (2, 5):
            xr = x_reads(1 if cch == 2 else 0)
            fill = merge(fill, {3: xr[0:1], 4: xr[1:2], 5: xr[2:3], 6: xr[3:4]})
        prev = untag(pipe_step(A, prev, allf[8 * cch:8 * cch + 8], fill))
    A('s_add_u32 %s, %s, 1' % (s(sCnt), s(sCnt))); A('s_cmp_lt_u32 %s, 5' % s(sCnt)); A('s_cbranch_scc1 L_q2loop')
    body2 = A.lines[m1:]
    checks.append(('q2loop', body2 + body2))
    wb()
    A('L_qend:')
    m2 = A.mark()
    stamp(2)
    for _, m in qlag: A(m)
    for i in range(4): A('v_add_u32 %s, %s, %s' % (v(vKr + i), s(sCur), v(vKa + i)))
    A('v_mov_b32 %s, 0xff800000' % v(vMref)); A('v_mov_b32 %s, 0xff800000' % v(vMthr)); A('v_mov_b32 %s, 0' % v(vMc))
    A('v_mov_b32 %s, 0' % v(vL0)); A('v_mov_b32 %s, 0' % v(vL1))
    for i in range(4): A('v_mov_b32 %s, 0' % v(P + 4 + i))
    for i in range(48):
        A('v_cvt_pk_bf16_f32 %s, %s, %s' % (v(QF + i), v(ACC + 2 * i), v(ACC + 2 * i + 1)))
    A('L_attn:')
    if cfg.prio: A('s_setprio %d' % cfg.prio)
    def k_frags():
        fr = []
        for ss in range(12):
            buf = AF + 4 * (ss % 6)
            fr.append((['ds_read_b128 %s, %s offset:%d' % (v(buf, 4), v(vKr + (ss & 3)), 128 * (ss >> 2))],
                       mfma(S, buf, QF + 4 * ss, '0' if ss == 0 else None)))
        return fr
    def v_frags():
        fr = []
        for ss in range(2):
            for dt in range(6):
                j = ss * 6 + dt; buf = AF + 4 * (j % 6)
                rds = ['ds_read_b64_tr_b16 %s, %s offset:%d' % (v(buf + 2 * vv, 2), v(vVr + (dt & 1)),
                        (16 * ss + 8 * vv) * 384 + 128 * (dt >> 1)) for vv in range(2)]
                fr.append((rds, mfma(ACC + 16 * dt, buf, P + 4 * ss)))
        return fr
    def kv_issue(srd, vd, soff):
        return ['s_cmp_ge_u32 %s, 393216' % s(soff), 's_cselect_b32 %s, %d, %s' % (s(sT0), TILE, s(sPrev)),
                's_add_u32 m0, %s, %s' % (s(sW3k), s(sT0)), 's_nop 0',
                dma(vd, srd, s(soff), 0, cfg.kv_pol), dma(vd + 1, srd, s(soff), 1024, cfg.kv_pol),
                dma(vd + 2, srd, s(soff), 2048, cfg.kv_pol),
                's_add_u32 %s, %s, %d' % (s(soff), s(soff), TILE)]
    ring_adv = ['s_mov_b32 %s, %s' % (s(sPrev), s(sCur)),
                's_add_u32 %s, %s, %d' % (s(sCur), s(sCur), TILE),
                's_cmp_ge_u32 %s, %d' % (s(sCur), NKV * TILE),
                's_cselect_b32 %s, 0, %s' % (s(sCur), s(sCur))]
    addr_k = ['v_add_u32 %s, %s, %s' % (v(vKr + i), s(sCur), v(vKa + i)) for i in range(4)]
    addr_v = ['v_add_u32 %s, %s, %s' % (v(vVr + i), s(sCur), v(vVa + i)) for i in range(2)]
    def sm_max(tag):
        t0, t1 = v(vT0), v(vT1)
        l = ['v_max3_f32 %s, %s, %s, %s' % (t0, v(S), v(S + 1), v(S + 2)),
             'v_max3_f32 %s, %s, %s, %s' % (t1, v(S + 3), v(S + 4), v(S + 5))]
        for k in range(5):
            tt = t0 if k % 2 == 0 else t1
            l.append('v_max3_f32 %s, %s, %s, %s' % (tt, tt, v(S + 6 + 2 * k), v(S + 7 + 2 * k)))
        l.append('v_max_f32 %s, %s, %s' % (t0, t0, t1))
        l.append('v_cmp_gt_f32 vcc, %s, %s' % (t0, v(vMthr)))
        l.append('s_cbranch_vccnz L_rare_%s' % tag)
        l.append('L_ret_%s:' % tag)
        return l
    def sm_exp():
        it = []
        fma = lambda j: ('v_fma_f32 %s, %s, %s, -%s' % (v(S + j), v(S + j), s(sC), v(vMc)), 1)
        ex = lambda j: ('v_exp_f32 %s, %s' % (v(S + j), v(S + j)), 2)
        ad = lambda j: ('v_add_f32 %s, %s, %s' % (v(vL0 + (j & 1)), v(vL0 + (j & 1)), v(S + j)), 1)
        for j in range(16 + 4):
            if j < 16: it.append(fma(j))
            if 0 <= j - 2 < 16: it.append(ex(j - 2))
            if 0 <= j - 4 < 16: it.append(ad(j - 4))
        return it
    cvt = lambda k: 'v_cvt_pk_bf16_f32 %s, %s, %s' % (v(P + k), v(S + 2 * k), v(S + 2 * k + 1))
    sp = spread(sm_exp(), [5, 6, 7, 8, 9, 10, 11, 100, 101])
    vfill_sm = {g: sp[g] for g in range(5, 12)}
    kfill_sm = {0: sp[100], 1: sp[101]}
    vfill_sm[11] = vfill_sm[11] + [cvt(0), cvt(1), cvt(2), cvt(3)]
    done = ' '.join(t for g in range(5, 12) for t in vfill_sm[g])
    for j in range(8): assert ('v_exp_f32 %s,' % v(S + j)) in done
    def resc(tag):
        return [cvt(4), cvt(5), cvt(6), cvt(7), 's_cmp_lg_u32 %s, 0' % s(sFlag), 's_cbranch_scc1 L_resc_%s' % tag, 'L_rret_%s:' % tag]
    rare_tags = []; resc_tags = []
    wb(0, False)
    stamp(3)
    ki = kv_issue(sK, vKd, sKoff)
    zero_acc = ['v_mov_b32 %s, 0' % v(ACC + i) for i in range(96)]
    fill = {0: ['s_cmp_eq_u32 %s, 0' % s(sG), 's_cbranch_scc1 L_k0skip'] + ki[0:7] + ['L_k0skip:', ki[7]] + ring_adv}
    for g in range(1, 9): fill[g] = zero_acc[(g - 1) * 6:g * 6]
    prev = untag(pipe_step(A, [], k_frags(), fill))
    wb(15)
    for k, (_, m) in enumerate(prev):
        A(m)
        for t in zero_acc[48 + 6 * k:54 + 6 * k]: A(t)
    for t in kv_issue(sV, vVd, sVoff) + ring_adv + addr_k + zero_acc[66:]: A(t)
    for t in sm_max('v0'): A(t)
    rare_tags.append('v0')
    for g in range(5, 12):
        for t in vfill_sm[g]: A(t)
    A('s_mov_b32 %s, 0' % s(sFlag))
    A('s_mov_b32 %s, 0' % s(sCnt))
    checks.append(('q->attn', body[-40:] + A.lines[m2:]))
    pre_loop = A.lines[-40:]
    A('L_aloop:')
    m3 = A.mark()
    pv_lag = [(None, f[1]) for f in v_frags()[-LAG:]]
    wb(15)
    fill = merge(kfill_sm, {2: resc('l'), 3: ki[0:5], 4: ki[5:6], 5: ki[6:8], 6: ring_adv, 7: addr_v})
    resc_tags.append('l')
    prev = untag(pipe_step(A, pv_lag, k_frags(), fill))
    wb(15)
    vi = kv_issue(sV, vVd, sVoff)
    fill = merge({0: vi[0:5], 1: vi[5:6], 2: vi[6:8] + ring_adv, 3: addr_k, 4: sm_max('l')}, vfill_sm)
    rare_tags.append('l')
    prev = untag(pipe_step(A, prev, v_frags(), fill))
    A('s_add_u32 %s, %s, 1' % (s(sCnt), s(sCnt))); A('s_cmp_lt_u32 %s, 15' % s(sCnt)); A('s_cbranch_scc1 L_aloop')
    abody = A.lines[m3:]
    checks.append(('aloop', pre_loop + abody + abody))
    stamp(4)
    lagpv = prev
    def st_slot(j): return SS[j % 3] if j <= 12 else SS[[3, 1, 2, 0][(j - 13) % 4]]
    def st_issue(j, part, n=3):
        off = ((j + 1) % 10) * 128 if j < 10 else 245760 + (j - 10) * 128
        off += part * n * 10240
        l = ['s_add_u32 m0, %s, %d' % (s(sW6k), st_slot(j) + part * n * 1024)]
        for i in range(n):
            l += ['s_add_u32 %s, %s, %d' % (s(sT0 + i), s(sO1), off + i * 9216), dma(vOd, sWo, s(sT0 + i), 1024 * i, cfg.wo_pol)]
        return l
    def st_load(j, i, dst):
        off = 245760 + (j - 10) * 128 + i * 10240
        return ['s_add_u32 %s, %s, %d' % (s(sT1), s(sO1), off),
                'buffer_load_dwordx4 %s, %s, %s, %s offen%s' % (v(dst, 4), v(vOd), s(sWo, 4), s(sT1), cfg.wo_pol)]
    stg = {14: 96, 15: 120, 16: 144, 17: 168, 18: 192, 19: 216}
    def attn_end(g, vm):
        base = 32 if g == 0 else 64
        if g == 0: wb(vm.need(('kv', base)))
        else: A('s_waitcnt lgkmcnt(0)')
        for k, (_, m) in enumerate(lagpv):
            A(m)
            for t in kfill_sm.get(k, []): A(t)
        for t in resc('e%d' % g)[4:] + ring_adv + addr_v: A(t)
        resc_tags.append('e%d' % g)
        for t in ['v_add_f32 %s, %s, %s' % (v(vT0), v(vL0), v(vL1)),
                  'v_mov_b32 %s, %s' % (v(vT1), v(vT0)), 's_nop 1',
                  'v_permlane32_swap_b32 %s, %s' % (v(vT0), v(vT1)),
                  'v_add_f32 %s, %s, %s' % (v(vT0), v(vT0), v(vT1)),
                  'v_rcp_f32 %s, %s' % (v(vF), v(vT0)),
                  'v_add_u32 %s, %s, %s' % (v(vOr), s(sEx), v(vL16)),
                  'v_mov_b32 %s, %s' % (v(vF + 1), v(vF))]: A(t)
        ld = []
        if g == 0: ld = [st_issue(0, 0)]; vm.add(('st', 0), 3)
        else: ld = [st_load(14, i, stg[14] + 4 * i) for i in range(6)]; vm.add(('st', 14), 6)
        for i in range(8): A('v_pk_mul_f32 %s, %s, %s' % (v(S + 2 * i, 2), v(S + 2 * i, 2), v(vF, 2)))
        for k in range(8): A(cvt(k))
        for i in range(48):
            A('v_pk_mul_f32 %s, %s, %s' % (v(ACC + 2 * i, 2), v(ACC + 2 * i, 2), v(vF, 2)))
            if i % 8 == 0 and i // 8 < len(ld):
                for t in ld[i // 8]: A(t)
        wb(vm.need(('kv', base + 1)), False)
        if g == 0:
            ii = st_issue(0, 1); fill = {3: ii[0:3], 4: ii[3:5], 5: ii[5:7]}
            vm.add(('st', 0), 3)
        else:
            fill = {2 + i: st_load(15, i, stg[15] + 4 * i) for i in range(6)}
            vm.add(('st', 15), 6)
        prev = untag(pipe_step(A, [], v_frags(), fill))
        wb(vm.need(('kv', base + 2)) if g == 0 else vm.need(('kv', 69)))
        for _, m in prev: A(m)
        if cfg.prio: A('s_setprio 0')
        if g == 0:
            for t in st_issue(1, 0): A(t)
            vm.add(('st', 1), 3)
            for i in range(48): A('v_cvt_pk_bf16_f32 %s, %s, %s' % (v(QF + i), v(ACC + 2 * i), v(ACC + 2 * i + 1)))
        else:
            A('s_nop 5')
            for dt in range(6):
                for k in range(8):
                    A('v_cvt_pk_bf16_f32 %s, %s, %s' % (v(ACC + 16 * dt + k), v(ACC + 16 * dt + 2 * k), v(ACC + 16 * dt + 2 * k + 1)))
                for u in range(2):
                    A('ds_write_b128 %s, %s offset:%d' % (v(vOr), v(ACC + 16 * dt + 4 * u, 4), 1024 * (2 * dt + u)))
                if cfg.early16:
                    for q in (2 * dt, 2 * dt + 1):
                        for t in st_load(16 + q // 6, q % 6, stg[16 + q // 6] + 4 * (q % 6)): A(t)
            if cfg.early16: vm.add(('st', 16), 6); vm.add(('st', 17), 6)
    A('s_cmp_lg_u32 %s, 0' % s(sG)); A('s_cbranch_scc1 L_g2tail')
    m5 = A.mark()
    vm = Vm([('kv', p) for p in range(32, 38) for _ in range(3)])
    attn_end(0, vm)
    stamp(5)
    def o_frags(acc, zero, extra=None):
        fr = []
        for ss in range(12):
            buf = AF + 4 * (ss % 6)
            rds = ['ds_read_b64_tr_b16 %s, %s offset:%d' % (v(buf + 2 * vv, 2), v(vOr), 2048 * ss + 1024 * vv) for vv in range(2)]
            if extra: rds = [extra(ss)] + rds
            fr.append((rds, mfma(acc, buf, QF + 4 * ss, '0' if (ss == 0 and zero) else None)))
        return fr
    def next_addr(u):
        if u % 2 == 0: return 'v_add_u32 %s, %d, %s' % (v(vOr), st_slot(u // 2), v(vOa))
        return 'v_xor_b32 %s, 64, %s' % (v(vOr), v(vOr))
    def pack_to(dst, acc):
        return ['v_cvt_pk_bf16_f32 %s, %s, %s' % (v(dst + k), v(acc + 2 * k), v(acc + 2 * k + 1)) for k in range(8)]
    wb(vm.need(('kv', 35)), False)
    for t in st_issue(1, 1): A(t)
    vm.add(('st', 1), 3)
    allo = []
    for n in range(20):
        f = o_frags(TACC[n & 1], True)
        f[0] = ([next_addr(n)] + f[0][0], f[0][1])
        allo += f
    gfill = {}
    for n in range(18):
        pk = pack_to(stash(n + 2), TACC[n & 1])
        gfill[12 * n + 11 + 4] = pk[0:4]; gfill[12 * n + 11 + 5] = pk[4:8]
    CH = cfg.och; nch = 240 // CH
    assert 240 % CH == 0 and 56 + nch <= 82
    pend = [(2, 0), (2, 1)]
    rel = 0
    prev = []
    for st in range(56, 85):
        k = st - 56
        w = None
        if k < nch: w = vm.need(('st', (CH * k + CH - 1) // 24))
        if w is None and st <= 57: w = vm.need(('kv', st - 20))
        wb(w, k <= nch)
        while rel < 10 and CH * k >= 24 * (rel + 1):
            pend += [(rel + 3, 0), (rel + 3, 1)]; rel += 1
        if st == 82: pend += [(13, 0), (13, 1)]
        ii = []
        if pend:
            j, hh = pend.pop(0)
            ii = st_issue(j, hh); vm.add(('st', j), 3)
        if k < nch:
            fill = {0: ii[0:3], 1: ii[3:5], 2: ii[5:7]}
            first = CH * k - len(prev)
            for gi in range(first, CH * k + CH - LAG):
                if gi in gfill: fill = merge(fill, {gi - first: gfill[gi]})
            prev = untag(pipe_step(A, prev, allo[CH * k:CH * k + CH], fill))
        else:
            if k == nch:
                for _, m in prev: A(m)
            for t in ii: A(t)
    assert not pend and rel == 10
    A(next_addr(20))
    A('v_add_u32 %s, %s, %s' % (v(vOd), s(sEx), v(vL16)))
    stamp(6)
    wb(vm.need(('st', 10)), False)
    wb(None, False)
    stamp(7)
    prev = []
    def outreg(t): return TACC[t & 1] if t in (0, 19) else stash(t + 1)
    def store(t):
        o = outreg(t)
        l = []
        for hh in range(2):
            l.append(['s_add_u32 %s, %s, %d' % (s(sT0), s(sSt), 8192 * t + 1024 * hh),
                      's_mov_b64 exec, %s' % s(sMask, 2),
                      'buffer_store_dwordx4 %s, %s, %s, %s offen%s' % (v(o + 4 * hh, 4), v(vL16), s(sP, 4), s(sT0), cfg.st_pol),
                      's_mov_b64 exec, -1'])
        return l
    def unpack(t):
        acc = TACC[t & 1]; sr = stash(t); un = []
        for k in list(range(4, 8)) + list(range(0, 4)):
            un.append('v_lshlrev_b32 %s, 16, %s' % (v(acc + 2 * k), v(sr + k)))
            un.append('v_and_b32 %s, 0xffff0000, %s' % (v(acc + 2 * k + 1), v(sr + k)))
        return un
    carry = {}
    nst = 1
    for u in range(20):
        reset = True
        if u % 2 == 0 and u > 0: wb(vm.need(('st', 10 + u // 2)))
        elif u > 0: reset = False
        fill = dict(carry); carry = {}
        if u >= 1:
            pk = pack_to(outreg(u - 1), TACC[(u - 1) & 1])
            un = unpack(u + 1) if u + 1 < 20 else [None] * 0
            fill = merge(fill, {5: pk[0:4], 6: pk[4:8], 9: un[0:4], 10: un[4:8], 11: un[8:12]})
            carry = {0: un[12:16]}
            if u == 1:
                sl = store(0); fill = merge(fill, {6: sl[0], 8: sl[1]}); vm.add('store', 2)
            gaps = [1, 3, 7, 10, 2, 4]; gi = 0
            cnt = 0
            while u >= cfg.st_delay and nst <= u - 2 and cnt < cfg.st_rate:
                sl = store(nst)
                fill = merge(fill, {gaps[gi]: sl[0], gaps[gi + 1]: sl[1]}); gi += 2
                vm.add('store', 2); nst += 1; cnt += 1
        last = 8 if u == 0 else 11
        if u < 19: fill = merge(fill, {last: [next_addr(20 + u + 1)]})
        extra = None
        if u == 0:
            extra = lambda ss: 'ds_read_b128 %s, %s offset:%d' % (v(QF + 4 * ss, 4), v(vOd), 1024 * ss)
        prev = pipe_step(A, untag(prev) if reset else prev, o_frags(TACC[u & 1], False, extra), fill, reset=reset, tagp='t%d' % u)
    A('s_waitcnt lgkmcnt(0)')
    for _, m in prev: A(m)
    while nst <= 18:
        for l in store(nst):
            for t in l: A(t)
        nst += 1
    A('s_nop 4')
    for t in pack_to(outreg(19), TACC[1]): A(t)
    for l in store(19):
        for t in l: A(t)
    checks.append(('g1 oproj', abody[-40:] + A.lines[m5:]))
    stamp(8)
    A('s_branch L_fin')
    A('L_g2tail:')
    m6 = A.mark()
    vm = Vm([('kv', p) for p in range(64, 70) for _ in range(3)])
    attn_end(1, vm)
    stamp(5); stamp(6)
    wb()
    stamp(7)
    for j in range(18 if cfg.early16 else 16, 20):
        for i in range(6):
            for t in st_load(j, i, stg[j] + 4 * i): A(t)
        vm.add(('st', j), 6)
    A('v_add_u32 %s, %s, %s' % (v(vOa), s(sW6k), v(vL16)))
    for j in range(10, 19):
        if 14 <= j + 3 <= 19:
            A('v_add_u32 %s, %d, %s' % (v(vOr), st_slot(j + 3), v(vOa)))
            A('s_waitcnt vmcnt(%d)' % vm.need(('st', j + 3)))
            for i in range(6): A('ds_write_b128 %s, %s offset:%d' % (v(vOr), v(stg[j + 3] + 4 * i, 4), 1024 * i))
        wb()
    checks.append(('g2 tail', abody[-40:] + A.lines[m6:]))
    stamp(8)
    A('L_fin:')
    if cfg.stamp:
        stamp(9)
        A('s_waitcnt vmcnt(0)')
        stamp(10); stamp(12, True)
        A('s_mov_b32 %s, s14' % s(sP)); A('s_mov_b32 %s, s15' % s(sP + 1)); A('s_mov_b32 %s, 402653184' % s(sP + 2))
        A('s_lshl_b32 %s, s2, 3' % s(sT0)); A('s_add_u32 %s, %s, %s' % (s(sT0), s(sT0), s(sW8)))
        A('s_lshl_b32 %s, %s, 7' % (s(sT0), s(sT0))); A('s_add_u32 %s, %s, %d' % (s(sT0), s(sT0), 64 << 20))
        if cfg.stamp == 3:
            A('s_lshl_b32 %s, s2, 3' % s(sT1)); A('s_add_u32 %s, %s, %s' % (s(sT1), s(sT1), s(sW8)))
            A('s_lshl_b32 %s, %s, 11' % (s(sT1), s(sT1))); A('s_add_u32 %s, %s, %d' % (s(sT1), s(sT1), 65 << 20))
            A('v_lshrrev_b32 v1, 2, %s' % v(vL16))
            for i in range(4):
                A('buffer_store_dword v%d, v1, %s, %s offen offset:%d' % (252 + i, s(sP, 4), s(sT1), 256 * i))
        A('v_mov_b32 v1, 0')
        A('s_mov_b64 exec, 1')
        for i in range(26):
            A('v_mov_b32 v0, %s' % s(76 + i))
            A('buffer_store_dword v0, v1, %s, %s offen offset:%d' % (s(sP, 4), s(sT0), 4 * i))
    A('L_end:')
    A('s_endpgm')
    A.trace = False
    for tag in rare_tags:
        m8 = A.mark()
        A('L_rare_%s:' % tag)
        A('v_mov_b32 %s, %s' % (v(vT1), v(vT0)))
        A('s_nop 1')
        A('v_permlane32_swap_b32 %s, %s' % (v(vT0), v(vT1)))
        A('v_max3_f32 %s, %s, %s, %s' % (v(vT0), v(vT0), v(vT1), v(vMref)))
        A('v_sub_f32 %s, %s, %s' % (v(vT1), v(vMref), v(vT0)))
        A('v_mul_f32 %s, %s, %s' % (v(vT1), s(sC), v(vT1)))
        A('v_exp_f32 %s, %s' % (v(vF), v(vT1)))
        A('v_mov_b32 %s, %s' % (v(vMref), v(vT0)))
        A('v_mul_f32 %s, %s, %s' % (v(vMc), s(sC), v(vT0)))
        A('v_add_f32 %s, %s, %s' % (v(vMthr), s(sTc), v(vT0)))
        A('v_mul_f32 %s, %s, %s' % (v(vL0), v(vL0), v(vF)))
        A('v_mul_f32 %s, %s, %s' % (v(vL1), v(vL1), v(vF)))
        A('v_mov_b32 %s, %s' % (v(vF + 1), v(vF)))
        A('s_mov_b32 %s, 1' % s(sFlag))
        A('s_branch L_ret_%s' % tag)
        checks.append(('rare', A.lines[m8:]))
    for tag in resc_tags:
        A('L_resc_%s:' % tag)
        A('s_nop 15')
        for i in range(48): A('v_pk_mul_f32 %s, %s, %s' % (v(ACC + 2 * i, 2), v(ACC + 2 * i, 2), v(vF, 2)))
        A('s_mov_b32 %s, 0' % s(sFlag))
        A('s_nop 1')
        A('s_branch L_rret_%s' % tag)
    A('.globl mha_k2_kernel'); A('.p2align 8'); A('.type mha_k2_kernel,@function'); A('mha_k2_kernel:')
    m9 = A.mark()
    A('s_cmp_ge_u32 s2, 256'); A('s_cbranch_scc1 L_end2')
    A('s_load_dwordx2 s[4:5], s[0:1], 40')
    A('s_load_dwordx2 s[8:9], s[0:1], 56')
    if cfg.dbg: A('s_memrealtime s[24:25]')
    A('v_readfirstlane_b32 s20, v0')
    A('v_and_b32 v2, 63, v0')
    A('s_lshr_b32 s20, s20, 6')
    A('s_lshr_b32 s13, s2, 4')
    A('s_and_b32 s14, s2, 15'); A('s_mul_i32 s14, s14, 5'); A('s_add_u32 s14, s14, s20')
    A('s_and_b32 s21, s14, 3')
    A('s_lshr_b32 s22, s14, 2')
    A('v_lshlrev_b32 v3, 4, v2')
    A('v_and_b32 v4, 31, v2')
    A('s_lshl_b32 s21, s21, 5')
    A('v_add_u32 v4, s21, v4')
    A('v_cmp_gt_u32 vcc, 112, v4')
    A('v_mul_u32_u24 v5, 1280, v4')
    A('v_lshrrev_b32 v6, 5, v2')
    A('v_lshl_add_u32 v5, v6, 5, v5')
    A('s_mul_i32 s15, s13, %d' % (16 * 163840))
    A('s_lshl_b32 s16, s14, 11'); A('s_add_u32 s15, s15, s16')
    A('s_mul_i32 s17, s13, 143360'); A('s_lshl_b32 s16, s22, 6'); A('s_add_u32 s17, s17, s16')
    A('s_mov_b32 s6, 2293760'); A('s_mov_b32 s7, 0x20000')
    A('s_mov_b32 s10, %d' % (256 * 163840)); A('s_mov_b32 s11, 0x20000')
    A('s_and_saveexec_b64 s[18:19], vcc')
    A('s_waitcnt lgkmcnt(0)')
    for p in range(16):
        A('buffer_load_dwordx4 %s, v3, s[8:11], s15 offen%s' % (v(32 + 8 * p, 4), cfg.r_pol))
        A('buffer_load_dwordx4 %s, v3, s[8:11], s15 offen offset:1024%s' % (v(36 + 8 * p, 4), cfg.r_pol))
        if p < 15: A('s_add_u32 s15, s15, 163840')
    for p in range(16):
        A('s_waitcnt vmcnt(%d)' % (2 * (15 - p)))
        for k in range(8):
            src = 32 + 8 * p + k
            if p == 0:
                A('v_lshlrev_b32 %s, 16, %s' % (v(8 + 2 * k), v(src)))
                A('v_and_b32 %s, 0xffff0000, %s' % (v(9 + 2 * k), v(src)))
            else:
                tt = 24 + 2 * (k & 1)
                A('v_lshlrev_b32 %s, 16, %s' % (v(tt), v(src)))
                A('v_and_b32 %s, 0xffff0000, %s' % (v(tt + 1), v(src)))
                A('v_pk_add_f32 %s, %s, %s' % (v(8 + 2 * k, 2), v(8 + 2 * k, 2), v(tt, 2)))
    for k in range(8): A('v_cvt_pk_bf16_f32 %s, %s, %s' % (v(24 + k), v(8 + 2 * k), v(9 + 2 * k)))
    A('buffer_store_dwordx4 v[24:27], v5, s[4:7], s17 offen')
    A('buffer_store_dwordx4 v[28:31], v5, s[4:7], s17 offen offset:16')
    checks.append(('k2', A.lines[m9:]))
    if cfg.dbg:
        A('s_waitcnt vmcnt(0)')
        A('s_memrealtime s[26:27]')
        A('s_cmp_lg_u32 s20, 0'); A('s_cbranch_scc1 L_end2')
        A('s_mov_b32 s28, 0')
        A('s_cmp_eq_u32 s2, 0'); A('s_cbranch_scc1 L_dbgw')
        A('s_mov_b32 s28, 32')
        A('s_cmp_eq_u32 s2, 133'); A('s_cbranch_scc0 L_end2')
        A('L_dbgw:')
        A('s_load_dwordx2 s[4:5], s[0:1], 48'); A('s_mov_b32 s6, 256'); A('s_mov_b32 s10, 402653184')
        A('s_lshl_b32 s29, s2, 10'); A('s_add_u32 s29, s29, %d' % (64 << 20))
        A('v_mov_b32 v1, 0'); A('s_mov_b64 exec, 1')
        for k, i in enumerate((11, 2, 4, 6, 8, 12)):
            A('buffer_load_dword v%d, v1, s[8:11], s29 offen offset:%d' % (10 + k, 8 * i))
        A('s_waitcnt vmcnt(0) lgkmcnt(0)')
        A('v_mov_b32 v16, s24'); A('v_mov_b32 v17, s26')
        for k in range(1, 8):
            A('v_sub_u32 v%d, v%d, v10' % (10 + k, 10 + k))
            A('buffer_store_dword v%d, v1, s[4:7], s28 offen offset:%d' % (10 + k, 4 * (k - 1)))
    A('L_end2:')
    A('s_endpgm')
    if cfg.codepf:
        A('.set CODE_LAST, L_end2-L_pc')
        A('.set CODE_SHARE, ((L_end2-L_pc)/32/128+1)*128')
    kl = [('mha_k1_kernel', 256, 102 if cfg.stamp else 80), ('mha_k2_kernel', 160, 32)]
    if cfg.extra_k:
        A('.globl mha_k3_kernel'); A('.p2align 8'); A('.type mha_k3_kernel,@function'); A('mha_k3_kernel:'); A('s_endpgm')
        kl.append(('mha_k3_kernel', 8, 8))
    A('.section .rodata,"a"')
    for name, nv, ns in kl:
        A('.p2align 6')
        A('.amdhsa_kernel %s' % name)
        A('  .amdhsa_next_free_vgpr %d' % nv); A('  .amdhsa_next_free_sgpr %d' % ns); A('  .amdhsa_accum_offset %d' % nv)
        A('  .amdhsa_group_segment_fixed_size 0'); A('  .amdhsa_kernarg_size 64'); A('  .amdhsa_user_sgpr_count 2')
        A('  .amdhsa_user_sgpr_kernarg_segment_ptr 1'); A('  .amdhsa_system_sgpr_workgroup_id_x 1')
        A('.end_amdhsa_kernel')
    nerr = 0
    for name, seq in checks:
        for e in check_seq(seq, name):
            print(e); nerr += 1
    assert nerr == 0, 'hazards'
    open(fname, 'w').write(A.text())

if __name__ == '__main__':
    cfg = Cfg()
    out = sys.argv[1] if len(sys.argv) > 1 else 'k.s'
    for kv in sys.argv[2:]:
        k, val = kv.split('=', 1)
        cur = getattr(cfg, k)
        setattr(cfg, k, type(cur)(val.replace('_', ' ')) if isinstance(cur, str) else type(cur)(val))
    gen(cfg, out)
```

```python
import re

REG = re.compile(r'\b([vsa])(?:\[(\d+):(\d+)\]|(\d+))')

def regs(text):
    out = set()
    for m in REG.finditer(text):
        k = m.group(1)
        if m.group(2) is not None:
            for i in range(int(m.group(2)), int(m.group(3)) + 1): out.add(k + str(i))
        else:
            out.add(k + m.group(4))
    if re.search(r'\bvcc\b', text): out.add('vcc')
    if re.search(r'\bm0\b', text): out.add('m0')
    if re.search(r'\bexec\b', text): out.add('exec')
    return out

TRANS = ('v_exp_f32', 'v_rcp_f32', 'v_log_f32', 'v_rsq_f32', 'v_sqrt_f32')

class Ins:
    def __init__(self, text):
        self.text = text
        t = text.split(';')[0].strip()
        self.label = t.endswith(':')
        self.directive = t.startswith('.')
        parts = t.split(None, 1)
        self.op = parts[0] if parts else ''
        ops = [o.strip() for o in parts[1].split(',')] if len(parts) > 1 else []
        self.ops = ops
        op = self.op
        self.w = set(); self.r = set(); self.srcc = set(); self.stdata = set()
        self.is_mfma = op.startswith('v_mfma')
        self.is_valu = op.startswith('v_') and not self.is_mfma
        self.is_trans = op in TRANS
        self.is_vmem = op.startswith('buffer_') or op.startswith('global_')
        self.is_ds = op.startswith('ds_')
        self.is_salu = op.startswith('s_')
        self.is_dma = self.is_vmem and re.search(r'\blds\b', t) is not None
        if self.label or self.directive or not op: return
        if self.is_mfma:
            self.w = regs(ops[0]); self.r = regs(ops[1]) | regs(ops[2]) | regs(ops[3]); self.srcc = regs(ops[3])
            self.ab = regs(ops[1]) | regs(ops[2])
        elif op.startswith('v_permlane'):
            self.w = regs(ops[0]) | regs(ops[1]); self.r = set(self.w)
        elif op.startswith('v_cmp'):
            self.w = regs(ops[0]); self.r = regs(','.join(ops[1:]))
        elif self.is_valu:
            self.w = regs(ops[0]); self.r = regs(','.join(ops[1:]))
            if op.startswith('v_fmac'): self.r |= self.w
        elif self.is_vmem:
            if self.is_dma:
                self.r = regs(','.join(ops)) | {'m0'}
            elif 'store' in op:
                self.r = regs(','.join(ops)); self.stdata = regs(ops[0]) if op.startswith('buffer') else regs(ops[1])
            else:
                self.w = regs(ops[0]); self.r = regs(','.join(ops[1:]))
        elif self.is_ds:
            if 'write' in op: self.r = regs(','.join(ops))
            else: self.w = regs(ops[0]); self.r = regs(','.join(ops[1:]))
        elif self.is_salu:
            if op.startswith('s_cmp') or op.startswith('s_cbranch') or op in ('s_branch', 's_barrier', 's_waitcnt', 's_nop', 's_endpgm', 's_setprio'):
                self.r = regs(','.join(ops))
            else:
                self.w = regs(ops[0]); self.r = regs(','.join(ops[1:]))
    def states(self):
        if self.label or self.directive or not self.op: return 0
        if self.op == 's_nop': return int(self.ops[0], 0) + 1
        return 1

def check_seq(seq, name=''):
    errs = []
    n = len(seq)
    for i, a in enumerate(seq):
        if a.states() == 0: continue
        dist = 0
        for j in range(i + 1, n):
            b = seq[j]
            if b.states() == 0: continue
            need = 0; why = ''
            vw = {x for x in a.w if x[0] in 'va' and x != 'vcc'}
            sw = {x for x in a.w if x[0] == 's' or x == 'vcc'}
            if a.is_mfma:
                p = 8 if '32x32x16' in a.op else 4
                dv = {8: 12, 4: 8}[p]
                if b.is_mfma:
                    if vw & b.ab: need, why = dv, 'mfma D->A/B'
                    elif (vw & b.srcc) and b.srcc != a.w: need, why = {8: 10, 4: 6}[p], 'mfma D->C partial'
                    elif (vw & b.w) and not (vw & b.srcc): need, why = dv, 'mfma D WAW (conservative)'
                elif (b.is_valu or b.is_vmem or b.is_ds) and (vw & (b.r | b.w)): need, why = dv, 'mfma D->valu/mem'
                if b.is_valu and (a.srcc & b.w):
                    k = {8: 7, 4: 3}[p]
                    if k > need: need, why = k, 'mfma C WAR'
            elif a.is_valu:
                if b.is_mfma and (vw & b.r): need, why = 2, 'valu->mfma'
                if b.op.startswith('v_permlane') and (vw & b.r): need, why = 2, 'valu->permlane'
                if b.op.startswith('v_readfirstlane') or b.op.startswith('v_readlane'):
                    if vw & b.r: need, why = max(need, 1), 'valu->readlane'
                if a.is_trans and b.is_valu and not b.is_trans and (vw & b.r): need, why = max(need, 1), 'trans->valu'
                if a.is_trans and b.is_mfma and (vw & b.r): need, why = 2, 'trans->mfma'
                if sw and b.is_vmem and (sw & b.r): need, why = 5, 'valu sgpr->vmem'
                if sw and b.is_valu and (sw & b.r): need, why = max(need, 2), 'valu sgpr->valu'
                if 'exec' in a.w and b.is_mfma: need, why = 4, 'valu exec->mfma'
            elif a.is_salu:
                if 'm0' in a.w and b.is_dma: need, why = 1, 'm0->dma'
            elif a.is_vmem and a.stdata and len(a.stdata) >= 3:
                if (b.w & a.stdata): need, why = (2 if b.is_valu else 1), 'store data WAR'
            if need > dist:
                errs.append('%s: hazard %s need %d have %d:\n    %s\n    %s' % (name, why, need, dist, a.text, b.text))
            dist += b.states()
            if dist >= 20: break
    return errs

class Asm:
    def __init__(self):
        self.lines = []
        self.ldsq = []
    trace = False
    nbar = 0
    def __call__(self, text):
        if self.trace == 6 and text == 's_barrier':
            E = lambda x: self.lines.append(Ins(x))
            k = self.nbar; self.nbar += 1
            pw = None
            if self.lines and self.lines[-1].op == 's_waitcnt': pw = self.lines.pop().text
            E('s_and_b32 m0, s75, 63'); E('s_cmp_lt_u32 s75, 64'); E('s_waitcnt lgkmcnt(0)')
            E('s_cbranch_scc0 L_trh%d' % k)
            E('v_writelane_b32 v253, s94, m0')
            E('s_branch L_tre%d' % k)
            E('L_trh%d:' % k)
            E('v_writelane_b32 v255, s94, m0')
            E('L_tre%d:' % k)
            E('s_add_u32 s75, s75, 1')
            if pw: E(pw)
            E('s_barrier'); E('s_memrealtime s[94:95]')
            return
        if self.trace and text == 's_barrier':
            E = lambda x: self.lines.append(Ins(x))
            pw = None
            if self.lines and self.lines[-1].op == 's_waitcnt': pw = self.lines.pop().text
            k = self.nbar; self.nbar += 1
            E('s_memtime s[90:91]')
            if pw: E(pw)
            E('s_barrier'); E('s_memtime s[94:95]')
            E('s_and_b32 m0, s75, 63'); E('s_cmp_lt_u32 s75, 64'); E('s_waitcnt lgkmcnt(0)')
            E('s_cbranch_scc0 L_trh%d' % k)
            E('v_writelane_b32 v252, s90, m0'); E('v_writelane_b32 v253, s94, m0')
            E('s_branch L_tre%d' % k)
            E('L_trh%d:' % k)
            E('v_writelane_b32 v254, s90, m0'); E('v_writelane_b32 v255, s94, m0')
            E('L_tre%d:' % k)
            E('s_add_u32 s75, s75, 1')
            return
        self.lines.append(Ins(text))
    def raw(self, text): self(text)
    def lds(self, text, tag):
        self(text); self.ldsq.append(tag)
    def wait_lds(self, tag):
        idx = [i for i, t in enumerate(self.ldsq) if t == tag]
        if not idx: return
        last = idx[-1]
        nleft = len(self.ldsq) - 1 - last
        nleft = min(nleft, 15)
        self('s_waitcnt lgkmcnt(%d)' % nleft)
        self.ldsq = self.ldsq[len(self.ldsq) - nleft:] if nleft else []
    def lds_reset(self): self.ldsq = []
    def mark(self): return len(self.lines)
    def text(self):
        out = []
        for i in self.lines:
            out.append(i.text if (i.label or i.directive or i.text.startswith(';')) else '    ' + i.text)
        return '\n'.join(out) + '\n'


class Vm:
    def __init__(self, init=()):
        self.q = list(init)
    def add(self, tag, n=1): self.q += [tag] * n
    def need(self, tag):
        idx = [i for i, t in enumerate(self.q) if t == tag]
        if not idx: return None
        n = len(self.q) - 1 - idx[-1]
        self.q = self.q[idx[-1] + 1:]
        assert n <= 63
        return n
```

```python
import sys, math, struct
from asmlib import Asm, check_seq, Ins, Vm

def f32bits(x): return struct.unpack('<I', struct.pack('<f', x))[0]

class Cfg:
    kv_pol = ' nt'
    wq_pol = ''
    wo_pol = ''
    x_pol = ''
    st_pol = ''
    r_pol = ''
    thr = 8.0
    prio = 0
    kv_at = 0
    dbg = 0
    extra_k = 0
    vw = 3.0
    kw = 4.5
    rot = 1
    pstride = 168192
    codepf = 1
    early16 = 1
    st_delay = 4
    st_rate = 2
    och = 10
    nostore = 0
    noload = 0
    warm = 0
    warm_step = 80
    warm_pol = ''
    kv_every = 3
    stamp = 0
    k2 = 1

TILE = 12288
NKV = 7
WBASE = NKV * TILE
XBASE = WBASE + 4 * TILE
XSLOT = 14336
LDS = 163840
LAG = 3
SS = [WBASE, WBASE + 24576, WBASE + 49152, 49152]

ACC = 0; QF = 96; S = 144; P = 160; AF = 168
vKa = 192; vKr = 196; vVa = 200; vVr = 202; vWa = 204; vXa = 206
vKd = 210; vVd = 213; vWd = 216; vXd = 219
vMref = 224; vMc = 225; vMthr = 226; vL0 = 227; vL1 = 228; vF = 230; vT0 = 221; vT1 = 222
SB = [144, 232]
T = 236
vOd = 248; vOa = 249; vOr = 250; vL16 = 251
TACC = [216, 232]
def stash(t):
    i = t - 2
    if i < 12: return 8 * i
    if i < 15: return 144 + 8 * (i - 12)
    return 192 + 8 * (i - 15)
sX = 16; sK = 20; sV = 24; sWq = 28; sWo = 32; sP = 36
sW8 = 40; sG = 41; sWv = 42; sB = 43; sHp = 44; sW3k = 45; sXm0 = 46; sXm1 = 47; sXa1 = 48; sCnt = 49
sWoff = 50; sXoff = 51; sCur = 52; sPrev = 53; sKoff = 54; sVoff = 55; sC = 56; sTc = 57; sFlag = 58
sW6k = 59; sO1 = 60; sSt = 61; sEx = 62; sMask = 64; sT0 = 66; sT1 = 67; sT2 = 68; sHi = 69; sRot = 63

def v(i, n=1): return 'v%d' % i if n == 1 else 'v[%d:%d]' % (i, i + n - 1)
def s(i, n=1): return 's%d' % i if n == 1 else 's[%d:%d]' % (i, i + n - 1)
def mfma(d, a, b, c=None):
    return 'v_mfma_f32_32x32x16_bf16 %s, %s, %s, %s' % (v(d, 16), v(a, 4), v(b, 4), v(d, 16) if c is None else c)

def pipe_step(A, prev, frags, fill, lag=LAG, reset=True, tagp='f'):
    n = len(frags)
    if reset: A.lds_reset()
    nxt = 0
    def rd():
        nonlocal nxt
        if nxt < n:
            for t in frags[nxt][0]:
                if t.startswith('ds_'): A.lds(t, (tagp, nxt))
                else: A(t)
            nxt += 1
    for _ in range(5 - len(prev)): rd()
    for t in fill.get(-1, []): emit(A, t)
    seq = list(prev) + [((tagp, j), frags[j][1]) for j in range(n - lag)]
    for k, (tag, m) in enumerate(seq):
        A.wait_lds(tag)
        A(m)
        rd()
        for t in fill.get(k, []): emit(A, t)
    assert nxt == n
    return [((tagp, j), frags[j][1]) for j in range(n - lag, n)]

def untag(prev): return [(None, m) for _, m in prev]

def emit(A, t):
    if isinstance(t, tuple): A.lds(t[0], t[1])
    else: A(t)

def spread(items, gaps):
    tot = sum(c for _, c in items)
    out = {g: [] for g in gaps}
    acc = 0.0
    for t, c in items:
        gi = min(len(gaps) - 1, int((acc + c / 2.0) / tot * len(gaps)))
        out[gaps[gi]].append(t); acc += c
    return out

def merge(*ds):
    out = {}
    for d in ds:
        for k, l in d.items(): out.setdefault(k, []).extend(l)
    return out

def dma(voff, srd, soff, off, pol):
    return 'buffer_load_dwordx4 %s, %s, %s offen offset:%d%s lds' % (v(voff), s(srd, 4), soff, off, pol)

def gen(cfg, fname):
    A = Asm()
    def stamp(i, real=False):
        if cfg.stamp == 5 and i in (1, 3, 4, 7):
            k = {1: 1, 3: 3, 4: 5, 7: 7}[i]
            A('s_memtime %s' % s(76 + 2 * k, 2)); A('s_memrealtime %s' % s(78 + 2 * k, 2)); A('s_waitcnt lgkmcnt(0)')
        elif cfg.stamp and (cfg.stamp < 3 or i in (0, 10, 11, 12)):
            A('%s %s' % ('s_memrealtime' if (real or (cfg.stamp == 2 and i not in (0, 10))) else 's_memtime', s(76 + 2 * i, 2)))
            A('s_waitcnt lgkmcnt(0)')
    def wb(vm=None, lg=True):
        t = []
        if vm is not None: t.append('vmcnt(%d)' % vm)
        if lg: t.append('lgkmcnt(0)')
        if t: A('s_waitcnt ' + ' '.join(t))
        A('s_barrier')
    checks = []
    A('; @launch kernel=mha_k1_kernel grid=(256,1,1) block=(512,1,1) lds=%d' % LDS)
    A('; @launch kernel=mha_k2_kernel grid=(256,1,1) block=(320,1,1) lds=0')
    for _ in range(cfg.extra_k): A('; @launch kernel=mha_k3_kernel grid=(256,1,1) block=(64,1,1) lds=0')
    A('.amdgcn_target "amdgcn-amd-amdhsa--gfx950"')
    A('.text'); A('.globl mha_k1_kernel'); A('.p2align 8'); A('.type mha_k1_kernel,@function'); A('mha_k1_kernel:')
    m0 = A.mark()
    A('s_cmp_ge_u32 s2, 256'); A('s_cbranch_scc1 L_end')
    A('s_load_dwordx8 s[4:11], s[0:1], 0')
    A('s_load_dwordx2 s[12:13], s[0:1], 32')
    A('s_load_dwordx2 s[14:15], s[0:1], 56')
    stamp(0); stamp(11, True)
    if cfg.stamp in (3, 6):
        A.trace = 6 if cfg.stamp == 6 else True
        A('s_mov_b32 s75, 0'); A('s_mov_b32 s94, s98')
        for i in range(252, 256): A('v_mov_b32 v%d, 0' % i)
    L = T; Hh = T + 1; I16 = T + 2; U = T + 3; a = T + 4; b = T + 5; c = T + 6; d = T + 7; e = T + 8
    A('v_readfirstlane_b32 %s, v0' % s(sW8))
    A('v_and_b32 %s, 63, v0' % v(L))
    A('s_lshr_b32 %s, %s, 6' % (s(sW8), s(sW8)))
    A('s_lshr_b32 %s, %s, 2' % (s(sG), s(sW8)))
    A('s_and_b32 %s, %s, 3' % (s(sWv), s(sW8)))
    A('s_and_b32 %s, s2, 7' % s(sT0))
    A('s_lshr_b32 %s, s2, 3' % s(sT1))
    A('s_lshr_b32 %s, %s, 1' % (s(sB), s(sT1)))
    A('s_and_b32 %s, %s, 1' % (s(sT1), s(sT1)))
    A('s_lshl_b32 %s, %s, 1' % (s(sHp), s(sT0)))
    A('s_add_u32 %s, %s, %s' % (s(sHp), s(sHp), s(sT1)))
    A('s_mul_i32 %s, %s, 3072' % (s(sW3k), s(sWv)))
    A('s_cmp_eq_u32 %s, 3' % s(sWv))
    A('s_cselect_b32 %s, 0, 2048' % s(sXm1)); A('s_cselect_b32 %s, 0, 20480' % s(sXa1))
    A('s_cselect_b32 %s, 15, 31' % s(sHi))
    A('s_cselect_b32 %s, 0xffff, -1' % s(sMask)); A('s_mov_b32 %s, %s' % (s(sMask + 1), s(sMask)))
    A('s_lshl_b32 %s, %s, 12' % (s(sXm0), s(sWv))); A('s_add_u32 %s, %s, %d' % (s(sXm0), s(sXm0), XBASE))
    A('s_add_u32 %s, %s, %s' % (s(sXm1), s(sXm1), s(sXm0)))
    A('s_mul_i32 %s, %s, %d' % (s(sT0), s(sWv), 32 * 1280))
    A('v_lshrrev_b32 %s, 3, %s' % (v(a), v(L)))
    A('v_lshrrev_b32 %s, 4, %s' % (v(b), v(L)))
    A('v_and_b32 %s, 7, %s' % (v(c), v(L)))
    A('v_xor_b32 %s, %s, %s' % (v(b), v(b), v(c)))
    A('v_mul_u32_u24 %s, 1280, %s' % (v(a), v(a)))
    A('v_add_u32 %s, %s, %s' % (v(a), s(sT0), v(a)))
    A('v_lshl_add_u32 %s, %s, 4, %s' % (v(vXd), v(b), v(a)))
    A('v_xor_b32 %s, 4, %s' % (v(b), v(b)))
    A('v_lshl_add_u32 %s, %s, 4, %s' % (v(vXd + 1), v(b), v(a)))
    A('v_add_u32 %s, %d, %s' % (v(vXd + 1), 8 * 1280 - 1024, v(vXd + 1)))
    A('s_lshl_b32 %s, %s, 3' % (s(sT0), s(sWv)))
    for p in range(3):
        A('v_add_u32 %s, %d, %s' % (v(a), 64 * p, v(L)))
        A('v_mul_u32_u24 %s, 171, %s' % (v(b), v(a)))
        A('v_lshrrev_b32 %s, 12, %s' % (v(b), v(b)))
        A('v_mul_u32_u24 %s, 24, %s' % (v(c), v(b)))
        A('v_sub_u32 %s, %s, %s' % (v(vVd + p), v(a), v(c)))
        A('v_add_u32 %s, %s, %s' % (v(vKd + p), s(sT0), v(b)))
        A('v_lshlrev_b32 %s, 1, %s' % (v(d), v(b)))
        A('v_and_b32 %s, 4, %s' % (v(d), v(d)))
        A('v_xor_b32 %s, %s, %s' % (v(d), v(vVd + p), v(d)))
        A('v_mul_u32_u24 %s, 12288, %s' % (v(e), v(vKd + p)))
        A('v_lshl_add_u32 %s, %s, 4, %s' % (v(d), v(d), v(e)))
        A('v_subrev_u32 %s, %d, %s' % (v(vWd + p), 1024 * p, v(d)))
    A('s_mul_i32 %s, %s, 143360' % (s(sT0), s(sB)))
    A('s_mul_i32 %s, %s, 768' % (s(sT1), s(sHp)))
    A('s_mov_b32 %s, 143360' % s(sX + 2)); A('s_mov_b32 %s, 0x20000' % s(sX + 3))
    A('s_sub_u32 %s, 7864320, %s' % (s(sWq + 2), s(sT1))); A('s_mov_b32 %s, 0x20000' % s(sWq + 3))
    A('s_mov_b32 %s, 0' % s(sWoff)); A('s_mov_b32 %s, 0' % s(sXoff))
    A('s_waitcnt lgkmcnt(0)')
    A('s_add_u32 %s, s4, %s' % (s(sX), s(sT0))); A('s_addc_u32 %s, s5, 0' % s(sX + 1))
    A('s_add_u32 %s, s10, %s' % (s(sWq), s(sT1))); A('s_addc_u32 %s, s11, 0' % s(sWq + 1))
    def x_issue(slot):
        return ['s_add_u32 m0, %s, %d' % (s(sXm0), slot * XSLOT),
                's_add_u32 %s, %s, %s' % (s(sT1), s(sXoff), s(sXa1)),
                dma(vXd, sX, s(sXoff), 0, cfg.x_pol), dma(vXd + 1, sX, s(sXoff), 1024, cfg.x_pol),
                's_add_u32 m0, %s, %d' % (s(sXm1), slot * XSLOT),
                's_add_u32 %s, %s, 128' % (s(sXoff), s(sXoff)),
                dma(vXd, sX, s(sT1), 0, cfg.x_pol), dma(vXd + 1, sX, s(sT1), 1024, cfg.x_pol),
                's_cmp_ge_u32 %s, 1280' % s(sXoff),
                's_cselect_b32 %s, 0x40000000, %s' % (s(sXoff), s(sXoff))]
    def w_issue(slot):
        return ['s_add_u32 m0, %s, %d' % (s(sW3k), WBASE + slot * TILE), 's_nop 0',
                dma(vWd, sWq, s(sWoff), 0, cfg.wq_pol), dma(vWd + 1, sWq, s(sWoff), 1024, cfg.wq_pol),
                dma(vWd + 2, sWq, s(sWoff), 2048, cfg.wq_pol),
                's_add_u32 %s, %s, %d' % (s(sWoff), s(sWoff), 32 * 12288)]
    def x_reads(slot):
        return [('ds_read_b128 %s, %s offset:%d' % (v(QF + 16 * slot + 4 * s3, 4), v(vXa + s3), slot * XSLOT), 'x') for s3 in range(4)]
    qpro = [x_issue(0), w_issue(0), x_issue(1), w_issue(1), w_issue(2)]
    A('s_cmp_eq_u32 %s, 0' % s(sG)); A('s_cbranch_scc1 L_p0')
    for l in qpro[:3]:
        for t in l: A(t)
    A('s_branch L_p1')
    A('L_p0:')
    if cfg.codepf:
        A('s_getpc_b64 %s' % s(70, 2))
        A('L_pc:')
        A('s_and_b32 %s, %s, 7' % (s(sT1), s(sB))); A('s_lshl_b32 %s, %s, 2' % (s(sT1), s(sT1)))
        A('s_add_u32 %s, %s, %s' % (s(sT1), s(sT1), s(sWv)))
        A('s_mul_i32 %s, %s, CODE_SHARE-0' % (s(sT1), s(sT1)))
        A('v_lshlrev_b32 %s, 7, %s' % (v(b), v(L)))
        A('v_min_u32 %s, CODE_SHARE-128, %s' % (v(b), v(b)))
        A('v_add_u32 %s, %s, %s' % (v(b), s(sT1), v(b)))
        A('v_min_u32 %s, CODE_LAST-0, %s' % (v(b), v(b)))
        A('global_load_dword %s, %s, %s' % (v(S + 1), v(b), s(70, 2)))
    if cfg.warm & 2:
        A('s_and_b32 %s, %s, 1' % (s(sT1), s(sHp))); A('s_lshl_b32 %s, %s, 2' % (s(sT1), s(sT1)))
        A('s_add_u32 %s, %s, %s' % (s(sT1), s(sT1), s(sWv)))
        A('s_mul_i32 %s, %s, %d' % (s(sT1), s(sT1), 14 * 1280))
        A('v_lshlrev_b32 %s, 7, %s' % (v(b), v(L)))
        A('v_min_u32 %s, %d, %s' % (v(c), 11 * 128, v(b)))
        A('buffer_load_dword %s, %s, %s, %s offen%s' % (v(S), v(b), s(sX, 4), s(sT1), cfg.x_pol))
        A('s_add_u32 %s, %s, 8192' % (s(sT1), s(sT1)))
        A('buffer_load_dword %s, %s, %s, %s offen%s' % (v(S), v(b), s(sX, 4), s(sT1), cfg.x_pol))
        A('s_add_u32 %s, %s, 8192' % (s(sT1), s(sT1)))
        A('buffer_load_dword %s, %s, %s, %s offen%s' % (v(S), v(c), s(sX, 4), s(sT1), cfg.x_pol))
    if cfg.warm & 4:
        A('s_mul_i32 %s, %s, 8960' % (s(sT1), s(sHp)))
        A('s_mul_i32 %s, %s, 2304' % (s(sT2), s(sWv))); A('s_add_u32 %s, %s, %s' % (s(sT1), s(sT1), s(sT2)))
        A('v_min_u32 %s, 17, %s' % (v(b), v(L)))
        A('v_lshlrev_b32 %s, 7, %s' % (v(b), v(b)))
        A('buffer_load_dword %s, %s, %s, %s offen%s' % (v(S), v(b), s(sX, 4), s(sT1), cfg.x_pol))
    if cfg.warm & 1:
        A('s_lshl_b32 %s, %s, 2' % (s(sT1), s(sB))); A('s_add_u32 %s, %s, %s' % (s(sT1), s(sT1), s(sWv)))
        A('s_mul_i32 %s, %s, %d' % (s(sT1), s(sT1), 10 * 12288))
        A('s_mul_i32 %s, %s, 768' % (s(sT2), s(sHp))); A('s_add_u32 %s, %s, %s' % (s(sT1), s(sT1), s(sT2)))
        A('s_mov_b32 %s, s10' % s(sWo)); A('s_mov_b32 %s, s11' % s(sWo + 1))
        A('s_mov_b32 %s, 7864320' % s(sWo + 2)); A('s_mov_b32 %s, 0x20000' % s(sWo + 3))
        A('v_min_u32 %s, 59, %s' % (v(a), v(L)))
        A('v_mul_u32_u24 %s, 43, %s' % (v(b), v(a)))
        A('v_lshrrev_b32 %s, 8, %s' % (v(b), v(b)))
        A('v_mul_u32_u24 %s, %d, %s' % (v(b), 12288 - 768, v(b)))
        A('v_lshl_add_u32 %s, %s, 7, %s' % (v(b), v(a), v(b)))
        A('buffer_load_dword %s, %s, %s, %s offen%s' % (v(S), v(b), s(sWo, 4), s(sT1), cfg.warm_pol))
    A('L_p1:')
    A('s_lshl_b32 %s, %s, 4' % (s(sT0), s(sB))); A('s_add_u32 %s, %s, %s' % (s(sT0), s(sT0), s(sHp)))
    A('s_mul_i32 %s, %s, 393216' % (s(sT1), s(sT0)))
    A('s_add_u32 %s, s6, %s' % (s(sK), s(sT1))); A('s_addc_u32 %s, s7, 0' % s(sK + 1))
    A('s_mov_b32 %s, 393216' % s(sK + 2)); A('s_mov_b32 %s, 0x20000' % s(sK + 3))
    A('s_add_u32 %s, s8, %s' % (s(sV), s(sT1))); A('s_addc_u32 %s, s9, 0' % s(sV + 1))
    A('s_mov_b32 %s, 393216' % s(sV + 2)); A('s_mov_b32 %s, 0x20000' % s(sV + 3))
    A('s_mul_i32 %s, %s, %d' % (s(sT1), s(sT0), cfg.pstride))
    A('s_add_u32 %s, s14, %s' % (s(sP), s(sT1))); A('s_addc_u32 %s, s15, 0' % s(sP + 1))
    A('s_mov_b32 %s, 163840' % s(sP + 2)); A('s_mov_b32 %s, 0x20000' % s(sP + 3))
    A('s_mov_b32 %s, s12' % s(sWo)); A('s_mov_b32 %s, s13' % s(sWo + 1))
    A('s_mov_b32 %s, 7864320' % s(sWo + 2)); A('s_mov_b32 %s, 0x20000' % s(sWo + 3))
    A('s_mul_i32 %s, %s, 491520' % (s(sO1), s(sHp)))
    A('s_mul_i32 %s, %s, 6144' % (s(sW6k), s(sWv)))
    A('s_mul_i32 %s, %s, %d' % (s(sEx), s(sWv), TILE))
    A('s_lshl_b32 %s, %s, 11' % (s(sSt), s(sWv)))
    for p in range(3):
        A('v_mul_u32_u24 %s, 384, %s' % (v(e), v(vKd + p)))
        A('v_subrev_u32 %s, %d, %s' % (v(e), 1024 * p, v(e)))
        A('v_bfe_u32 %s, %s, 1, 3' % (v(d), v(vKd + p)))
        A('v_lshlrev_b32 %s, 2, %s' % (v(c), v(d)))
        A('v_and_b32 %s, 4, %s' % (v(c), v(c)))
        A('v_xor_b32 %s, %s, %s' % (v(d), v(vVd + p), v(d)))
        A('v_xor_b32 %s, %s, %s' % (v(c), v(vVd + p), v(c)))
        A('v_lshl_add_u32 %s, %s, 4, %s' % (v(vKd + p), v(d), v(e)))
        A('v_lshl_add_u32 %s, %s, 4, %s' % (v(vVd + p), v(c), v(e)))
    A('v_lshrrev_b32 %s, 5, %s' % (v(Hh), v(L)))
    A('v_and_b32 %s, 15, %s' % (v(I16), v(L)))
    A('v_bfe_u32 %s, %s, 4, 1' % (v(U), v(L)))
    A('v_and_b32 %s, 31, %s' % (v(a), v(L)))
    A('v_bfe_u32 %s, %s, 1, 3' % (v(b), v(a)))
    A('v_xor_b32 %s, %s, %s' % (v(b), v(b), v(Hh)))
    A('v_mul_u32_u24 %s, 384, %s' % (v(a), v(a)))
    for s3 in range(4):
        A('v_xor_b32 %s, %d, %s' % (v(c), 2 * s3, v(b)))
        A('v_lshl_add_u32 %s, %s, 4, %s' % (v(vKa + s3), v(c), v(a)))
    A('v_and_b32 %s, %s, %s' % (v(a), s(sHi), v(L)))
    A('v_lshlrev_b32 %s, 7, %s' % (v(a), v(a)))
    A('v_add_u32 %s, %s, %s' % (v(a), s(sXm0), v(a)))
    for s3 in range(4):
        A('v_xor_b32 %s, %d, %s' % (v(c), 2 * s3, v(b)))
        A('v_lshl_add_u32 %s, %s, 4, %s' % (v(vXa + s3), v(c), v(a)))
    A('v_lshrrev_b32 %s, 2, %s' % (v(a), v(I16)))
    A('v_lshl_add_u32 %s, %s, 2, %s' % (v(b), v(Hh), v(a)))
    A('v_mul_u32_u24 %s, 384, %s' % (v(c), v(b)))
    A('v_lshl_add_u32 %s, %s, 5, %s' % (v(c), v(U), v(c)))
    A('v_and_b32 %s, 3, %s' % (v(d), v(I16)))
    A('v_lshl_add_u32 %s, %s, 3, %s' % (v(c), v(d), v(c)))
    A('v_lshrrev_b32 %s, 3, %s' % (v(e), v(I16)))
    A('v_lshl_add_u32 %s, %s, 6, %s' % (v(vVa), v(e), v(c)))
    A('v_xor_b32 %s, 64, %s' % (v(vVa + 1), v(vVa)))
    A('v_lshlrev_b32 %s, 7, %s' % (v(c), v(b)))
    A('v_lshl_add_u32 %s, %s, 6, %s' % (v(c), v(e), v(c)))
    A('v_lshl_add_u32 %s, %s, 4, %s' % (v(c), v(U), v(c)))
    A('v_and_b32 %s, 1, %s' % (v(d), v(I16)))
    A('v_lshl_add_u32 %s, %s, 5, %s' % (v(c), v(d), v(c)))
    A('v_bfe_u32 %s, %s, 1, 1' % (v(b), v(I16)))
    A('v_lshl_add_u32 %s, %s, 3, %s' % (v(vOa), v(b), v(c)))
    A('v_lshl_add_u32 %s, %s, 3, %s' % (v(a), v(Hh), v(a)))
    A('v_mul_u32_u24 %s, 384, %s' % (v(c), v(a)))
    A('v_lshl_add_u32 %s, %s, 5, %s' % (v(c), v(U), v(c)))
    A('v_lshl_add_u32 %s, %s, 4, %s' % (v(c), v(d), v(c)))
    A('v_lshl_add_u32 %s, %s, 3, %s' % (v(c), v(b), v(c)))
    A('v_add_u32 %s, %d, %s' % (v(c), WBASE, v(c)))
    A('v_lshl_add_u32 %s, %s, 6, %s' % (v(vWa), v(e), v(c)))
    A('v_xor_b32 %s, 64, %s' % (v(vWa + 1), v(vWa)))
    A('s_mul_i32 %s, %s, %d' % (s(sT0), s(sWv), 48 * 1280))
    A('v_lshrrev_b32 %s, 3, %s' % (v(a), v(L)))
    A('v_mul_u32_u24 %s, 1280, %s' % (v(a), v(a)))
    A('v_and_b32 %s, 7, %s' % (v(b), v(L)))
    A('v_lshlrev_b32 %s, 2, %s' % (v(c), v(U)))
    A('v_xor_b32 %s, %s, %s' % (v(b), v(b), v(c)))
    A('v_lshlrev_b32 %s, 4, %s' % (v(b), v(b)))
    A('v_add3_u32 %s, %s, %s, %s' % (v(vOd), v(a), v(b), s(sT0)))
    A('v_lshlrev_b32 %s, 4, %s' % (v(vL16), v(L)))
    cc = math.log2(math.e) / math.sqrt(192.0)
    A('s_mov_b32 %s, 0x%08x' % (s(sC), f32bits(cc)))
    A('s_mov_b32 %s, 0x%08x' % (s(sTc), f32bits(cfg.thr / cc)))
    A('s_mov_b32 %s, 0' % s(sFlag))
    A('s_mul_i32 %s, %s, %d' % (s(sCur), s(sG), (32 % NKV) * TILE))
    A('s_mov_b32 %s, 0' % s(sPrev))
    A('s_mov_b32 %s, 4' % s(sKoff)); A('s_mov_b32 %s, 2' % s(sVoff))
    if cfg.rot: A('s_add_u32 %s, %s, %s' % (s(sRot), s(sB), s(sHp)))
    else: A('s_mov_b32 %s, 0' % s(sRot))
    for i in list(range(ACC, ACC + 96)) + list(range(QF + 28, QF + 32)) + list(range(AF + 12, AF + 24)): A('v_mov_b32 %s, 0' % v(i))
    def q_frags(r):
        fr = []
        for ss in range(2):
            for dt in range(6):
                j = ss * 6 + dt; buf = AF + 4 * (j % 6)
                rds = ['ds_read_b64_tr_b16 %s, %s offset:%d' % (v(buf + 2 * vv, 2), v(vWa + (dt & 1)),
                        r * TILE + (16 * ss + 4 * vv) * 384 + 128 * (dt >> 1)) for vv in range(2)]
                fr.append((rds, mfma(ACC + 16 * dt, buf, QF + 16 * (r >> 1) + 4 * ((r & 1) * 2 + ss))))
        return fr
    qlag = [(None, f[1]) for f in q_frags(3)[-LAG:]]
    A('s_mov_b32 %s, 0' % s(sCnt))
    A('s_cmp_eq_u32 %s, 0' % s(sG)); A('s_cbranch_scc0 L_g2a')
    stamp(1)
    wb(None, False)
    for t in x_reads(0): A(t[0])
    checks.append(('prologue', A.lines[m0:]))
    A('L_qloop:')
    m1 = A.mark()
    prev = qlag
    for r in range(4):
        wb()
        fill = {}
        if r % 2 == 1:
            xr = x_reads(((r + 1) >> 1) & 1)
            fill = {5: xr[0:1], 6: xr[1:2], 7: xr[2:3], 8: xr[3:4]}
        prev = untag(pipe_step(A, prev, q_frags(r), fill))
    A('s_add_u32 %s, %s, 1' % (s(sCnt), s(sCnt))); A('s_cmp_lt_u32 %s, 5' % s(sCnt)); A('s_cbranch_scc1 L_qloop')
    body = A.lines[m1:]
    checks.append(('qloop', body + body))
    A('s_waitcnt vmcnt(0) lgkmcnt(0)')
    A('s_branch L_qend')
    A('L_g2a:')
    def kv_static(q):
        if q == 64: isv, tile = True, 31
        elif q % 2 == 0: isv, tile = False, q // 2
        else: isv, tile = True, (q - 3) // 2
        srd, vd = (sV, vVd) if isv else (sK, vKd)
        return [['s_add_u32 %s, %s, %d' % (s(sHi), s(sRot), tile & 15), 's_and_b32 %s, %s, 15' % (s(sHi), s(sHi)),
                 's_or_b32 %s, %s, %d' % (s(sHi), s(sHi), tile & 16),
                 's_add_u32 m0, %s, %d' % (s(sW3k), (q % NKV) * TILE), 's_mul_i32 %s, %s, %d' % (s(sHi), s(sHi), TILE),
                 dma(vd, srd, s(sHi), 0, cfg.kv_pol)], [dma(vd + 1, srd, s(sHi), 1024, cfg.kv_pol)], [dma(vd + 2, srd, s(sHi), 2048, cfg.kv_pol)]]
    def kv_dyn(isv):
        srd, vd, soff = (sV, vVd, sVoff) if isv else (sK, vKd, sKoff)
        return [['s_add_u32 %s, %s, %s' % (s(sHi), s(sRot), s(soff)), 's_and_b32 %s, %s, 15' % (s(sHi), s(sHi)),
                 's_and_b32 %s, %s, 16' % (s(sT2), s(soff)), 's_or_b32 %s, %s, %s' % (s(sHi), s(sHi), s(sT2)),
                 's_add_u32 m0, %s, %s' % (s(sW3k), s(sPrev)), 's_mul_i32 %s, %s, %d' % (s(sHi), s(sHi), TILE),
                 dma(vd, srd, s(sHi), 0, cfg.kv_pol)],
                ['s_add_u32 %s, %s, %d' % (s(sPrev), s(sPrev), TILE),
                 's_cmp_ge_u32 %s, %d' % (s(sPrev), NKV * TILE),
                 's_cselect_b32 %s, 0, %s' % (s(sPrev), s(sPrev)),
                 dma(vd + 1, srd, s(sHi), 1024, cfg.kv_pol)],
                [dma(vd + 2, srd, s(sHi), 2048, cfg.kv_pol), 's_add_u32 %s, %s, 1' % (s(soff), s(soff))]]
    def flat(l): return [x for y in l for x in y]
    m1 = A.mark()
    for l in qpro[3:]:
        for t in l: A(t)
    vm = Vm([('x', 0)] * 4 + [('w', 0)] * 3 + [('x', 1)] * 4 + [('w', 1)] * 3 + [('w', 2)] * 3)
    wb(vm.need(('x', 0)), False)
    kvpos = [0, 2, 3, 4, 5, 6]
    for st in range(21):
        ws = [vm.need(('x', (st + 1) // 2)) if st % 2 == 1 else None, vm.need(('w', st)) if st < 20 else None,
              vm.need(('kv', 0)) if st == 20 else None]
        ws = [w for w in ws if w is not None]
        wb(ws[-1] if ws else None, False)
        if st == 16: A('s_mov_b32 %s, 0' % s(sXoff))
        if st == 17: A('s_mov_b32 %s, 384' % s(sWoff))
        if st % 2 == 0 and st < 20:
            for t in x_issue((st // 2) & 1)[:8]: A(t)
            vm.add(('x', st // 2 + 2), 4)
        if st < 20:
            for t in w_issue((st + 3) & 3): A(t)
            vm.add(('w', st + 3), 3)
        for i in range(6):
            if cfg.kv_at + i * cfg.kv_every == st:
                for t in flat(kv_static(kvpos[i])): A(t)
                vm.add(('kv', kvpos[i]), 3)
    assert cfg.kv_at + 5 * cfg.kv_every < 20
    stamp(1)
    for t in x_reads(0): A(t[0])
    A('s_waitcnt vmcnt(0)')
    checks.append(('g2 pro', A.lines[m1:]))
    A('L_q2loop:')
    m1 = A.mark()
    allf = q_frags(0) + q_frags(1) + q_frags(2) + q_frags(3)
    prev = qlag
    for cch in range(6):
        wb(19)
        kd = kv_dyn(cch % 2 == 0)
        fill = {0: kd[0], 1: kd[1], 2: kd[2]}
        if cch in (1, 4):
            xi = x_issue(0 if cch == 1 else 1)
            fill = merge(fill, {3: xi[0:3], 4: xi[3:4], 5: xi[4:7], 6: xi[7:10]})
        else:
            wi = w_issue({0: 3, 2: 0, 3: 1, 5: 2}[cch])
            fill = merge(fill, {3: wi[0:3], 4: wi[3:4], 5: wi[4:6]})
        if cch in (2, 5):
            xr = x_reads(1 if cch == 2 else 0)
            fill = merge(fill, {3: xr[0:1], 4: xr[1:2], 5: xr[2:3], 6: xr[3:4]})
        prev = untag(pipe_step(A, prev, allf[8 * cch:8 * cch + 8], fill))
    A('s_add_u32 %s, %s, 1' % (s(sCnt), s(sCnt))); A('s_cmp_lt_u32 %s, 5' % s(sCnt)); A('s_cbranch_scc1 L_q2loop')
    body2 = A.lines[m1:]
    checks.append(('q2loop', body2 + body2))
    wb(19)
    for t in flat(kv_dyn(True)): A(t)
    A('L_qend:')
    m2 = A.mark()
    stamp(2)
    for _, m in qlag: A(m)
    for i in range(4): A('v_add_u32 %s, %s, %s' % (v(vKr + i), s(sCur), v(vKa + i)))
    A('v_mov_b32 %s, 0xff800000' % v(vMref)); A('v_mov_b32 %s, 0xff800000' % v(vMthr)); A('v_mov_b32 %s, 0' % v(vMc))
    A('v_mov_b32 %s, 0' % v(vL0)); A('v_mov_b32 %s, 0' % v(vL1))
    for i in range(4): A('v_mov_b32 %s, 0' % v(P + 4 + i))
    for i in range(48):
        A('v_cvt_pk_bf16_f32 %s, %s, %s' % (v(QF + i), v(ACC + 2 * i), v(ACC + 2 * i + 1)))
    A('L_attn:')
    if cfg.prio: A('s_setprio %d' % cfg.prio)
    def k_frags(Sb):
        fr = []
        for ss in range(12):
            buf = AF + 4 * (ss % 6)
            fr.append((['ds_read_b128 %s, %s offset:%d' % (v(buf, 4), v(vKr + (ss & 3)), 128 * (ss >> 2))],
                       mfma(Sb, buf, QF + 4 * ss, '0' if ss == 0 else None)))
        return fr
    def v_frags():
        fr = []
        for ss in range(2):
            for dt in range(6):
                j = ss * 6 + dt; buf = AF + 4 * (j % 6)
                rds = ['ds_read_b64_tr_b16 %s, %s offset:%d' % (v(buf + 2 * vv, 2), v(vVr + (dt & 1)),
                        (16 * ss + 8 * vv) * 384 + 128 * (dt >> 1)) for vv in range(2)]
                fr.append((rds, mfma(ACC + 16 * dt, buf, P + 4 * ss)))
        return fr
    ring_adv = ['s_add_u32 %s, %s, %d' % (s(sCur), s(sCur), TILE),
                's_cmp_ge_u32 %s, %d' % (s(sCur), NKV * TILE),
                's_cselect_b32 %s, 0, %s' % (s(sCur), s(sCur))]
    addr_k = ['v_add_u32 %s, %s, %s' % (v(vKr + i), s(sCur), v(vKa + i)) for i in range(4)]
    addr_v = ['v_add_u32 %s, %s, %s' % (v(vVr + i), s(sCur), v(vVa + i)) for i in range(2)]
    def sm_max(Sb, tag):
        t0, t1 = v(vT0), v(vT1)
        l = ['v_max3_f32 %s, %s, %s, %s' % (t0, v(Sb), v(Sb + 1), v(Sb + 2)),
             'v_max3_f32 %s, %s, %s, %s' % (t1, v(Sb + 3), v(Sb + 4), v(Sb + 5))]
        for k in range(5):
            tt = t0 if k % 2 == 0 else t1
            l.append('v_max3_f32 %s, %s, %s, %s' % (tt, tt, v(Sb + 6 + 2 * k), v(Sb + 7 + 2 * k)))
        l.append('v_max_f32 %s, %s, %s' % (t0, t0, t1))
        l.append('v_cmp_gt_f32 vcc, %s, %s' % (t0, v(vMthr)))
        l.append('s_cbranch_vccnz L_rare_%s' % tag)
        l.append('L_ret_%s:' % tag)
        rare_tags.append(tag)
        return l
    def cvt(Sb, k): return 'v_cvt_pk_bf16_f32 %s, %s, %s' % (v(P + k), v(Sb + 2 * k), v(Sb + 2 * k + 1))
    VG = [6, 7, 8, 9, 10, 11]; KG = list(range(0, 11))
    def sm_fill(Sb):
        it = []
        fma = lambda j: ('v_fma_f32 %s, %s, %s, -%s' % (v(Sb + j), v(Sb + j), s(sC), v(vMc)), 1)
        ex = lambda j: ('v_exp_f32 %s, %s' % (v(Sb + j), v(Sb + j)), 2)
        ad = lambda j: ('v_add_f32 %s, %s, %s' % (v(vL0 + (j & 1)), v(vL0 + (j & 1)), v(Sb + j)), 1)
        for j in range(16 + 4):
            if j < 16: it.append(fma(j))
            if 0 <= j - 2 < 16: it.append(ex(j - 2))
            if 0 <= j - 4 < 16: it.append(ad(j - 4))
        it += [(cvt(Sb, k), 1) for k in range(8)]
        caps = [('v', g, cfg.vw) for g in VG] + [('k', g, cfg.kw) for g in KG]
        tot = sum(c for _, c in it); ctot = sum(c for _, _, c in caps)
        vf = {g: [] for g in VG}; kf = {g: [] for g in KG}
        acc = 0.0; gi = 0; lim = caps[0][2] * tot / ctot
        for tx, c in it:
            while acc + c / 2.0 > lim and gi < len(caps) - 1:
                gi += 1; lim += caps[gi][2] * tot / ctot
            (vf if caps[gi][0] == 'v' else kf)[caps[gi][1]].append(tx); acc += c
            if tx.startswith('v_cvt'): assert caps[gi][0] == 'k' and caps[gi][1] >= 2
        return vf, kf
    def resc(tag):
        resc_tags.append(tag)
        return ['s_cmp_lg_u32 %s, 0' % s(sFlag), 's_cbranch_scc1 L_resc_%s' % tag, 'L_rret_%s:' % tag]
    rare_tags = []; resc_tags = []
    wb(15, False)
    stamp(3)
    zero_acc = ['v_mov_b32 %s, 0' % v(ACC + i) for i in range(96)]
    fill = {0: ring_adv + zero_acc[0:6]}
    for g in range(1, 9): fill[g] = zero_acc[g * 6:g * 6 + 6]
    prev = untag(pipe_step(A, [], k_frags(SB[0]), fill))
    wb(12)
    for k, (_, m) in enumerate(prev):
        A(m)
        for t in zero_acc[54 + 6 * k:60 + 6 * k]: A(t)
    for t in ring_adv + addr_k + zero_acc[72:]: A(t)
    for t in sm_max(SB[0], 'v0'): A(t)
    vf0, kf0 = sm_fill(SB[0]); vf1, kf1 = sm_fill(SB[1])
    for g in VG:
        for t in vf0[g]: A(t)
    A('s_mov_b32 %s, 0' % s(sFlag))
    A('s_mov_b32 %s, 0' % s(sCnt))
    A('s_waitcnt vmcnt(0)')
    checks.append(('q->attn', body[-40:] + A.lines[m2:]))
    pre_loop = A.lines[-40:]
    A('L_aloop:')
    m3 = A.mark()
    pv_lag = [(None, f[1]) for f in v_frags()[-LAG:]]
    for par in range(2):
        kf = (kf0, kf1)[par]; vf = (vf1, vf0)[par]; Sn = SB[par ^ 1]
        wb()
        fill = merge({2: resc('l%d' % par)}, kf, {3: ring_adv, 11: addr_v})
        prev = untag(pipe_step(A, pv_lag, k_frags(Sn), fill))
        wb()
        mx = sm_max(Sn, 'l%d' % par)
        fill = merge({0: ring_adv, 2: addr_k, 4: mx[0:4], 5: mx[4:]}, vf)
        if par == 0: fill = merge(fill, {11: ['s_add_u32 %s, %s, 1' % (s(sCnt), s(sCnt)), 's_cmp_eq_u32 %s, 8' % s(sCnt)]})
        prev = untag(pipe_step(A, prev, v_frags(), fill))
        if par == 0:
            A('s_cbranch_scc1 L_aexit'); ahalf = A.lines[m3:]
    A('s_branch L_aloop')
    abody = A.lines[m3:]
    checks.append(('aloop', pre_loop + abody + abody))
    abody = ahalf
    A('L_aexit:')
    stamp(4)
    lagpv = pv_lag
    def st_slot(j): return SS[j % 3] if j <= 12 else SS[[3, 1, 2, 0][(j - 13) % 4]]
    def st_issue(j, part, n=3):
        off = ((j + 1) % 10) * 128 if j < 10 else 245760 + (j - 10) * 128
        off += part * n * 10240
        l = ['s_add_u32 m0, %s, %d' % (s(sW6k), st_slot(j) + part * n * 1024)]
        for i in range(n):
            l += ['s_add_u32 %s, %s, %d' % (s(sT0 + i), s(sO1), off + i * 9216), dma(vOd, sWo, s(sT0 + i), 1024 * i, cfg.wo_pol)]
        return l
    def st_load(j, i, dst):
        off = 245760 + (j - 10) * 128 + i * 10240
        return ['s_add_u32 %s, %s, %d' % (s(sT1), s(sO1), off),
                'buffer_load_dwordx4 %s, %s, %s, %s offen%s' % (v(dst, 4), v(vOd), s(sWo, 4), s(sT1), cfg.wo_pol)]
    stg = {14: 96, 15: 120, 16: 144, 17: 168, 18: 192, 19: 216}
    def attn_end(g, vm):
        Sb = SB[1]
        if g == 0: wb()
        else: A('s_waitcnt lgkmcnt(0)')
        rest = [t for gg in KG for t in kf1[gg] if not t.startswith('v_cvt')]
        for k, (_, m) in enumerate(lagpv):
            A(m)
            for t in rest[6 * k:6 * k + 6]: A(t)
        for t in rest[18:] + resc('e%d' % g) + (ring_adv if g == 0 else []) + addr_v: A(t)
        for t in ['v_add_f32 %s, %s, %s' % (v(vT0), v(vL0), v(vL1)),
                  'v_mov_b32 %s, %s' % (v(vT1), v(vT0)), 's_nop 1',
                  'v_permlane32_swap_b32 %s, %s' % (v(vT0), v(vT1)),
                  'v_add_f32 %s, %s, %s' % (v(vT0), v(vT0), v(vT1)),
                  'v_rcp_f32 %s, %s' % (v(vF), v(vT0)),
                  'v_add_u32 %s, %s, %s' % (v(vOr), s(sEx), v(vL16)),
                  'v_mov_b32 %s, %s' % (v(vF + 1), v(vF))]: A(t)
        if g == 0: ld = [flat(kv_static(38)), st_issue(0, 0)]; vm.add(('kv', 38), 3); vm.add(('st', 0), 3)
        else: ld = [st_load(14, i, stg[14] + 4 * i) for i in range(6)]; vm.add(('st', 14), 6)
        for i in range(8): A('v_pk_mul_f32 %s, %s, %s' % (v(Sb + 2 * i, 2), v(Sb + 2 * i, 2), v(vF, 2)))
        for k in range(8): A(cvt(Sb, k))
        for i in range(48):
            A('v_pk_mul_f32 %s, %s, %s' % (v(ACC + 2 * i, 2), v(ACC + 2 * i, 2), v(vF, 2)))
            if i % 8 == 0 and i // 8 < len(ld):
                for t in ld[i // 8]: A(t)
        wb(None, False)
        if g == 0:
            kk = kv_static(39); ii = st_issue(0, 1)
            fill = {0: kk[0], 1: kk[1], 2: kk[2], 3: ii[0:3], 4: ii[3:5], 5: ii[5:7]}
            vm.add(('kv', 39), 3); vm.add(('st', 0), 3)
        else:
            fill = {2 + i: st_load(15, i, stg[15] + 4 * i) for i in range(6)}
            vm.add(('st', 15), 6)
        prev = untag(pipe_step(A, [], v_frags(), fill))
        wb()
        for _, m in prev: A(m)
        if cfg.prio: A('s_setprio 0')
        if g == 0:
            for t in flat(kv_static(40)) + st_issue(1, 0): A(t)
            vm.add(('kv', 40), 3); vm.add(('st', 1), 3)
            for i in range(48): A('v_cvt_pk_bf16_f32 %s, %s, %s' % (v(QF + i), v(ACC + 2 * i), v(ACC + 2 * i + 1)))
        else:
            A('s_nop 5')
            for dt in range(6):
                for k in range(8):
                    A('v_cvt_pk_bf16_f32 %s, %s, %s' % (v(ACC + 16 * dt + k), v(ACC + 16 * dt + 2 * k), v(ACC + 16 * dt + 2 * k + 1)))
                for u in range(2):
                    A('ds_write_b128 %s, %s offset:%d' % (v(vOr), v(ACC + 16 * dt + 4 * u, 4), 1024 * (2 * dt + u)))
                if cfg.early16:
                    for q in (2 * dt, 2 * dt + 1):
                        for t in st_load(16 + q // 6, q % 6, stg[16 + q // 6] + 4 * (q % 6)): A(t)
            if cfg.early16: vm.add(('st', 16), 6); vm.add(('st', 17), 6)
    A('s_cmp_lg_u32 %s, 0' % s(sG)); A('s_cbranch_scc1 L_g2tail')
    m5 = A.mark()
    vm = Vm()
    attn_end(0, vm)
    stamp(5)
    def o_frags(acc, zero, extra=None):
        fr = []
        for ss in range(12):
            buf = AF + 4 * (ss % 6)
            rds = ['ds_read_b64_tr_b16 %s, %s offset:%d' % (v(buf + 2 * vv, 2), v(vOr), 2048 * ss + 1024 * vv) for vv in range(2)]
            if extra: rds = [extra(ss)] + rds
            fr.append((rds, mfma(acc, buf, QF + 4 * ss, '0' if (ss == 0 and zero) else None)))
        return fr
    def next_addr(u):
        if u % 2 == 0: return 'v_add_u32 %s, %d, %s' % (v(vOr), st_slot(u // 2), v(vOa))
        return 'v_xor_b32 %s, 64, %s' % (v(vOr), v(vOr))
    def pack_to(dst, acc):
        return ['v_cvt_pk_bf16_f32 %s, %s, %s' % (v(dst + k), v(acc + 2 * k), v(acc + 2 * k + 1)) for k in range(8)]
    wb(None, False)
    for t in flat(kv_static(41)) + st_issue(1, 1): A(t)
    vm.add(('kv', 41), 3); vm.add(('st', 1), 3)
    allo = []
    for n in range(20):
        f = o_frags(TACC[n & 1], True)
        f[0] = ([next_addr(n)] + f[0][0], f[0][1])
        allo += f
    gfill = {}
    for n in range(18):
        pk = pack_to(stash(n + 2), TACC[n & 1])
        gfill[12 * n + 11 + 4] = pk[0:4]; gfill[12 * n + 11 + 5] = pk[4:8]
    CH = cfg.och; nch = 240 // CH
    assert 240 % CH == 0 and 56 + nch <= 82
    pend = [(2, 0), (2, 1)]
    rel = 0
    prev = []
    for st in range(56, 85):
        k = st - 56
        ws = [vm.need(('kv', st - 20)), vm.need(('st', (CH * k + CH - 1) // 24)) if k < nch else None]
        ws = [w for w in ws if w is not None]
        wb(ws[-1] if ws else None, k <= nch)
        while rel < 10 and CH * k >= 24 * (rel + 1):
            pend += [(rel + 3, 0), (rel + 3, 1)]; rel += 1
        if st == 82: pend += [(13, 0), (13, 1)]
        kk = [[], [], []]
        if st - 14 <= 64:
            kk = kv_static(st - 14); vm.add(('kv', st - 14), 3)
        ii = []
        if pend:
            j, hh = pend.pop(0)
            ii = st_issue(j, hh); vm.add(('st', j), 3)
        if k < nch:
            if st == 78: fill = {-1: flat(kk)}
            else: fill = {0: kk[0], 1: kk[1], 2: kk[2]}
            fill = merge(fill, {3: ii[0:3], 4: ii[3:5], 5: ii[5:7]})
            first = CH * k - len(prev)
            for gi in range(first, CH * k + CH - LAG):
                if gi in gfill: fill = merge(fill, {gi - first: gfill[gi]})
            prev = untag(pipe_step(A, prev, allo[CH * k:CH * k + CH], fill))
        else:
            if k == nch:
                for _, m in prev: A(m)
            for t in flat(kk) + ii: A(t)
    dead = set()
    for ins in A.lines[m5:]:
        if ins.is_dma: assert not (ins.r & dead), ins.text
        dead |= ins.w & {'v%d' % i for i in range(vKd, vKd + 6)}
    assert not pend and rel == 10
    A(next_addr(20))
    A('v_add_u32 %s, %s, %s' % (v(vOd), s(sEx), v(vL16)))
    stamp(6)
    wb(vm.need(('st', 10)), False)
    wb(None, False)
    stamp(7)
    prev = []
    def outreg(t): return TACC[t & 1] if t in (0, 19) else stash(t + 1)
    def store(t):
        o = outreg(t)
        l = []
        for hh in range(2):
            l.append(['s_add_u32 %s, %s, %d' % (s(sT0), s(sSt), 8192 * t + 1024 * hh),
                      's_mov_b64 exec, %s' % s(sMask, 2),
                      'buffer_store_dwordx4 %s, %s, %s, %s offen%s' % (v(o + 4 * hh, 4), v(vL16), s(sP, 4), s(sT0), cfg.st_pol),
                      's_mov_b64 exec, -1'])
        return l
    def unpack(t):
        acc = TACC[t & 1]; sr = stash(t); un = []
        for k in list(range(4, 8)) + list(range(0, 4)):
            un.append('v_lshlrev_b32 %s, 16, %s' % (v(acc + 2 * k), v(sr + k)))
            un.append('v_and_b32 %s, 0xffff0000, %s' % (v(acc + 2 * k + 1), v(sr + k)))
        return un
    carry = {}
    nst = 1
    for u in range(20):
        reset = True
        if u % 2 == 0 and u > 0: wb(vm.need(('st', 10 + u // 2)))
        elif u > 0: reset = False
        fill = dict(carry); carry = {}
        if u >= 1:
            pk = pack_to(outreg(u - 1), TACC[(u - 1) & 1])
            un = unpack(u + 1) if u + 1 < 20 else [None] * 0
            fill = merge(fill, {5: pk[0:4], 6: pk[4:8], 9: un[0:4], 10: un[4:8], 11: un[8:12]})
            carry = {0: un[12:16]}
            if u == 1:
                sl = store(0); fill = merge(fill, {6: sl[0], 8: sl[1]}); vm.add('store', 2)
            gaps = [1, 3, 7, 10, 2, 4]; gi = 0
            cnt = 0
            while u >= cfg.st_delay and nst <= u - 2 and cnt < cfg.st_rate:
                sl = store(nst)
                fill = merge(fill, {gaps[gi]: sl[0], gaps[gi + 1]: sl[1]}); gi += 2
                vm.add('store', 2); nst += 1; cnt += 1
        last = 8 if u == 0 else 11
        if u < 19: fill = merge(fill, {last: [next_addr(20 + u + 1)]})
        extra = None
        if u == 0:
            extra = lambda ss: 'ds_read_b128 %s, %s offset:%d' % (v(QF + 4 * ss, 4), v(vOd), 1024 * ss)
        prev = pipe_step(A, untag(prev) if reset else prev, o_frags(TACC[u & 1], False, extra), fill, reset=reset, tagp='t%d' % u)
    A('s_waitcnt lgkmcnt(0)')
    for _, m in prev: A(m)
    while nst <= 18:
        for l in store(nst):
            for t in l: A(t)
        nst += 1
    A('s_nop 4')
    for t in pack_to(outreg(19), TACC[1]): A(t)
    for l in store(19):
        for t in l: A(t)
    checks.append(('g1 oproj', abody[-40:] + A.lines[m5:]))
    stamp(8)
    A('s_branch L_fin')
    A('L_g2tail:')
    m6 = A.mark()
    vm = Vm()
    attn_end(1, vm)
    stamp(5); stamp(6)
    wb()
    stamp(7)
    for j in range(18 if cfg.early16 else 16, 20):
        for i in range(6):
            for t in st_load(j, i, stg[j] + 4 * i): A(t)
        vm.add(('st', j), 6)
    A('v_add_u32 %s, %s, %s' % (v(vOa), s(sW6k), v(vL16)))
    for j in range(10, 19):
        if 14 <= j + 3 <= 19:
            A('v_add_u32 %s, %d, %s' % (v(vOr), st_slot(j + 3), v(vOa)))
            A('s_waitcnt vmcnt(%d)' % vm.need(('st', j + 3)))
            for i in range(6): A('ds_write_b128 %s, %s offset:%d' % (v(vOr), v(stg[j + 3] + 4 * i, 4), 1024 * i))
        wb()
    checks.append(('g2 tail', abody[-40:] + A.lines[m6:]))
    stamp(8)
    A('L_fin:')
    if cfg.stamp:
        stamp(9)
        A('s_waitcnt vmcnt(0)')
        stamp(10); stamp(12, True)
        A('s_mov_b32 %s, s14' % s(sP)); A('s_mov_b32 %s, s15' % s(sP + 1)); A('s_mov_b32 %s, 402653184' % s(sP + 2))
        A('s_lshl_b32 %s, s2, 3' % s(sT0)); A('s_add_u32 %s, %s, %s' % (s(sT0), s(sT0), s(sW8)))
        A('s_lshl_b32 %s, %s, 7' % (s(sT0), s(sT0))); A('s_add_u32 %s, %s, %d' % (s(sT0), s(sT0), 64 << 20))
        if cfg.stamp in (3, 6):
            A('s_lshl_b32 %s, s2, 3' % s(sT1)); A('s_add_u32 %s, %s, %s' % (s(sT1), s(sT1), s(sW8)))
            A('s_lshl_b32 %s, %s, 11' % (s(sT1), s(sT1))); A('s_add_u32 %s, %s, %d' % (s(sT1), s(sT1), 65 << 20))
            A('v_lshrrev_b32 v1, 2, %s' % v(vL16))
            for i in range(4):
                A('buffer_store_dword v%d, v1, %s, %s offen offset:%d' % (252 + i, s(sP, 4), s(sT1), 256 * i))
        A('v_mov_b32 v1, 0')
        A('s_mov_b64 exec, 1')
        for i in range(26):
            A('v_mov_b32 v0, %s' % s(76 + i))
            A('buffer_store_dword v0, v1, %s, %s offen offset:%d' % (s(sP, 4), s(sT0), 4 * i))
    A('L_end:')
    A('s_endpgm')
    A.trace = False
    for tag in rare_tags:
        m8 = A.mark()
        A('L_rare_%s:' % tag)
        A('v_mov_b32 %s, %s' % (v(vT1), v(vT0)))
        A('s_nop 1')
        A('v_permlane32_swap_b32 %s, %s' % (v(vT0), v(vT1)))
        A('v_max3_f32 %s, %s, %s, %s' % (v(vT0), v(vT0), v(vT1), v(vMref)))
        A('v_sub_f32 %s, %s, %s' % (v(vT1), v(vMref), v(vT0)))
        A('v_mul_f32 %s, %s, %s' % (v(vT1), s(sC), v(vT1)))
        A('v_exp_f32 %s, %s' % (v(vF), v(vT1)))
        A('v_mov_b32 %s, %s' % (v(vMref), v(vT0)))
        A('v_mul_f32 %s, %s, %s' % (v(vMc), s(sC), v(vT0)))
        A('v_add_f32 %s, %s, %s' % (v(vMthr), s(sTc), v(vT0)))
        A('v_mul_f32 %s, %s, %s' % (v(vL0), v(vL0), v(vF)))
        A('v_mul_f32 %s, %s, %s' % (v(vL1), v(vL1), v(vF)))
        A('v_mov_b32 %s, %s' % (v(vF + 1), v(vF)))
        A('s_mov_b32 %s, 1' % s(sFlag))
        A('s_branch L_ret_%s' % tag)
        checks.append(('rare', A.lines[m8:]))
    for tag in resc_tags:
        A('L_resc_%s:' % tag)
        A('s_nop 15')
        for i in range(48): A('v_pk_mul_f32 %s, %s, %s' % (v(ACC + 2 * i, 2), v(ACC + 2 * i, 2), v(vF, 2)))
        A('s_mov_b32 %s, 0' % s(sFlag))
        A('s_nop 1')
        A('s_branch L_rret_%s' % tag)
    A('.globl mha_k2_kernel'); A('.p2align 8'); A('.type mha_k2_kernel,@function'); A('mha_k2_kernel:')
    m9 = A.mark()
    A('s_cmp_ge_u32 s2, 256'); A('s_cbranch_scc1 L_end2')
    A('s_load_dwordx2 s[4:5], s[0:1], 40')
    A('s_load_dwordx2 s[8:9], s[0:1], 56')
    if cfg.dbg: A('s_memrealtime s[24:25]')
    A('v_readfirstlane_b32 s20, v0')
    A('v_and_b32 v2, 63, v0')
    A('s_lshr_b32 s20, s20, 6')
    A('s_lshr_b32 s13, s2, 4')
    A('s_and_b32 s14, s2, 15'); A('s_mul_i32 s14, s14, 5'); A('s_add_u32 s14, s14, s20')
    A('s_and_b32 s21, s14, 3')
    A('s_lshr_b32 s22, s14, 2')
    A('v_lshlrev_b32 v3, 4, v2')
    A('v_and_b32 v4, 31, v2')
    A('s_lshl_b32 s21, s21, 5')
    A('v_add_u32 v4, s21, v4')
    A('v_cmp_gt_u32 vcc, 112, v4')
    A('v_mul_u32_u24 v5, 1280, v4')
    A('v_lshrrev_b32 v6, 5, v2')
    A('v_lshl_add_u32 v5, v6, 5, v5')
    A('s_mul_i32 s15, s13, %d' % (16 * cfg.pstride))
    A('s_lshl_b32 s16, s14, 11'); A('s_add_u32 s15, s15, s16')
    A('s_mul_i32 s17, s13, 143360'); A('s_lshl_b32 s16, s22, 6'); A('s_add_u32 s17, s17, s16')
    A('s_mov_b32 s6, 2293760'); A('s_mov_b32 s7, 0x20000')
    A('s_mov_b32 s10, %d' % (256 * cfg.pstride)); A('s_mov_b32 s11, 0x20000')
    A('s_and_saveexec_b64 s[18:19], vcc')
    A('s_waitcnt lgkmcnt(0)')
    for p in range(16):
        A('buffer_load_dwordx4 %s, v3, s[8:11], s15 offen%s' % (v(32 + 8 * p, 4), cfg.r_pol))
        A('buffer_load_dwordx4 %s, v3, s[8:11], s15 offen offset:1024%s' % (v(36 + 8 * p, 4), cfg.r_pol))
        if p < 15: A('s_add_u32 s15, s15, %d' % cfg.pstride)
    for p in range(16):
        A('s_waitcnt vmcnt(%d)' % (2 * (15 - p)))
        for k in range(8):
            src = 32 + 8 * p + k
            if p == 0:
                A('v_lshlrev_b32 %s, 16, %s' % (v(8 + 2 * k), v(src)))
                A('v_and_b32 %s, 0xffff0000, %s' % (v(9 + 2 * k), v(src)))
            else:
                tt = 24 + 2 * (k & 1)
                A('v_lshlrev_b32 %s, 16, %s' % (v(tt), v(src)))
                A('v_and_b32 %s, 0xffff0000, %s' % (v(tt + 1), v(src)))
                A('v_pk_add_f32 %s, %s, %s' % (v(8 + 2 * k, 2), v(8 + 2 * k, 2), v(tt, 2)))
    for k in range(8): A('v_cvt_pk_bf16_f32 %s, %s, %s' % (v(24 + k), v(8 + 2 * k), v(9 + 2 * k)))
    A('buffer_store_dwordx4 v[24:27], v5, s[4:7], s17 offen')
    A('buffer_store_dwordx4 v[28:31], v5, s[4:7], s17 offen offset:16')
    checks.append(('k2', A.lines[m9:]))
    if cfg.dbg:
        A('s_waitcnt vmcnt(0)')
        A('s_memrealtime s[26:27]')
        A('s_cmp_lg_u32 s20, 0'); A('s_cbranch_scc1 L_end2')
        A('s_mov_b32 s28, 0')
        A('s_cmp_eq_u32 s2, 0'); A('s_cbranch_scc1 L_dbgw')
        A('s_mov_b32 s28, 32')
        A('s_cmp_eq_u32 s2, 133'); A('s_cbranch_scc0 L_end2')
        A('L_dbgw:')
        A('s_load_dwordx2 s[4:5], s[0:1], 48'); A('s_mov_b32 s6, 256'); A('s_mov_b32 s10, 402653184')
        A('s_lshl_b32 s29, s2, 10'); A('s_add_u32 s29, s29, %d' % (64 << 20))
        A('v_mov_b32 v1, 0'); A('s_mov_b64 exec, 1')
        for k, i in enumerate((11, 2, 4, 6, 8, 12)):
            A('buffer_load_dword v%d, v1, s[8:11], s29 offen offset:%d' % (10 + k, 8 * i))
        A('s_waitcnt vmcnt(0) lgkmcnt(0)')
        A('v_mov_b32 v16, s24'); A('v_mov_b32 v17, s26')
        for k in range(1, 8):
            A('v_sub_u32 v%d, v%d, v10' % (10 + k, 10 + k))
            A('buffer_store_dword v%d, v1, s[4:7], s28 offen offset:%d' % (10 + k, 4 * (k - 1)))
    A('L_end2:')
    A('s_endpgm')
    if cfg.codepf:
        A('.set CODE_LAST, L_end2-L_pc')
        A('.set CODE_SHARE, ((L_end2-L_pc)/32/128+1)*128')
    kl = [('mha_k1_kernel', 256, 102 if cfg.stamp else 80), ('mha_k2_kernel', 160, 32)]
    if cfg.extra_k:
        A('.globl mha_k3_kernel'); A('.p2align 8'); A('.type mha_k3_kernel,@function'); A('mha_k3_kernel:'); A('s_endpgm')
        kl.append(('mha_k3_kernel', 8, 8))
    A('.section .rodata,"a"')
    for name, nv, ns in kl:
        A('.p2align 6')
        A('.amdhsa_kernel %s' % name)
        A('  .amdhsa_next_free_vgpr %d' % nv); A('  .amdhsa_next_free_sgpr %d' % ns); A('  .amdhsa_accum_offset %d' % nv)
        A('  .amdhsa_group_segment_fixed_size 0'); A('  .amdhsa_kernarg_size 64'); A('  .amdhsa_user_sgpr_count 2')
        A('  .amdhsa_user_sgpr_kernarg_segment_ptr 1'); A('  .amdhsa_system_sgpr_workgroup_id_x 1')
        A('.end_amdhsa_kernel')
    nerr = 0
    for name, seq in checks:
        for e in check_seq(seq, name):
            print(e); nerr += 1
    assert nerr == 0, 'hazards'
    open(fname, 'w').write(A.text())

if __name__ == '__main__':
    cfg = Cfg()
    out = sys.argv[1] if len(sys.argv) > 1 else 'k.s'
    for kv in sys.argv[2:]:
        k, val = kv.split('=', 1)
        cur = getattr(cfg, k)
        setattr(cfg, k, type(cur)(val.replace('_', ' ')) if isinstance(cur, str) else type(cur)(val))
    gen(cfg, out)
```

```python
import sys, math, struct
from asmlib import Asm, check_seq, Ins, Vm

def f32bits(x): return struct.unpack('<I', struct.pack('<f', x))[0]

class Cfg:
    kv_pol = ' nt'
    wq_pol = ''
    wo_pol = ''
    x_pol = ''
    st_pol = ''
    r_pol = ''
    thr = 8.0
    prio = 0
    kv_at = 0
    kv_every = 3
    stamp = 0
    dbg = 0
    vw = 3.0
    kw = 4.5
    rot = 1
    pstride = 168192
    codepf = 1
    st_delay = 4
    st_rate = 2
    och = 10
    light = 1
    w2 = 1

TILE = 12288
NKV = 7
WBASE = NKV * TILE
XBASE = WBASE + 4 * TILE
XSLOT = 14336
LDS = 163840
LAG = 3
SS = [WBASE, WBASE + 24576, WBASE + 49152, 49152]

ACC = 0; QF = 96; P = 160; AF = 168
SB = [144, 232]
vKa = 192; vKr = 194; vVa = 196; vVr = 197; vWa = 201; vXa = 205; vT0 = 207; vT1 = 208; vT2 = 209
vKd = 210; vVd = 213; vWd = 216; vXd = 219
vMref = 221; vMc = 223; vMthr = 225; vL = 227; vF = 230
T = 236
vOd = 248; vOa = 249; vOr = 250; vL16 = 251
TACC = [216, 232]
def stash(t):
    i = t - 2
    if i < 12: return 8 * i
    if i < 15: return 144 + 8 * (i - 12)
    return 192 + 8 * (i - 15)
sX = 16; sK = 20; sV = 24; sWq = 28; sWo = 32; sP = 36
sW8 = 40; sG = 41; sWv = 42; sB = 43; sHp = 44; sW3k = 45; sXm0 = 46; sXm1 = 47; sXa1 = 48; sCnt = 49
sWoff = 50; sXoff = 51; sCur = 52; sPrev = 53; sKoff = 54; sVoff = 55; sC = 56; sTc = 57; sFlag = 58
sW6k = 59; sO1 = 60; sSt = 61; sEx = 62; sRot = 63; sM2 = 64; sT0 = 66; sT1 = 67; sT2 = 68; sHi = 69; sSt1 = 72

def v(i, n=1): return 'v%d' % i if n == 1 else 'v[%d:%d]' % (i, i + n - 1)
def s(i, n=1): return 's%d' % i if n == 1 else 's[%d:%d]' % (i, i + n - 1)
def mfma(d, a, b, zero=False):
    return 'v_mfma_f32_16x16x32_bf16 %s, %s, %s, %s' % (v(d, 4), v(a, 4), v(b, 4), '0' if zero else v(d, 4))
def off(o): return ' offset:%d' % o if o else ''

W2 = [1]
def pipe_step(A, prev, frags, fill, lag=LAG, reset=True, tagp='f'):
    n = len(frags)
    if reset: A.lds_reset()
    nxt = 0
    def put(lst, tag):
        for t in lst:
            if t.startswith('ds_'): A.lds(t, tag)
            else: A(t)
    for _ in range(5 - len(prev)):
        put(frags[nxt][0], (tagp, nxt)); nxt += 1
    for t in fill.get(-1, []): emit(A, t)
    seq = list(prev) + [((tagp, j), frags[j][1]) for j in range(n - lag)]
    for k, (tag, ms) in enumerate(seq):
        if W2[0] and tag in A.ldsq and k + 1 < len(seq) and seq[k + 1][0] in A.ldsq: A.wait_lds(seq[k + 1][0])
        A.wait_lds(tag)
        rd = []
        if nxt < n: rd = frags[nxt][0]; rtag = (tagp, nxt); nxt += 1
        fl = fill.get(k, [])
        if len(ms) == 1:
            A(ms[0]); put(rd, rtag if rd else None)
            for t in fl: emit(A, t)
        else:
            h = (len(rd) + 1) // 2
            pure = all(isinstance(t, str) and t.startswith('v_') and not t.startswith('v_cvt') for t in fl)
            hf = max(0, (len(fl) + len(rd)) // 2 - h) if pure else 0
            A(ms[0]); put(rd[:h], rtag if rd else None)
            for t in fl[:hf]: emit(A, t)
            A(ms[1]); put(rd[h:], rtag if rd else None)
            for t in fl[hf:]: emit(A, t)
    assert nxt == n
    return [((tagp, j), frags[j][1]) for j in range(n - lag, n)]

def untag(prev): return [(None, m) for _, m in prev]
def emit(A, t):
    if isinstance(t, tuple): A.lds(t[0], t[1])
    else: A(t)
def merge(*ds):
    out = {}
    for d in ds:
        for k, l in d.items(): out.setdefault(k, []).extend(l)
    return out
def flat(l): return [x for y in l for x in y]
def dma(voff, srd, soff, o, pol):
    return 'buffer_load_dwordx4 %s, %s, %s offen%s%s lds' % (v(voff), s(srd, 4), soff, off(o), pol)
def pkmul(r, t):
    return 'v_pk_mul_f32 %s, %s, %s %s' % (v(r, 2), v(r, 2), v(vF, 2), 'op_sel_hi:[1,0]' if t == 0 else 'op_sel:[0,1]')

def gen(cfg, fname):
    A = Asm()
    W2[0] = cfg.w2
    def stamp(i, real=False):
        if cfg.stamp == 5 and i in (1, 3, 4, 7):
            k = {1: 1, 3: 3, 4: 5, 7: 7}[i]
            A('s_memtime %s' % s(76 + 2 * k, 2)); A('s_memrealtime %s' % s(78 + 2 * k, 2)); A('s_waitcnt lgkmcnt(0)')
        elif cfg.stamp and i in (0, 10, 11, 12):
            A('%s %s' % ('s_memrealtime' if real else 's_memtime', s(76 + 2 * i, 2)))
            A('s_waitcnt lgkmcnt(0)')
    def wb(vm=None, lg=True):
        t = []
        if vm is not None: t.append('vmcnt(%d)' % vm)
        if lg: t.append('lgkmcnt(0)')
        if t: A('s_waitcnt ' + ' '.join(t))
        A('s_barrier')
    checks = []
    A('; @launch kernel=mha_k1_kernel grid=(256,1,1) block=(512,1,1) lds=%d' % LDS)
    A('; @launch kernel=mha_k2_kernel grid=(256,1,1) block=(320,1,1) lds=0')
    A('.amdgcn_target "amdgcn-amd-amdhsa--gfx950"')
    A('.text'); A('.globl mha_k1_kernel'); A('.p2align 8'); A('.type mha_k1_kernel,@function'); A('mha_k1_kernel:')
    m0 = A.mark()
    A('s_cmp_ge_u32 s2, 256'); A('s_cbranch_scc1 L_end')
    A('s_load_dwordx8 s[4:11], s[0:1], 0')
    A('s_load_dwordx2 s[12:13], s[0:1], 32')
    A('s_load_dwordx2 s[14:15], s[0:1], 56')
    stamp(0); stamp(11, True)
    if cfg.stamp in (3, 6):
        A.trace = 6 if cfg.stamp == 6 else True
        A('s_mov_b32 s75, 0'); A('s_mov_b32 s94, s98')
        for i in range(252, 256): A('v_mov_b32 v%d, 0' % i)
    L = T; G = T + 1; I16 = T + 2; F = T + 3; a = T + 4; b = T + 5; c = T + 6; d = T + 7; e = T + 8
    A('v_readfirstlane_b32 %s, v0' % s(sW8))
    A('v_and_b32 %s, 63, v0' % v(L))
    A('s_lshr_b32 %s, %s, 6' % (s(sW8), s(sW8)))
    A('s_lshr_b32 %s, %s, 2' % (s(sG), s(sW8)))
    A('s_and_b32 %s, %s, 3' % (s(sWv), s(sW8)))
    A('s_and_b32 %s, s2, 7' % s(sT0))
    A('s_lshr_b32 %s, s2, 3' % s(sT1))
    A('s_lshr_b32 %s, %s, 1' % (s(sB), s(sT1)))
    A('s_and_b32 %s, %s, 1' % (s(sT1), s(sT1)))
    A('s_lshl_b32 %s, %s, 1' % (s(sHp), s(sT0)))
    A('s_add_u32 %s, %s, %s' % (s(sHp), s(sHp), s(sT1)))
    A('s_mul_i32 %s, %s, 3072' % (s(sW3k), s(sWv)))
    A('s_cmp_eq_u32 %s, 3' % s(sWv))
    A('s_cselect_b32 %s, 0, 2048' % s(sXm1)); A('s_cselect_b32 %s, 0, 20480' % s(sXa1))
    A('s_lshl_b32 %s, %s, 12' % (s(sXm0), s(sWv))); A('s_add_u32 %s, %s, %d' % (s(sXm0), s(sXm0), XBASE))
    A('s_add_u32 %s, %s, %s' % (s(sXm1), s(sXm1), s(sXm0)))
    A('s_mul_i32 %s, %s, %d' % (s(sT0), s(sWv), 32 * 1280))
    A('v_lshrrev_b32 %s, 3, %s' % (v(a), v(L)))
    A('v_lshrrev_b32 %s, 4, %s' % (v(G), v(L)))
    A('v_and_b32 %s, 7, %s' % (v(c), v(L)))
    A('v_xor_b32 %s, %s, %s' % (v(b), v(G), v(c)))
    A('v_mul_u32_u24 %s, 1280, %s' % (v(a), v(a)))
    A('v_add_u32 %s, %s, %s' % (v(a), s(sT0), v(a)))
    A('v_lshl_add_u32 %s, %s, 4, %s' % (v(vXd), v(b), v(a)))
    A('v_xor_b32 %s, 4, %s' % (v(b), v(b)))
    A('v_lshl_add_u32 %s, %s, 4, %s' % (v(vXd + 1), v(b), v(a)))
    A('v_add_u32 %s, %d, %s' % (v(vXd + 1), 8 * 1280 - 1024, v(vXd + 1)))
    A('s_lshl_b32 %s, %s, 3' % (s(sT0), s(sWv)))
    A('s_and_b32 %s, %s, 1' % (s(sT2), s(sWv))); A('s_lshl_b32 %s, %s, 2' % (s(sT2), s(sT2)))
    for p in range(3):
        A('v_add_u32 %s, %d, %s' % (v(a), 64 * p, v(L)))
        A('v_mul_u32_u24 %s, 171, %s' % (v(b), v(a)))
        A('v_lshrrev_b32 %s, 12, %s' % (v(b), v(b)))
        A('v_mul_u32_u24 %s, 24, %s' % (v(c), v(b)))
        A('v_sub_u32 %s, %s, %s' % (v(vVd + p), v(a), v(c)))
        A('v_add_u32 %s, %s, %s' % (v(vKd + p), s(sT0), v(b)))
        A('v_and_or_b32 %s, %s, 2, %s' % (v(d), v(b), s(sT2)))
        A('v_xor_b32 %s, %s, %s' % (v(d), v(vVd + p), v(d)))
        A('v_mul_u32_u24 %s, 12288, %s' % (v(e), v(vKd + p)))
        A('v_lshl_add_u32 %s, %s, 4, %s' % (v(d), v(d), v(e)))
        A('v_subrev_u32 %s, %d, %s' % (v(vWd + p), 1024 * p, v(d)))
    A('s_mul_i32 %s, %s, 143360' % (s(sT0), s(sB)))
    A('s_mul_i32 %s, %s, 768' % (s(sT1), s(sHp)))
    A('s_mov_b32 %s, 143360' % s(sX + 2)); A('s_mov_b32 %s, 0x20000' % s(sX + 3))
    A('s_sub_u32 %s, 7864320, %s' % (s(sWq + 2), s(sT1))); A('s_mov_b32 %s, 0x20000' % s(sWq + 3))
    A('s_mov_b32 %s, 0' % s(sWoff)); A('s_mov_b32 %s, 0' % s(sXoff))
    A('s_waitcnt lgkmcnt(0)')
    A('s_add_u32 %s, s4, %s' % (s(sX), s(sT0))); A('s_addc_u32 %s, s5, 0' % s(sX + 1))
    A('s_add_u32 %s, s10, %s' % (s(sWq), s(sT1))); A('s_addc_u32 %s, s11, 0' % s(sWq + 1))
    def x_issue(slot, NT=2, clamp=True):
        l = [['s_add_u32 m0, %s, %d' % (s(sXm0), slot * XSLOT),
              's_add_u32 %s, %s, %s' % (s(sT1), s(sXoff), s(sXa1)),
              dma(vXd, sX, s(sXoff), 0, cfg.x_pol)], [dma(vXd + 1, sX, s(sXoff), 1024, cfg.x_pol)]]
        if NT == 2:
            l += [['s_add_u32 m0, %s, %d' % (s(sXm1), slot * XSLOT),
                   's_add_u32 %s, %s, 128' % (s(sXoff), s(sXoff)),
                   dma(vXd, sX, s(sT1), 0, cfg.x_pol)], [dma(vXd + 1, sX, s(sT1), 1024, cfg.x_pol)]]
        else:
            l += [['s_add_u32 %s, %s, 128' % (s(sXoff), s(sXoff))], []]
        if clamp: l[3] = l[3] + ['s_cmp_ge_u32 %s, 1280' % s(sXoff), 's_cselect_b32 %s, 0x40000000, %s' % (s(sXoff), s(sXoff))]
        return l
    def w_issue(slot):
        return [['s_add_u32 m0, %s, %d' % (s(sW3k), WBASE + slot * TILE), 's_nop 0', dma(vWd, sWq, s(sWoff), 0, cfg.wq_pol)],
                [dma(vWd + 1, sWq, s(sWoff), 1024, cfg.wq_pol)],
                [dma(vWd + 2, sWq, s(sWoff), 2048, cfg.wq_pol), 's_add_u32 %s, %s, %d' % (s(sWoff), s(sWoff), 32 * 12288)]]
    A('s_cmp_eq_u32 %s, 0' % s(sG)); A('s_cbranch_scc1 L_p0')
    for t in flat(x_issue(0, 2, False) + w_issue(0) + x_issue(1, 2, False)): A(t)
    A('s_branch L_p1')
    A('L_p0:')
    if cfg.codepf:
        A('s_getpc_b64 %s' % s(70, 2))
        A('L_pc:')
        A('s_and_b32 %s, %s, 7' % (s(sT1), s(sB))); A('s_lshl_b32 %s, %s, 2' % (s(sT1), s(sT1)))
        A('s_add_u32 %s, %s, %s' % (s(sT1), s(sT1), s(sWv)))
        A('s_mul_i32 %s, %s, CODE_SHARE-0' % (s(sT1), s(sT1)))
        A('v_lshlrev_b32 %s, 7, %s' % (v(b), v(L)))
        A('v_min_u32 %s, CODE_SHARE-128, %s' % (v(b), v(b)))
        A('v_add_u32 %s, %s, %s' % (v(b), s(sT1), v(b)))
        A('v_min_u32 %s, CODE_LAST-0, %s' % (v(b), v(b)))
        A('global_load_dword %s, %s, %s' % (v(SB[0]), v(b), s(70, 2)))
    A('L_p1:')
    A('s_lshl_b32 %s, %s, 4' % (s(sT0), s(sB))); A('s_add_u32 %s, %s, %s' % (s(sT0), s(sT0), s(sHp)))
    A('s_mul_i32 %s, %s, 393216' % (s(sT1), s(sT0)))
    A('s_add_u32 %s, s6, %s' % (s(sK), s(sT1))); A('s_addc_u32 %s, s7, 0' % s(sK + 1))
    A('s_mov_b32 %s, 393216' % s(sK + 2)); A('s_mov_b32 %s, 0x20000' % s(sK + 3))
    A('s_add_u32 %s, s8, %s' % (s(sV), s(sT1))); A('s_addc_u32 %s, s9, 0' % s(sV + 1))
    A('s_mov_b32 %s, 393216' % s(sV + 2)); A('s_mov_b32 %s, 0x20000' % s(sV + 3))
    A('s_mul_i32 %s, %s, %d' % (s(sT1), s(sT0), cfg.pstride))
    A('s_add_u32 %s, s14, %s' % (s(sP), s(sT1))); A('s_addc_u32 %s, s15, 0' % s(sP + 1))
    A('s_mov_b32 %s, 163840' % s(sP + 2)); A('s_mov_b32 %s, 0x20000' % s(sP + 3))
    A('s_mov_b32 %s, s12' % s(sWo)); A('s_mov_b32 %s, s13' % s(sWo + 1))
    A('s_mov_b32 %s, 7864320' % s(sWo + 2)); A('s_mov_b32 %s, 0x20000' % s(sWo + 3))
    A('s_mul_i32 %s, %s, 491520' % (s(sO1), s(sHp)))
    A('s_mul_i32 %s, %s, 6144' % (s(sW6k), s(sWv)))
    A('s_mul_i32 %s, %s, %d' % (s(sEx), s(sWv), TILE))
    A('s_lshl_b32 %s, %s, 11' % (s(sSt), s(sWv)))
    A('s_add_u32 %s, %s, 1024' % (s(sSt1), s(sSt)))
    A('s_cmp_eq_u32 %s, 3' % s(sWv)); A('s_cselect_b32 %s, 0x40000000, %s' % (s(sSt1), s(sSt1)))
    A('s_lshl_b32 %s, %s, 1' % (s(sT1), s(sWv)))
    for p in range(3):
        A('v_mul_u32_u24 %s, 384, %s' % (v(e), v(vKd + p)))
        A('v_subrev_u32 %s, %d, %s' % (v(e), 1024 * p, v(e)))
        A('v_bfe_u32 %s, %s, 1, 1' % (v(d), v(vKd + p)))
        A('v_or_b32 %s, %s, %s' % (v(d), s(sT1), v(d)))
        A('v_and_or_b32 %s, %s, 2, %s' % (v(c), v(vKd + p), s(sT2)))
        A('v_xor_b32 %s, %s, %s' % (v(d), v(vVd + p), v(d)))
        A('v_xor_b32 %s, %s, %s' % (v(c), v(vVd + p), v(c)))
        A('v_lshl_add_u32 %s, %s, 4, %s' % (v(vKd + p), v(d), v(e)))
        A('v_lshl_add_u32 %s, %s, 4, %s' % (v(vVd + p), v(c), v(e)))
    A('v_and_b32 %s, 15, %s' % (v(I16), v(L)))
    A('v_lshrrev_b32 %s, 2, %s' % (v(a), v(I16)))
    A('v_and_b32 %s, 3, %s' % (v(d), v(I16)))
    A('v_lshl_add_u32 %s, %s, 3, %s' % (v(b), v(a), v(d)))
    A('v_mul_u32_u24 %s, 384, %s' % (v(b), v(b)))
    A('v_lshrrev_b32 %s, 1, %s' % (v(c), v(I16)))
    A('v_xor_b32 %s, %s, %s' % (v(c), v(c), v(G)))
    A('v_lshl_add_u32 %s, %s, 4, %s' % (v(vKa), v(c), v(b)))
    A('v_xor_b32 %s, 64, %s' % (v(vKa + 1), v(vKa)))
    A('v_lshlrev_b32 %s, 7, %s' % (v(b), v(I16)))
    A('v_add_u32 %s, %s, %s' % (v(b), s(sXm0), v(b)))
    A('v_lshl_add_u32 %s, %s, 4, %s' % (v(vXa), v(c), v(b)))
    A('v_xor_b32 %s, 64, %s' % (v(vXa + 1), v(vXa)))
    A('v_bfe_u32 %s, %s, 3, 2' % (v(F), v(L)))
    A('v_lshlrev_b32 %s, 5, %s' % (v(F), v(F)))
    A('v_lshl_add_u32 %s, %s, 3, %s' % (v(F), v(d), v(F)))
    A('v_lshl_add_u32 %s, %s, 3, %s' % (v(b), v(G), v(a)))
    A('v_mul_u32_u24 %s, 384, %s' % (v(b), v(b)))
    A('v_add_u32 %s, %s, %s' % (v(vVa), v(b), v(F)))
    A('v_add_u32 %s, %d, %s' % (v(vWa), WBASE, v(vVa)))
    for u in range(1, 4): A('v_xor_b32 %s, %d, %s' % (v(vWa + u), 32 * u, v(vWa)))
    A('v_lshl_add_u32 %s, %s, 2, %s' % (v(b), v(G), v(a)))
    A('v_lshl_add_u32 %s, %s, 7, %s' % (v(vOa), v(b), v(F)))
    A('s_mul_i32 %s, %s, %d' % (s(sT0), s(sWv), 48 * 1280))
    A('v_lshrrev_b32 %s, 3, %s' % (v(a), v(L)))
    A('v_mul_u32_u24 %s, 1280, %s' % (v(a), v(a)))
    A('v_and_b32 %s, 7, %s' % (v(b), v(L)))
    A('v_lshlrev_b32 %s, 1, %s' % (v(c), v(G)))
    A('v_xor_b32 %s, %s, %s' % (v(b), v(b), v(c)))
    A('v_lshlrev_b32 %s, 4, %s' % (v(b), v(b)))
    A('v_add3_u32 %s, %s, %s, %s' % (v(vOd), v(a), v(b), s(sT0)))
    A('v_lshlrev_b32 %s, 4, %s' % (v(vL16), v(L)))
    cc = math.log2(math.e) / math.sqrt(192.0)
    A('s_mov_b32 %s, 0x%08x' % (s(sC), f32bits(cc)))
    A('s_mov_b32 %s, 0x%08x' % (s(sTc), f32bits(cfg.thr / cc)))
    A('s_mov_b32 %s, 0' % s(sFlag))
    A('s_mul_i32 %s, %s, %d' % (s(sCur), s(sG), (32 % NKV) * TILE))
    A('s_mov_b32 %s, 0' % s(sPrev))
    A('s_mov_b32 %s, 4' % s(sKoff)); A('s_mov_b32 %s, 2' % s(sVoff))
    if cfg.rot: A('s_add_u32 %s, %s, %s' % (s(sRot), s(sB), s(sHp)))
    else: A('s_mov_b32 %s, 0' % s(sRot))
    for i in list(range(ACC, ACC + 96)) + list(range(QF + 24, QF + 32)) + list(range(AF + 12, AF + 24)): A('v_mov_b32 %s, 0' % v(i))
    A('s_mov_b32 %s, 0' % s(sCnt))
    checks.append(('prologue', A.lines[m0:]))
    if cfg.light:
        A('s_cmp_eq_u32 %s, 3' % s(sWv)); A('s_cbranch_scc1 L_light')

    def body(NT, X):
        TT = range(NT)
        dupx = (NT == 2 and not cfg.light)
        def x_reads(slot):
            return [('ds_read_b128 %s, %s%s' % (v(QF + 16 * slot + 8 * ss + 4 * t, 4), v(vXa + ss), off(slot * XSLOT + 2048 * t)), 'x')
                    for ss in range(2) for t in TT]
        def q_frags(r):
            fr = []
            for dt in range(12):
                buf = AF + 4 * (dt % 6)
                rds = ['ds_read_b64_tr_b16 %s, %s%s' % (v(buf + 2 * vv, 2), v(vWa + (dt & 3)),
                        off(r * TILE + 4 * vv * 384 + 128 * (dt >> 2))) for vv in range(2)]
                fr.append((rds, [mfma(ACC + 48 * t + 4 * dt, buf, QF + 16 * (r >> 1) + 8 * (r & 1) + 4 * t) for t in TT]))
            return fr
        qlag = [(None, f[1]) for f in q_frags(3)[-LAG:]]
        nx = 2 * NT
        A('s_cmp_eq_u32 %s, 0' % s(sG)); A('s_cbranch_scc0 L_g2a' + X)
        stamp(1)
        wb(None, False)
        for t in x_reads(0): A(t[0])
        A('L_qloop%s:' % X)
        m1 = A.mark()
        prev = qlag
        for r in range(4):
            wb()
            fill = {}
            if r % 2 == 1:
                xr = x_reads(((r + 1) >> 1) & 1)
                fill = {5 + i: [x] for i, x in enumerate(xr)}
            prev = untag(pipe_step(A, prev, q_frags(r), fill))
        A('s_add_u32 %s, %s, 1' % (s(sCnt), s(sCnt))); A('s_cmp_lt_u32 %s, 5' % s(sCnt)); A('s_cbranch_scc1 L_qloop' + X)
        qbody = A.lines[m1:]
        checks.append(('qloop', qbody + qbody))
        A('s_waitcnt vmcnt(0) lgkmcnt(0)')
        A('s_branch L_qend' + X)
        A('L_g2a%s:' % X)
        def kv_static(q):
            if q == 64: isv, tile = True, 31
            elif q % 2 == 0: isv, tile = False, q // 2
            else: isv, tile = True, (q - 3) // 2
            srd, vd = (sV, vVd) if isv else (sK, vKd)
            return [['s_add_u32 %s, %s, %d' % (s(sHi), s(sRot), tile & 15), 's_and_b32 %s, %s, 15' % (s(sHi), s(sHi)),
                     's_or_b32 %s, %s, %d' % (s(sHi), s(sHi), tile & 16),
                     's_add_u32 m0, %s, %d' % (s(sW3k), (q % NKV) * TILE), 's_mul_i32 %s, %s, %d' % (s(sHi), s(sHi), TILE),
                     dma(vd, srd, s(sHi), 0, cfg.kv_pol)], [dma(vd + 1, srd, s(sHi), 1024, cfg.kv_pol)], [dma(vd + 2, srd, s(sHi), 2048, cfg.kv_pol)]]
        def kv_dyn(isv):
            srd, vd, soff = (sV, vVd, sVoff) if isv else (sK, vKd, sKoff)
            return [['s_add_u32 %s, %s, %s' % (s(sHi), s(sRot), s(soff)), 's_and_b32 %s, %s, 15' % (s(sHi), s(sHi)),
                     's_and_b32 %s, %s, 16' % (s(sT2), s(soff)), 's_or_b32 %s, %s, %s' % (s(sHi), s(sHi), s(sT2)),
                     's_add_u32 m0, %s, %s' % (s(sW3k), s(sPrev)), 's_mul_i32 %s, %s, %d' % (s(sHi), s(sHi), TILE),
                     dma(vd, srd, s(sHi), 0, cfg.kv_pol)],
                    ['s_add_u32 %s, %s, %d' % (s(sPrev), s(sPrev), TILE),
                     's_cmp_ge_u32 %s, %d' % (s(sPrev), NKV * TILE),
                     's_cselect_b32 %s, 0, %s' % (s(sPrev), s(sPrev)),
                     dma(vd + 1, srd, s(sHi), 1024, cfg.kv_pol)],
                    [dma(vd + 2, srd, s(sHi), 2048, cfg.kv_pol), 's_add_u32 %s, %s, 1' % (s(soff), s(soff))]]
        m1 = A.mark()
        for t in flat(w_issue(1) + w_issue(2)): A(t)
        vm = Vm([('x', 0)] * 4 + [('w', 0)] * 3 + [('x', 1)] * 4 + [('w', 1)] * 3 + [('w', 2)] * 3)
        wb(vm.need(('x', 0)), False)
        kvpos = [0, 2, 3, 4, 5, 6]
        for st in range(21):
            ws = [vm.need(('x', (st + 1) // 2)) if st % 2 == 1 else None, vm.need(('w', st)) if st < 20 else None,
                  vm.need(('kv', 0)) if st == 20 else None]
            ws = [w for w in ws if w is not None]
            wb(ws[-1] if ws else None, False)
            if st == 16: A('s_mov_b32 %s, 0' % s(sXoff))
            if st == 17: A('s_mov_b32 %s, 384' % s(sWoff))
            if st % 2 == 0 and st < 20:
                for t in flat(x_issue((st // 2) & 1, NT, False)): A(t)
                vm.add(('x', st // 2 + 2), nx)
            if st < 20:
                for t in flat(w_issue((st + 3) & 3)): A(t)
                vm.add(('w', st + 3), 3)
            for i in range(6):
                if cfg.kv_at + i * cfg.kv_every == st:
                    for t in flat(kv_static(kvpos[i])): A(t)
                    vm.add(('kv', kvpos[i]), 3)
        assert cfg.kv_at + 5 * cfg.kv_every < 20
        stamp(1)
        for t in x_reads(0): A(t[0])
        A('s_waitcnt vmcnt(0)')
        checks.append(('g2 pro', A.lines[m1:]))
        A('L_q2loop%s:' % X)
        m1 = A.mark()
        allf = q_frags(0) + q_frags(1) + q_frags(2) + q_frags(3)
        prev = qlag
        for cch in range(6):
            wb(15 + nx)
            kd = kv_dyn(cch % 2 == 0)
            fill = {0: kd[0], 1: kd[1], 2: kd[2]}
            ii = x_issue(0 if cch == 1 else 1, NT) if cch in (1, 4) else w_issue({0: 3, 2: 0, 3: 1, 5: 2}[cch])
            fill = merge(fill, {3 + i: l for i, l in enumerate(ii)})
            if cch in (2, 5):
                xr = x_reads(1 if cch == 2 else 0)
                fill = merge(fill, {3 + i: [x] for i, x in enumerate(xr)})
            prev = untag(pipe_step(A, prev, allf[8 * cch:8 * cch + 8], fill))
        A('s_add_u32 %s, %s, 1' % (s(sCnt), s(sCnt))); A('s_cmp_lt_u32 %s, 5' % s(sCnt)); A('s_cbranch_scc1 L_q2loop' + X)
        body2 = A.lines[m1:]
        checks.append(('q2loop', body2 + body2))
        wb(15 + nx)
        for t in flat(kv_dyn(True)): A(t)
        A('L_qend%s:' % X)
        m2 = A.mark()
        for _, ms in qlag:
            for m in ms: A(m)
        addr_k = ['v_add_u32 %s, %s, %s' % (v(vKr + i), s(sCur), v(vKa + i)) for i in range(2)]
        addr_v = ['v_add_u32 %s, %s, %s' % (v(vVr), s(sCur), v(vVa))] + \
                 ['v_xor_b32 %s, %d, %s' % (v(vVr + u), 32 * u, v(vVr)) for u in range(1, 4)]
        for t in addr_k: A(t)
        for t in TT:
            A('v_mov_b32 %s, 0xff800000' % v(vMref + t)); A('v_mov_b32 %s, 0xff800000' % v(vMthr + t))
            A('v_mov_b32 %s, 0' % v(vMc + t)); A('v_mov_b32 %s, 0' % v(vL + t))
        for i in range(4 * NT): A('v_mov_b32 %s, 0' % v(P + i))
        nq = 24 * NT
        for i in range(nq): A('v_cvt_pk_bf16_f32 %s, %s, %s' % (v(QF + i), v(ACC + 2 * i), v(ACC + 2 * i + 1)))
        for op in ('v_permlane32_swap_b32', 'v_permlane16_swap_b32'):
            for f in range(nq // 4):
                for k in range(2): A('%s %s, %s' % (op, v(QF + 4 * f + k), v(QF + 4 * f + 2 + k)))
        if cfg.prio: A('s_setprio %d' % cfg.prio)
        def k_frags(Sb):
            fr = []
            for ss in range(6):
                for ee in range(2):
                    j = 2 * ss + ee; buf = AF + 4 * (j % 6)
                    fr.append((['ds_read_b128 %s, %s%s' % (v(buf, 4), v(vKr + (ss & 1)), off(128 * (ss >> 1) + 1536 * ee))],
                               [mfma(Sb + 8 * t + 4 * ee, buf, QF + 24 * t + 4 * ss, ss == 0) for t in TT]))
            return fr
        def v_frags():
            fr = []
            for dt in range(12):
                buf = AF + 4 * (dt % 6)
                rds = ['ds_read_b64_tr_b16 %s, %s%s' % (v(buf + 2 * vv, 2), v(vVr + (dt & 3)), off(1536 * vv + 128 * (dt >> 2))) for vv in range(2)]
                fr.append((rds, [mfma(ACC + 48 * t + 4 * dt, buf, P + 4 * t) for t in TT]))
            return fr
        ring_adv = ['s_add_u32 %s, %s, %d' % (s(sCur), s(sCur), TILE),
                    's_cmp_ge_u32 %s, %d' % (s(sCur), NKV * TILE),
                    's_cselect_b32 %s, 0, %s' % (s(sCur), s(sCur))]
        rare_tags = []; resc_tags = []
        def sm_max(Sb, tag):
            l = []
            for k in range(4):
                for t in TT:
                    tt = v(vT0 + t); bs = Sb + 8 * t
                    if k == 0: l.append('v_max3_f32 %s, %s, %s, %s' % (tt, v(bs), v(bs + 1), v(bs + 2)))
                    elif k < 3: l.append('v_max3_f32 %s, %s, %s, %s' % (tt, tt, v(bs + 1 + 2 * k), v(bs + 2 + 2 * k)))
                    else: l.append('v_max_f32 %s, %s, %s' % (tt, tt, v(bs + 7)))
            l2 = ['v_cmp_gt_f32 vcc, %s, %s' % (v(vT0), v(vMthr))]
            if NT == 2:
                l2 += ['v_cmp_gt_f32 %s, %s, %s' % (s(sM2, 2), v(vT0 + 1), v(vMthr + 1)), 's_or_b64 vcc, vcc, %s' % s(sM2, 2)]
            l2 += ['%s L_rare_%s%s' % ('s_cbranch_scc1' if NT == 2 else 's_cbranch_vccnz', tag, X), 'L_ret_%s%s:' % (tag, X)]
            rare_tags.append(tag)
            return l, l2
        def cvt(Sb, k): return 'v_cvt_pk_bf16_f32 %s, %s, %s' % (v(P + k), v(Sb + 2 * k), v(Sb + 2 * k + 1))
        VG = [6, 7, 8, 9, 10, 11]; KG = list(range(0, 11))
        def sm_fill(Sb):
            it = []
            order = [8 * t + j for j in range(8) for t in TT]
            n = len(order)
            for j in range(n + 4):
                if j < n:
                    r = order[j]; it.append(('v_fma_f32 %s, %s, %s, -%s' % (v(Sb + r), v(Sb + r), s(sC), v(vMc + r // 8)), 1))
                if 0 <= j - 2 < n:
                    r = order[j - 2]; it.append(('v_exp_f32 %s, %s' % (v(Sb + r), v(Sb + r)), 2))
                if 0 <= j - 4 < n:
                    r = order[j - 4]; it.append(('v_add_f32 %s, %s, %s' % (v(vL + r // 8), v(vL + r // 8), v(Sb + r)), 1))
            it += [(cvt(Sb, k), 1) for k in range(4 * NT)]
            caps = [('v', g, cfg.vw) for g in VG] + [('k', g, cfg.kw) for g in KG]
            tot = sum(c for _, c in it); ctot = sum(c for _, _, c in caps)
            vf = {g: [] for g in VG}; kf = {g: [] for g in KG}
            acc = 0.0; gi = 0; lim = caps[0][2] * tot / ctot
            for tx, c in it:
                while acc + c / 2.0 > lim and gi < len(caps) - 1:
                    gi += 1; lim += caps[gi][2] * tot / ctot
                (vf if caps[gi][0] == 'v' else kf)[caps[gi][1]].append(tx); acc += c
                if tx.startswith('v_cvt'): assert caps[gi][0] == 'k' and caps[gi][1] >= 2
            return vf, kf
        def resc(tag):
            resc_tags.append(tag)
            return ['s_cmp_lg_u32 %s, 0' % s(sFlag), 's_cbranch_scc1 L_resc_%s%s' % (tag, X), 'L_rret_%s%s:' % (tag, X)]
        wb(11 + nx, False)
        stamp(3)
        zero_acc = ['v_mov_b32 %s, 0' % v(ACC + i) for i in range(48 * NT)]
        zn = 3 * NT
        fill = {0: ring_adv}
        for g in range(1, 9): fill[g] = zero_acc[(g - 1) * zn:g * zn]
        prev = untag(pipe_step(A, [], k_frags(SB[0]), fill))
        wb(8 + nx)
        for k, (_, ms) in enumerate(prev):
            for m in ms: A(m)
            for t in zero_acc[(8 + k) * zn:(9 + k) * zn]: A(t)
        for t in ring_adv + addr_k + zero_acc[11 * zn:]: A(t)
        for t in flat(sm_max(SB[0], 'v0')): A(t)
        vf0, kf0 = sm_fill(SB[0]); vf1, kf1 = sm_fill(SB[1])
        for g in VG:
            for t in vf0[g]: A(t)
        A('s_mov_b32 %s, 0' % s(sFlag))
        A('s_mov_b32 %s, 0' % s(sCnt))
        A('s_waitcnt vmcnt(0)')
        checks.append(('q->attn', qbody[-40:] + A.lines[m2:]))
        pre_loop = A.lines[-40:]
        A('L_aloop%s:' % X)
        m3 = A.mark()
        pv_lag = [(None, f[1]) for f in v_frags()[-LAG:]]
        for par in range(2):
            kf = (kf0, kf1)[par]; vf = (vf1, vf0)[par]; Sn = SB[par ^ 1]
            wb()
            fill = merge(kf, {2: resc('l%d' % par), 10: ring_adv, 11: addr_v})
            prev = untag(pipe_step(A, pv_lag, k_frags(Sn), fill))
            wb()
            mx, mx2 = sm_max(Sn, 'l%d' % par)
            h = len(mx) // 2
            fill = merge({0: ring_adv, 2: addr_k, 4: mx[:h], 5: mx[h:] + mx2}, vf)
            if NT == 1: fill = merge(fill, {3: ['s_nop 1']})
            if par == 0: fill = merge(fill, {11: ['s_add_u32 %s, %s, 1' % (s(sCnt), s(sCnt)), 's_cmp_eq_u32 %s, 8' % s(sCnt)]})
            prev = untag(pipe_step(A, prev, v_frags(), fill))
            if par == 0:
                A('s_cbranch_scc1 L_aexit' + X); ahalf = A.lines[m3:]
        A('s_branch L_aloop' + X)
        abody = A.lines[m3:]
        checks.append(('aloop', pre_loop + abody + abody))
        abody = ahalf
        A('L_aexit%s:' % X)
        stamp(4)
        def st_slot(j): return SS[j % 3] if j <= 12 else SS[[3, 1, 2, 0][(j - 13) % 4]]
        def st_issue(j, part):
            o = ((j + 1) % 10) * 128 if j < 10 else 245760 + (j - 10) * 128
            o += part * 30720
            l = [['s_add_u32 m0, %s, %d' % (s(sW6k), st_slot(j) + part * 3072)], [], []]
            for i in range(3):
                l[i] += ['s_add_u32 %s, %s, %d' % (s(sT0 + i), s(sO1), o + i * 9216), dma(vOd, sWo, s(sT0 + i), 1024 * i, cfg.wo_pol)]
            return l
        def st_load(j, i, dst):
            o = 245760 + (j - 10) * 128 + i * 10240
            return ['s_add_u32 %s, %s, %d' % (s(sT1), s(sO1), o),
                    'buffer_load_dwordx4 %s, %s, %s, %s offen%s' % (v(dst, 4), v(vOd), s(sWo, 4), s(sT1), cfg.wo_pol)]
        stg = {14: 96, 15: 120, 16: 144, 17: 168, 18: 192, 19: 216}
        def xlane(op, r):
            l = []
            for sw in ('v_permlane32_swap_b32', 'v_permlane16_swap_b32'):
                l += ['v_mov_b32 %s, %s' % (v(vT2), v(r)), 's_nop 1', '%s %s, %s' % (sw, v(r), v(vT2)),
                      '%s %s, %s, %s' % (op, v(r), v(r), v(vT2))]
            return l
        def attn_end(g, vm):
            Sb = SB[1]
            if g == 0: wb()
            else: A('s_waitcnt lgkmcnt(0)')
            rest = [t for gg in KG for t in kf1[gg] if not t.startswith('v_cvt')]
            for k, (_, ms) in enumerate(pv_lag):
                for m in ms: A(m)
                for t in rest[4 * k:4 * k + 4]: A(t)
            for t in rest[12:] + resc('e%d' % g) + (ring_adv if g == 0 else []) + addr_v: A(t)
            for t in TT:
                for x in xlane('v_add_f32', vL + t): A(x)
                A('v_rcp_f32 %s, %s' % (v(vF + t), v(vL + t)))
            A('v_add_u32 %s, %s, %s' % (v(vOr), s(sEx), v(vL16)))
            if g == 0: ld = [flat(kv_static(38)), flat(st_issue(0, 0))]; vm.add(('kv', 38), 3); vm.add(('st', 0), 3)
            else: ld = [st_load(14, i, stg[14] + 4 * i) for i in range(6)]; vm.add(('st', 14), 6)
            for i in range(4 * NT): A(pkmul(Sb + 2 * i, i // 4))
            for k in range(4 * NT): A(cvt(Sb, k))
            for i in range(24 * NT):
                A(pkmul(ACC + 2 * i, i // 24))
                if i % (4 * NT) == 0 and i // (4 * NT) < len(ld):
                    for t in ld[i // (4 * NT)]: A(t)
            wb(None, False)
            if g == 0:
                kk = kv_static(39); ii = st_issue(0, 1)
                fill = {0: kk[0], 1: kk[1], 2: kk[2], 3: ii[0], 4: ii[1], 5: ii[2]}
                vm.add(('kv', 39), 3); vm.add(('st', 0), 3)
            else:
                fill = {2 + i: st_load(15, i, stg[15] + 4 * i) for i in range(6)}
                vm.add(('st', 15), 6)
            prev = untag(pipe_step(A, [], v_frags(), fill))
            wb()
            for _, ms in prev:
                for m in ms: A(m)
            if cfg.prio: A('s_setprio 0')
            if g == 0:
                for t in flat(kv_static(40)) + flat(st_issue(1, 0)): A(t)
                vm.add(('kv', 40), 3); vm.add(('st', 1), 3)
                for i in range(24 * NT): A('v_cvt_pk_bf16_f32 %s, %s, %s' % (v(QF + i), v(ACC + 2 * i), v(ACC + 2 * i + 1)))
            else:
                A('s_nop 1')
                for ss in range(6):
                    for t in TT:
                        bs = ACC + 48 * t + 8 * ss
                        for k in range(4): A('v_cvt_pk_bf16_f32 %s, %s, %s' % (v(bs + k), v(bs + 2 * k), v(bs + 2 * k + 1)))
                        A('ds_write_b128 %s, %s%s' % (v(vOr), v(bs, 4), off(1024 * (6 * t + ss))))
                    for q in (2 * ss, 2 * ss + 1):
                        for t in st_load(16 + q // 6, q % 6, stg[16 + q // 6] + 4 * (q % 6)): A(t)
                vm.add(('st', 16), 6); vm.add(('st', 17), 6)
        A('s_cmp_lg_u32 %s, 0' % s(sG)); A('s_cbranch_scc1 L_g2tail' + X)
        m5 = A.mark()
        vm = Vm()
        attn_end(0, vm)
        def o_frags(u, acc, zero, extra=None):
            fr = []
            for ee in range(2):
                for ss in range(6):
                    buf = AF + 4 * ss
                    rds = ['ds_read_b64_tr_b16 %s, %s%s' % (v(buf + 2 * vv, 2), v(vOr), off(4096 * ss + 2048 * vv)) for vv in range(2)]
                    if extra and ee == 0: rds = extra(ss) + rds
                    if ss == 0:
                        if ee == 1: ad = 'v_xor_b32 %s, 32, %s' % (v(vOr), v(vOr))
                        elif u % 2 == 0: ad = 'v_add_u32 %s, %d, %s' % (v(vOr), st_slot(u // 2), v(vOa))
                        else: ad = 'v_xor_b32 %s, 96, %s' % (v(vOr), v(vOr))
                        rds = [ad] + rds
                    fr.append((rds, [mfma(acc + 8 * t + 4 * ee, buf, QF + 24 * t + 4 * ss, ss == 0 and zero) for t in TT]))
            return fr
        def pack_to(dst, acc):
            return ['v_cvt_pk_bf16_f32 %s, %s, %s' % (v(dst + k), v(acc + 2 * k), v(acc + 2 * k + 1)) for k in range(4 * NT)]
        wb(None, False)
        for t in flat(kv_static(41)) + flat(st_issue(1, 1)): A(t)
        vm.add(('kv', 41), 3); vm.add(('st', 1), 3)
        allo = []
        for n in range(20): allo += o_frags(n, TACC[n & 1], True)
        gfill = {}
        for n in range(18):
            pk = pack_to(stash(n + 2), TACC[n & 1])
            gfill[12 * n + 11 + 4] = pk[0:4]; gfill[12 * n + 11 + 5] = pk[4:8]
        CH = cfg.och; nch = 240 // CH
        assert 240 % CH == 0 and 56 + nch <= 82
        pend = [(2, 0), (2, 1)]; rel = 0; prev = []
        for st in range(56, 85):
            k = st - 56
            ws = [vm.need(('kv', st - 20)), vm.need(('st', (CH * k + CH - 1) // 24)) if k < nch else None]
            ws = [w for w in ws if w is not None]
            wb(ws[-1] if ws else None, k <= nch)
            while rel < 10 and CH * k >= 24 * (rel + 1):
                pend += [(rel + 3, 0), (rel + 3, 1)]; rel += 1
            if st == 82: pend += [(13, 0), (13, 1)]
            kk = [[], [], []]
            if st - 14 <= 64:
                kk = kv_static(st - 14); vm.add(('kv', st - 14), 3)
            ii = [[], [], []]
            if pend:
                j, hh = pend.pop(0)
                ii = st_issue(j, hh); vm.add(('st', j), 3)
            if k < nch:
                if st == 78: fill = {-1: flat(kk)}
                else: fill = {0: kk[0], 1: kk[1], 2: kk[2]}
                fill = merge(fill, {3: ii[0], 4: ii[1], 5: ii[2]})
                first = CH * k - len(prev)
                for gi in range(first, CH * k + CH - LAG):
                    if gi in gfill: fill = merge(fill, {gi - first: gfill[gi]})
                prev = untag(pipe_step(A, prev, allo[CH * k:CH * k + CH], fill))
            else:
                if k == nch:
                    for _, ms in prev:
                        for m in ms: A(m)
                for t in flat(kk) + flat(ii): A(t)
        dead = set()
        for ins in A.lines[m5:]:
            if ins.is_dma: assert not (ins.r & dead), ins.text
            dead |= ins.w & {'v%d' % i for i in range(vKd, vKd + 6)}
        assert not pend and rel == 10
        A('v_add_u32 %s, %s, %s' % (v(vOd), s(sEx), v(vL16)))
        wb(vm.need(('st', 10)), False)
        wb(None, False)
        stamp(7)
        prev = []
        def outreg(t): return TACC[t & 1] if t in (0, 19) else stash(t + 1)
        def store(n):
            o = outreg(n)
            l = [['s_add_u32 %s, %s, %d' % (s(sT0), s(sSt if t == 0 else sSt1), 8192 * n),
                  'buffer_store_dwordx4 %s, %s, %s, %s offen%s' % (v(o + 4 * t, 4), v(vL16), s(sP, 4), s(sT0), cfg.st_pol)] for t in TT]
            return l + [[]] * (2 - NT)
        def unpack(n):
            acc = TACC[n & 1]; sr = stash(n); un = []
            for k in reversed(range(4 * NT)):
                un.append('v_lshlrev_b32 %s, 16, %s' % (v(acc + 2 * k), v(sr + k)))
                un.append('v_and_b32 %s, 0xffff0000, %s' % (v(acc + 2 * k + 1), v(sr + k)))
            return un
        carry = {}
        nst = 1
        for u in range(20):
            reset = True
            if u % 2 == 0 and u > 0: wb(vm.need(('st', 10 + u // 2)))
            elif u > 0: reset = False
            fill = dict(carry); carry = {}
            if u >= 1:
                pk = pack_to(outreg(u - 1), TACC[(u - 1) & 1])
                un = unpack(u + 1) if u + 1 < 20 else []
                fill = merge(fill, {5: pk[0:4], 6: pk[4:8], 9: un[0:4], 10: un[4:8], 11: un[8:12]})
                carry = {0: un[12:16]}
                if u == 1:
                    sl = store(0); fill = merge(fill, {6: sl[0], 7: sl[1]}); vm.add('store', NT)
                gaps = [1, 3, 7, 8, 2, 4]; gi = 0; cnt = 0
                while u >= cfg.st_delay and nst <= u - 2 and cnt < cfg.st_rate:
                    sl = store(nst)
                    fill = merge(fill, {gaps[gi]: sl[0], gaps[gi + 1]: sl[1]}); gi += 2
                    vm.add('store', NT); nst += 1; cnt += 1
            extra = None
            if u == 0:
                extra = lambda ss: ['ds_read_b128 %s, %s%s' % (v(QF + 24 * t + 4 * ss, 4), v(vOd), off(1024 * (6 * t + ss))) for t in TT]
            prev = pipe_step(A, untag(prev) if reset else prev, o_frags(20 + u, TACC[u & 1], False, extra), fill, reset=reset, tagp='t%d' % u)
        A('s_waitcnt lgkmcnt(0)')
        for _, ms in prev:
            for m in ms: A(m)
        while nst <= 18:
            for t in flat(store(nst)): A(t)
            nst += 1
        A('s_nop 5')
        for t in pack_to(outreg(19), TACC[1]) + flat(store(19)): A(t)
        checks.append(('g1 oproj', abody[-40:] + A.lines[m5:]))
        A('s_branch L_fin')
        A('L_g2tail%s:' % X)
        m6 = A.mark()
        vm = Vm()
        attn_end(1, vm)
        wb()
        stamp(7)
        for j in range(18, 20):
            for i in range(6):
                for t in st_load(j, i, stg[j] + 4 * i): A(t)
            vm.add(('st', j), 6)
        A('v_add_u32 %s, %s, %s' % (v(vOa), s(sW6k), v(vL16)))
        for j in range(10, 19):
            if 14 <= j + 3 <= 19:
                A('v_add_u32 %s, %d, %s' % (v(vOr), st_slot(j + 3), v(vOa)))
                A('s_waitcnt vmcnt(%d)' % vm.need(('st', j + 3)))
                for i in range(6): A('ds_write_b128 %s, %s%s' % (v(vOr), v(stg[j + 3] + 4 * i, 4), off(1024 * i)))
            wb()
        checks.append(('g2 tail', abody[-40:] + A.lines[m6:]))
        A('s_branch L_fin')
        tr = A.trace; A.trace = False
        for tag in rare_tags:
            m8 = A.mark()
            A('L_rare_%s%s:' % (tag, X))
            for t in TT:
                for x in xlane('v_max_f32', vT0 + t): A(x)
                A('v_max_f32 %s, %s, %s' % (v(vT0 + t), v(vT0 + t), v(vMref + t)))
                A('v_sub_f32 %s, %s, %s' % (v(vT2), v(vMref + t), v(vT0 + t)))
                A('v_mul_f32 %s, %s, %s' % (v(vT2), s(sC), v(vT2)))
                A('v_exp_f32 %s, %s' % (v(vF + t), v(vT2)))
                A('v_mov_b32 %s, %s' % (v(vMref + t), v(vT0 + t)))
                A('v_mul_f32 %s, %s, %s' % (v(vMc + t), s(sC), v(vT0 + t)))
                A('v_add_f32 %s, %s, %s' % (v(vMthr + t), s(sTc), v(vT0 + t)))
                A('v_mul_f32 %s, %s, %s' % (v(vL + t), v(vL + t), v(vF + t)))
            A('s_mov_b32 %s, 1' % s(sFlag))
            A('s_branch L_ret_%s%s' % (tag, X))
            checks.append(('rare', A.lines[m8:]))
        for tag in resc_tags:
            A('L_resc_%s%s:' % (tag, X))
            A('s_nop 15')
            for i in range(24 * NT): A(pkmul(ACC + 2 * i, i // 24))
            A('s_mov_b32 %s, 0' % s(sFlag))
            A('s_nop 1')
            A('s_branch L_rret_%s%s' % (tag, X))
        A.trace = tr

    body(2, '')
    if cfg.light:
        A('L_light:')
        body(1, '_L')
    A.trace = False
    A('L_fin:')
    if cfg.stamp:
        A('s_waitcnt vmcnt(0)')
        stamp(10); stamp(12, True)
        A('s_mov_b32 %s, s14' % s(sP)); A('s_mov_b32 %s, s15' % s(sP + 1)); A('s_mov_b32 %s, 402653184' % s(sP + 2))
        A('s_lshl_b32 %s, s2, 3' % s(sT0)); A('s_add_u32 %s, %s, %s' % (s(sT0), s(sT0), s(sW8)))
        A('s_lshl_b32 %s, %s, 7' % (s(sT0), s(sT0))); A('s_add_u32 %s, %s, %d' % (s(sT0), s(sT0), 64 << 20))
        if cfg.stamp in (3, 6):
            A('s_lshl_b32 %s, s2, 3' % s(sT1)); A('s_add_u32 %s, %s, %s' % (s(sT1), s(sT1), s(sW8)))
            A('s_lshl_b32 %s, %s, 11' % (s(sT1), s(sT1))); A('s_add_u32 %s, %s, %d' % (s(sT1), s(sT1), 65 << 20))
            A('v_lshrrev_b32 v1, 2, %s' % v(vL16))
            for i in range(4):
                A('buffer_store_dword v%d, v1, %s, %s offen offset:%d' % (252 + i, s(sP, 4), s(sT1), 256 * i))
        A('v_mov_b32 v1, 0')
        A('s_mov_b64 exec, 1')
        for i in range(26):
            A('v_mov_b32 v0, %s' % s(76 + i))
            A('buffer_store_dword v0, v1, %s, %s offen offset:%d' % (s(sP, 4), s(sT0), 4 * i))
    A('L_end:')
    A('s_endpgm')
    A('.globl mha_k2_kernel'); A('.p2align 8'); A('.type mha_k2_kernel,@function'); A('mha_k2_kernel:')
    m9 = A.mark()
    A('s_cmp_ge_u32 s2, 256'); A('s_cbranch_scc1 L_end2')
    A('s_load_dwordx2 s[4:5], s[0:1], 40')
    A('s_load_dwordx2 s[8:9], s[0:1], 56')
    if cfg.dbg: A('s_memrealtime s[24:25]')
    A('v_readfirstlane_b32 s20, v0')
    A('v_and_b32 v2, 63, v0')
    A('s_lshr_b32 s20, s20, 6')
    A('s_lshr_b32 s13, s2, 4')
    A('s_and_b32 s14, s2, 15'); A('s_mul_i32 s14, s14, 5'); A('s_add_u32 s14, s14, s20')
    A('s_and_b32 s21, s14, 3')
    A('s_lshr_b32 s22, s14, 2')
    A('v_lshlrev_b32 v3, 4, v2')
    A('v_and_b32 v4, 15, v2')
    A('v_mul_u32_u24 v5, 1280, v4')
    A('v_lshrrev_b32 v6, 4, v2')
    A('v_lshl_add_u32 v5, v6, 4, v5')
    A('s_mul_i32 s15, s13, %d' % (16 * cfg.pstride))
    A('s_lshl_b32 s16, s14, 11'); A('s_add_u32 s15, s15, s16')
    A('s_mul_i32 s17, s13, 143360'); A('s_lshl_b32 s16, s22, 6'); A('s_add_u32 s17, s17, s16')
    A('s_mul_i32 s16, s21, %d' % (32 * 1280)); A('s_add_u32 s17, s17, s16')
    A('s_add_u32 s18, s17, %d' % (16 * 1280))
    A('s_cmp_eq_u32 s21, 3')
    A('s_cselect_b32 s18, 0x40000000, s18')
    A('s_cselect_b32 s19, 0x40000000, 0')
    A('v_add_u32 v7, s19, v3')
    A('s_mov_b32 s6, 2293760'); A('s_mov_b32 s7, 0x20000')
    A('s_mov_b32 s10, %d' % (256 * cfg.pstride)); A('s_mov_b32 s11, 0x20000')
    A('s_waitcnt lgkmcnt(0)')
    for p in range(16):
        A('buffer_load_dwordx4 %s, v3, s[8:11], s15 offen%s' % (v(32 + 8 * p, 4), cfg.r_pol))
        A('buffer_load_dwordx4 %s, v7, s[8:11], s15 offen offset:1024%s' % (v(36 + 8 * p, 4), cfg.r_pol))
        if p < 15: A('s_add_u32 s15, s15, %d' % cfg.pstride)
    for p in range(16):
        A('s_waitcnt vmcnt(%d)' % (2 * (15 - p)))
        for k in range(8):
            src = 32 + 8 * p + k
            if p == 0:
                A('v_lshlrev_b32 %s, 16, %s' % (v(8 + 2 * k), v(src)))
                A('v_and_b32 %s, 0xffff0000, %s' % (v(9 + 2 * k), v(src)))
            else:
                tt = 24 + 2 * (k & 1)
                A('v_lshlrev_b32 %s, 16, %s' % (v(tt), v(src)))
                A('v_and_b32 %s, 0xffff0000, %s' % (v(tt + 1), v(src)))
                A('v_pk_add_f32 %s, %s, %s' % (v(8 + 2 * k, 2), v(8 + 2 * k, 2), v(tt, 2)))
    for k in range(8): A('v_cvt_pk_bf16_f32 %s, %s, %s' % (v(24 + k), v(8 + 2 * k), v(9 + 2 * k)))
    for op in ('v_permlane32_swap_b32', 'v_permlane16_swap_b32'):
        for r in (24, 25, 28, 29): A('%s %s, %s' % (op, v(r), v(r + 2)))
    A('buffer_store_dwordx4 v[24:27], v5, s[4:7], s17 offen')
    A('buffer_store_dwordx4 v[28:31], v5, s[4:7], s18 offen')
    checks.append(('k2', A.lines[m9:]))
    if cfg.dbg:
        A('s_waitcnt vmcnt(0)')
        A('s_memrealtime s[26:27]')
        A('s_cmp_lg_u32 s20, 0'); A('s_cbranch_scc1 L_end2')
        A('s_mov_b32 s28, 0')
        A('s_cmp_eq_u32 s2, 0'); A('s_cbranch_scc1 L_dbgw')
        A('s_mov_b32 s28, 32')
        A('s_cmp_eq_u32 s2, 133'); A('s_cbranch_scc0 L_end2')
        A('L_dbgw:')
        A('s_load_dwordx2 s[4:5], s[0:1], 48'); A('s_mov_b32 s6, 256'); A('s_mov_b32 s10, 402653184')
        A('s_lshl_b32 s29, s2, 10'); A('s_add_u32 s29, s29, %d' % (64 << 20))
        A('v_mov_b32 v1, 0'); A('s_mov_b64 exec, 1')
        for k, i in enumerate((11, 2, 4, 6, 8, 12)):
            A('buffer_load_dword v%d, v1, s[8:11], s29 offen offset:%d' % (10 + k, 8 * i))
        A('s_waitcnt vmcnt(0) lgkmcnt(0)')
        A('v_mov_b32 v16, s24'); A('v_mov_b32 v17, s26')
        for k in range(1, 8):
            A('v_sub_u32 v%d, v%d, v10' % (10 + k, 10 + k))
            A('buffer_store_dword v%d, v1, s[4:7], s28 offen offset:%d' % (10 + k, 4 * (k - 1)))
    A('L_end2:')
    A('s_endpgm')
    if cfg.codepf:
        A('.set CODE_LAST, L_end2-L_pc')
        A('.set CODE_SHARE, ((L_end2-L_pc)/32/128+1)*128')
    A('.section .rodata,"a"')
    for name, nv, ns in (('mha_k1_kernel', 256, 102 if cfg.stamp else 80), ('mha_k2_kernel', 160, 32)):
        A('.p2align 6')
        A('.amdhsa_kernel %s' % name)
        A('  .amdhsa_next_free_vgpr %d' % nv); A('  .amdhsa_next_free_sgpr %d' % ns); A('  .amdhsa_accum_offset %d' % nv)
        A('  .amdhsa_group_segment_fixed_size 0'); A('  .amdhsa_kernarg_size 64'); A('  .amdhsa_user_sgpr_count 2')
        A('  .amdhsa_user_sgpr_kernarg_segment_ptr 1'); A('  .amdhsa_system_sgpr_workgroup_id_x 1')
        A('.end_amdhsa_kernel')
    nerr = 0
    for name, seq in checks:
        for e in check_seq(seq, name):
            print(e); nerr += 1
    assert nerr == 0, 'hazards'
    open(fname, 'w').write(A.text())

if __name__ == '__main__':
    cfg = Cfg()
    out = sys.argv[1] if len(sys.argv) > 1 else 'k.s'
    for kv in sys.argv[2:]:
        k, val = kv.split('=', 1)
        cur = getattr(cfg, k)
        setattr(cfg, k, type(cur)(val.replace('_', ' ')) if isinstance(cur, str) else type(cur)(val))
    gen(cfg, out)
```

```python
import sys, math, struct
from asmlib import Asm, check_seq, Ins, Vm

def f32bits(x): return struct.unpack('<I', struct.pack('<f', x))[0]

class Cfg:
    kv_pol = ' nt'
    wq_pol = ''
    wo_pol = ''
    x_pol = ''
    st_pol = ' sc1'
    r_pol = ''
    thr = 8.0
    prio = 0
    kv_at = 0
    kv_every = 3
    stamp = 0
    dbg = 0
    vw = 3.0
    kw = 4.5
    rot = 1
    pstride = 168192
    codepf = 1
    st_delay = 2
    st_rate = 2
    dbgrare = 0
    exp = 0
    onch = 27
    nreg = 0
    warm_step = 70
    light = 1
    w2 = 1

TILE = 12288
NKV = 7
WBASE = NKV * TILE
XBASE = WBASE + 4 * TILE
XSLOT = 14336
LDS = 163840
LAG = 3
SS = [WBASE, WBASE + 24576, WBASE + 49152, 49152]

ACC = 0; QF = 96; P = 160; AF = 168
SB = [144, 232]
vNM = 192; vWa = 192; vXa = 196; vOne = 200; vKa = 204; vKr = 205; vT0 = 207; vT1 = 208; vT2 = 209
vKd = 210; vVd = 213; vLa = 216; vWd = 216; vXd = 219; vVa = 224; vVr = 225; vF = 230
T = 236
vOd = 248; vOa = 249; vOr = 250; vL16 = 251
TACC = [216, 232]
def stash(t):
    i = t - 2
    if i < 12: return 8 * i
    if i < 15: return 144 + 8 * (i - 12)
    return 192 + 8 * (i - 15)
sX = 16; sK = 20; sV = 24; sWq = 28; sWo = 32; sP = 36
sW8 = 40; sG = 41; sWv = 42; sB = 43; sHp = 44; sW3k = 45; sXm0 = 46; sXm1 = 47; sXa1 = 48; sCnt = 49
sWoff = 50; sXoff = 51; sCur = 52; sPrev = 53; sKoff = 54; sVoff = 55; sC = 56; sTc = 57; sFlag = 58
sW6k = 59; sO1 = 60; sSt = 61; sEx = 62; sRot = 63; sM2 = 64; sT0 = 66; sT1 = 67; sT2 = 68; sHi = 69; sSt1 = 72

def v(i, n=1): return 'v%d' % i if n == 1 else 'v[%d:%d]' % (i, i + n - 1)
def s(i, n=1): return 's%d' % i if n == 1 else 's[%d:%d]' % (i, i + n - 1)
def mfma(d, a, b, zero=False, c=None):
    return 'v_mfma_f32_16x16x32_bf16 %s, %s, %s, %s' % (v(d, 4), v(a, 4), v(b, 4), '0' if zero else v(d if c is None else c, 4))
def off(o): return ' offset:%d' % o if o else ''

W2 = [1]
def pipe_step(A, prev, frags, fill, lag=LAG, reset=True, tagp='f'):
    n = len(frags)
    if reset: A.lds_reset()
    nxt = 0
    def put(lst, tag):
        for t in lst:
            if t.startswith('ds_'): A.lds(t, tag)
            else: A(t)
    for _ in range(5 - len(prev)):
        put(frags[nxt][0], (tagp, nxt)); nxt += 1
    for t in fill.get(-1, []): emit(A, t)
    seq = list(prev) + [((tagp, j), frags[j][1]) for j in range(n - lag)]
    for k, (tag, ms) in enumerate(seq):
        if W2[0] and tag in A.ldsq and k + 1 < len(seq) and seq[k + 1][0] in A.ldsq: A.wait_lds(seq[k + 1][0])
        A.wait_lds(tag)
        rd = []
        if nxt < n: rd = frags[nxt][0]; rtag = (tagp, nxt); nxt += 1
        fl = fill.get(k, [])
        if len(ms) == 1:
            A(ms[0]); put(rd, rtag if rd else None)
            for t in fl: emit(A, t)
        else:
            h = (len(rd) + 1) // 2
            pure = all(isinstance(t, str) and t.startswith('v_') and not t.startswith('v_cvt') and not t.startswith('v_mfma') for t in fl)
            hf = max(0, (len(fl) + len(rd)) // 2 - h) if pure else 0
            A(ms[0]); put(rd[:h], rtag if rd else None)
            for t in fl[:hf]: emit(A, t)
            A(ms[1]); put(rd[h:], rtag if rd else None)
            for t in fl[hf:]: emit(A, t)
    assert nxt == n
    return [((tagp, j), frags[j][1]) for j in range(n - lag, n)]

def untag(prev): return [(None, m) for _, m in prev]
def emit(A, t):
    if isinstance(t, tuple): A.lds(t[0], t[1])
    else: A(t)
def merge(*ds):
    out = {}
    for d in ds:
        for k, l in d.items(): out.setdefault(k, []).extend(l)
    return out
def flat(l): return [x for y in l for x in y]
def dma(voff, srd, soff, o, pol):
    return 'buffer_load_dwordx4 %s, %s, %s offen%s%s lds' % (v(voff), s(srd, 4), soff, off(o), pol)
def mul2(r, t):
    return ['v_mul_f32 %s, %s, %s' % (v(r + i), v(r + i), v(vF + t)) for i in range(2)]

def gen(cfg, fname):
    A = Asm()
    W2[0] = cfg.w2
    def stamp(i, real=False):
        if cfg.stamp == 5 and i in (1, 3, 4, 7):
            k = {1: 1, 3: 3, 4: 5, 7: 7}[i]
            A('s_memtime %s' % s(76 + 2 * k, 2)); A('s_memrealtime %s' % s(78 + 2 * k, 2)); A('s_waitcnt lgkmcnt(0)')
        elif cfg.stamp and i in (0, 10, 11, 12):
            A('%s %s' % ('s_memrealtime' if real else 's_memtime', s(76 + 2 * i, 2)))
            A('s_waitcnt lgkmcnt(0)')
    def wb(vm=None, lg=True):
        t = []
        if vm is not None: t.append('vmcnt(%d)' % vm)
        if lg: t.append('lgkmcnt(0)')
        if t: A('s_waitcnt ' + ' '.join(t))
        A('s_barrier')
    checks = []
    A('; @launch kernel=mha_k1_kernel grid=(256,1,1) block=(512,1,1) lds=%d' % LDS)
    A('; @launch kernel=mha_k2_kernel grid=(256,1,1) block=(320,1,1) lds=0')
    A('.amdgcn_target "amdgcn-amd-amdhsa--gfx950"')
    A('.text'); A('.globl mha_k1_kernel'); A('.p2align 8'); A('.type mha_k1_kernel,@function'); A('mha_k1_kernel:')
    m0 = A.mark()
    A('s_cmp_ge_u32 s2, 256'); A('s_cbranch_scc1 L_end')
    A('s_load_dwordx8 s[4:11], s[0:1], 0')
    A('s_load_dwordx2 s[12:13], s[0:1], 32')
    A('s_load_dwordx2 s[14:15], s[0:1], 56')
    stamp(0); stamp(11, True)
    if cfg.stamp in (3, 6):
        A.trace = 6 if cfg.stamp == 6 else True
        A('s_mov_b32 s75, 0'); A('s_mov_b32 s94, s98')
        for i in range(252, 256): A('v_mov_b32 v%d, 0' % i)
    L = T; G = T + 1; I16 = T + 2; F = T + 3; a = T + 4; b = T + 5; c = T + 6; d = T + 7; e = T + 8
    A('v_readfirstlane_b32 %s, v0' % s(sW8))
    A('v_and_b32 %s, 63, v0' % v(L))
    A('s_lshr_b32 %s, %s, 6' % (s(sW8), s(sW8)))
    A('s_lshr_b32 %s, %s, 2' % (s(sG), s(sW8)))
    A('s_and_b32 %s, %s, 3' % (s(sWv), s(sW8)))
    A('s_and_b32 %s, s2, 7' % s(sT0))
    A('s_lshr_b32 %s, s2, 3' % s(sT1))
    A('s_lshr_b32 %s, %s, 1' % (s(sB), s(sT1)))
    A('s_and_b32 %s, %s, 1' % (s(sT1), s(sT1)))
    A('s_lshl_b32 %s, %s, 1' % (s(sHp), s(sT0)))
    A('s_add_u32 %s, %s, %s' % (s(sHp), s(sHp), s(sT1)))
    A('s_mul_i32 %s, %s, 3072' % (s(sW3k), s(sWv)))
    A('s_cmp_eq_u32 %s, 3' % s(sWv))
    A('s_cselect_b32 %s, 0, 2048' % s(sXm1)); A('s_cselect_b32 %s, 0, 20480' % s(sXa1))
    A('s_lshl_b32 %s, %s, 12' % (s(sXm0), s(sWv))); A('s_add_u32 %s, %s, %d' % (s(sXm0), s(sXm0), XBASE))
    A('s_add_u32 %s, %s, %s' % (s(sXm1), s(sXm1), s(sXm0)))
    A('s_mul_i32 %s, %s, %d' % (s(sT0), s(sWv), 32 * 1280))
    A('v_lshrrev_b32 %s, 3, %s' % (v(a), v(L)))
    A('v_lshrrev_b32 %s, 4, %s' % (v(G), v(L)))
    A('v_and_b32 %s, 7, %s' % (v(c), v(L)))
    A('v_xor_b32 %s, %s, %s' % (v(b), v(G), v(c)))
    A('v_mul_u32_u24 %s, 1280, %s' % (v(a), v(a)))
    A('v_add_u32 %s, %s, %s' % (v(a), s(sT0), v(a)))
    A('v_lshl_add_u32 %s, %s, 4, %s' % (v(vXd), v(b), v(a)))
    A('v_xor_b32 %s, 4, %s' % (v(b), v(b)))
    A('v_lshl_add_u32 %s, %s, 4, %s' % (v(vXd + 1), v(b), v(a)))
    A('v_add_u32 %s, %d, %s' % (v(vXd + 1), 8 * 1280 - 1024, v(vXd + 1)))
    A('s_lshl_b32 %s, %s, 3' % (s(sT0), s(sWv)))
    A('s_and_b32 %s, %s, 1' % (s(sT2), s(sWv))); A('s_lshl_b32 %s, %s, 2' % (s(sT2), s(sT2)))
    for p in range(3):
        A('v_add_u32 %s, %d, %s' % (v(a), 64 * p, v(L)))
        A('v_mul_u32_u24 %s, 171, %s' % (v(b), v(a)))
        A('v_lshrrev_b32 %s, 12, %s' % (v(b), v(b)))
        A('v_mul_u32_u24 %s, 24, %s' % (v(c), v(b)))
        A('v_sub_u32 %s, %s, %s' % (v(vVd + p), v(a), v(c)))
        A('v_add_u32 %s, %s, %s' % (v(vKd + p), s(sT0), v(b)))
        A('v_and_or_b32 %s, %s, 2, %s' % (v(d), v(b), s(sT2)))
        A('v_xor_b32 %s, %s, %s' % (v(d), v(vVd + p), v(d)))
        A('v_mul_u32_u24 %s, 12288, %s' % (v(e), v(vKd + p)))
        A('v_lshl_add_u32 %s, %s, 4, %s' % (v(d), v(d), v(e)))
        A('v_subrev_u32 %s, %d, %s' % (v(vWd + p), 1024 * p, v(d)))
    A('s_mul_i32 %s, %s, 143360' % (s(sT0), s(sB)))
    A('s_mul_i32 %s, %s, 768' % (s(sT1), s(sHp)))
    A('s_mov_b32 %s, 143360' % s(sX + 2)); A('s_mov_b32 %s, 0x20000' % s(sX + 3))
    A('s_sub_u32 %s, 7864320, %s' % (s(sWq + 2), s(sT1))); A('s_mov_b32 %s, 0x20000' % s(sWq + 3))
    A('s_mov_b32 %s, 0' % s(sWoff)); A('s_mov_b32 %s, 0' % s(sXoff))
    A('s_waitcnt lgkmcnt(0)')
    A('s_add_u32 %s, s4, %s' % (s(sX), s(sT0))); A('s_addc_u32 %s, s5, 0' % s(sX + 1))
    A('s_add_u32 %s, s10, %s' % (s(sWq), s(sT1))); A('s_addc_u32 %s, s11, 0' % s(sWq + 1))
    def x_issue(slot, NT=2, clamp=True):
        l = [['s_add_u32 m0, %s, %d' % (s(sXm0), slot * XSLOT),
              's_add_u32 %s, %s, %s' % (s(sT1), s(sXoff), s(sXa1)),
              dma(vXd, sX, s(sXoff), 0, cfg.x_pol)], [dma(vXd + 1, sX, s(sXoff), 1024, cfg.x_pol)]]
        if NT == 2:
            l += [['s_add_u32 m0, %s, %d' % (s(sXm1), slot * XSLOT),
                   's_add_u32 %s, %s, 128' % (s(sXoff), s(sXoff)),
                   dma(vXd, sX, s(sT1), 0, cfg.x_pol)], [dma(vXd + 1, sX, s(sT1), 1024, cfg.x_pol)]]
        else:
            l += [['s_add_u32 %s, %s, 128' % (s(sXoff), s(sXoff))], []]
        if clamp: l[3] = l[3] + ['s_cmp_ge_u32 %s, 1280' % s(sXoff), 's_cselect_b32 %s, 0x40000000, %s' % (s(sXoff), s(sXoff))]
        return l
    def w_issue(slot):
        return [['s_add_u32 m0, %s, %d' % (s(sW3k), WBASE + slot * TILE), 's_nop 0', dma(vWd, sWq, s(sWoff), 0, cfg.wq_pol)],
                [dma(vWd + 1, sWq, s(sWoff), 1024, cfg.wq_pol)],
                [dma(vWd + 2, sWq, s(sWoff), 2048, cfg.wq_pol), 's_add_u32 %s, %s, %d' % (s(sWoff), s(sWoff), 32 * 12288)]]
    A('s_cmp_eq_u32 %s, 0' % s(sG)); A('s_cbranch_scc1 L_p0')
    for t in flat(x_issue(0, 2, False) + w_issue(0) + x_issue(1, 2, False)): A(t)
    A('s_branch L_p1')
    A('L_p0:')
    if cfg.codepf:
        A('s_getpc_b64 %s' % s(70, 2))
        A('L_pc:')
        A('s_and_b32 %s, %s, 7' % (s(sT1), s(sB))); A('s_lshl_b32 %s, %s, 2' % (s(sT1), s(sT1)))
        A('s_add_u32 %s, %s, %s' % (s(sT1), s(sT1), s(sWv)))
        A('s_mul_i32 %s, %s, CODE_SHARE-0' % (s(sT1), s(sT1)))
        A('v_lshlrev_b32 %s, 7, %s' % (v(b), v(L)))
        A('v_min_u32 %s, CODE_SHARE-128, %s' % (v(b), v(b)))
        A('v_add_u32 %s, %s, %s' % (v(b), s(sT1), v(b)))
        A('v_min_u32 %s, CODE_LAST-0, %s' % (v(b), v(b)))
        A('global_load_dword %s, %s, %s' % (v(SB[0]), v(b), s(70, 2)))
    A('L_p1:')
    A('s_lshl_b32 %s, %s, 4' % (s(sT0), s(sB))); A('s_add_u32 %s, %s, %s' % (s(sT0), s(sT0), s(sHp)))
    A('s_mul_i32 %s, %s, 393216' % (s(sT1), s(sT0)))
    A('s_add_u32 %s, s6, %s' % (s(sK), s(sT1))); A('s_addc_u32 %s, s7, 0' % s(sK + 1))
    A('s_mov_b32 %s, 393216' % s(sK + 2)); A('s_mov_b32 %s, 0x20000' % s(sK + 3))
    A('s_add_u32 %s, s8, %s' % (s(sV), s(sT1))); A('s_addc_u32 %s, s9, 0' % s(sV + 1))
    A('s_mov_b32 %s, 393216' % s(sV + 2)); A('s_mov_b32 %s, 0x20000' % s(sV + 3))
    A('s_mul_i32 %s, %s, %d' % (s(sT1), s(sT0), cfg.pstride))
    A('s_add_u32 %s, s14, %s' % (s(sP), s(sT1))); A('s_addc_u32 %s, s15, 0' % s(sP + 1))
    A('s_mov_b32 %s, 163840' % s(sP + 2)); A('s_mov_b32 %s, 0x20000' % s(sP + 3))
    A('s_mov_b32 %s, s12' % s(sWo)); A('s_mov_b32 %s, s13' % s(sWo + 1))
    A('s_mov_b32 %s, 7864320' % s(sWo + 2)); A('s_mov_b32 %s, 0x20000' % s(sWo + 3))
    A('s_mul_i32 %s, %s, 491520' % (s(sO1), s(sHp)))
    A('s_mul_i32 %s, %s, 6144' % (s(sW6k), s(sWv)))
    A('s_min_u32 %s, %s, 1' % (s(sEx), s(sWv))); A('s_add_u32 %s, %s, %s' % (s(sEx), s(sEx), s(sWv)))
    A('s_cmp_eq_u32 %s, 3' % s(sWv)); A('s_cselect_b32 %s, 6, %s' % (s(sEx), s(sEx)))
    A('s_mul_i32 %s, %s, %d' % (s(sEx), s(sEx), TILE))
    A('s_lshl_b32 %s, %s, 11' % (s(sSt), s(sWv)))
    A('s_add_u32 %s, %s, 1024' % (s(sSt1), s(sSt)))
    A('s_cmp_eq_u32 %s, 3' % s(sWv)); A('s_cselect_b32 %s, 0x40000000, %s' % (s(sSt1), s(sSt1)))
    A('s_lshl_b32 %s, %s, 1' % (s(sT1), s(sWv)))
    for p in range(3):
        A('v_mul_u32_u24 %s, 384, %s' % (v(e), v(vKd + p)))
        A('v_subrev_u32 %s, %d, %s' % (v(e), 1024 * p, v(e)))
        A('v_bfe_u32 %s, %s, 1, 1' % (v(d), v(vKd + p)))
        A('v_or_b32 %s, %s, %s' % (v(d), s(sT1), v(d)))
        A('v_and_or_b32 %s, %s, 2, %s' % (v(c), v(vKd + p), s(sT2)))
        A('v_xor_b32 %s, %s, %s' % (v(d), v(vVd + p), v(d)))
        A('v_xor_b32 %s, %s, %s' % (v(c), v(vVd + p), v(c)))
        A('v_lshl_add_u32 %s, %s, 4, %s' % (v(vKd + p), v(d), v(e)))
        A('v_lshl_add_u32 %s, %s, 4, %s' % (v(vVd + p), v(c), v(e)))
    A('v_and_b32 %s, 15, %s' % (v(I16), v(L)))
    A('v_lshrrev_b32 %s, 2, %s' % (v(a), v(I16)))
    A('v_and_b32 %s, 3, %s' % (v(d), v(I16)))
    A('v_lshl_add_u32 %s, %s, 3, %s' % (v(b), v(a), v(d)))
    A('v_mul_u32_u24 %s, 384, %s' % (v(b), v(b)))
    A('v_lshrrev_b32 %s, 1, %s' % (v(c), v(I16)))
    A('v_xor_b32 %s, %s, %s' % (v(c), v(c), v(G)))
    A('v_lshl_add_u32 %s, %s, 4, %s' % (v(vKa), v(c), v(b)))
    A('v_lshlrev_b32 %s, 7, %s' % (v(b), v(I16)))
    A('v_add_u32 %s, %s, %s' % (v(b), s(sXm0), v(b)))
    A('v_lshl_add_u32 %s, %s, 4, %s' % (v(vXa), v(c), v(b)))
    A('v_xor_b32 %s, 64, %s' % (v(vXa + 1), v(vXa)))
    A('v_bfe_u32 %s, %s, 3, 2' % (v(F), v(L)))
    A('v_lshlrev_b32 %s, 5, %s' % (v(F), v(F)))
    A('v_lshl_add_u32 %s, %s, 3, %s' % (v(F), v(d), v(F)))
    A('v_lshl_add_u32 %s, %s, 3, %s' % (v(b), v(G), v(a)))
    A('v_mul_u32_u24 %s, 384, %s' % (v(b), v(b)))
    A('v_add_u32 %s, %s, %s' % (v(vVa), v(b), v(F)))
    A('v_add_u32 %s, %d, %s' % (v(vWa), WBASE, v(vVa)))
    for u in range(1, 4): A('v_xor_b32 %s, %d, %s' % (v(vWa + u), 32 * u, v(vWa)))
    A('v_lshl_add_u32 %s, %s, 2, %s' % (v(b), v(G), v(a)))
    A('v_lshl_add_u32 %s, %s, 7, %s' % (v(vOa), v(b), v(F)))
    A('s_mul_i32 %s, %s, %d' % (s(sT0), s(sWv), 48 * 1280))
    A('v_lshrrev_b32 %s, 3, %s' % (v(a), v(L)))
    A('v_mul_u32_u24 %s, 1280, %s' % (v(a), v(a)))
    A('v_and_b32 %s, 7, %s' % (v(b), v(L)))
    A('v_lshlrev_b32 %s, 1, %s' % (v(c), v(G)))
    A('v_xor_b32 %s, %s, %s' % (v(b), v(b), v(c)))
    A('v_lshlrev_b32 %s, 4, %s' % (v(b), v(b)))
    A('v_add3_u32 %s, %s, %s, %s' % (v(vOd), v(a), v(b), s(sT0)))
    A('v_lshlrev_b32 %s, 4, %s' % (v(vL16), v(L)))
    cc = math.log2(math.e) / math.sqrt(192.0)
    A('s_mov_b32 %s, 0x%08x' % (s(sC), f32bits(cc)))
    A('s_mov_b32 %s, 0x%08x' % (s(sTc), f32bits(cfg.thr)))
    for i in range(4): A('v_mov_b32 %s, 0x3f803f80' % v(vOne + i))
    A('s_mov_b32 %s, 0' % s(sFlag))
    A('s_mul_i32 %s, %s, %d' % (s(sCur), s(sG), (32 % NKV) * TILE))
    A('s_mov_b32 %s, 0' % s(sPrev))
    A('s_mov_b32 %s, 4' % s(sKoff)); A('s_mov_b32 %s, 2' % s(sVoff))
    if cfg.rot: A('s_add_u32 %s, %s, %s' % (s(sRot), s(sB), s(sHp)))
    else: A('s_mov_b32 %s, 0' % s(sRot))
    for i in list(range(ACC, ACC + 96)) + list(range(QF + 24, QF + 32)) + list(range(AF + 12, AF + 24)): A('v_mov_b32 %s, 0' % v(i))
    A('s_mov_b32 %s, 0' % s(sCnt))
    checks.append(('prologue', A.lines[m0:]))
    if cfg.light:
        A('s_cmp_eq_u32 %s, 3' % s(sWv)); A('s_cbranch_scc1 L_light')

    def body(NT, X):
        TT = range(NT)
        dupx = (NT == 2 and not cfg.light)
        def x_reads(slot):
            return [('ds_read_b128 %s, %s%s' % (v(QF + 16 * slot + 8 * ss + 4 * t, 4), v(vXa + ss), off(slot * XSLOT + 2048 * t)), 'x')
                    for ss in range(2) for t in TT]
        def q_frags(r):
            fr = []
            for dt in range(12):
                buf = AF + 4 * (dt % 6)
                rds = ['ds_read_b64_tr_b16 %s, %s%s' % (v(buf + 2 * vv, 2), v(vWa + (dt & 3)),
                        off(r * TILE + 4 * vv * 384 + 128 * (dt >> 2))) for vv in range(2)]
                fr.append((rds, [mfma(ACC + 48 * t + 4 * dt, buf, QF + 16 * (r >> 1) + 8 * (r & 1) + 4 * t) for t in TT]))
            return fr
        qlag = [(None, f[1]) for f in q_frags(3)[-LAG:]]
        nx = 2 * NT
        A('s_cmp_eq_u32 %s, 0' % s(sG)); A('s_cbranch_scc0 L_g2a' + X)
        stamp(1)
        wb(None, False)
        for t in x_reads(0): A(t[0])
        A('L_qloop%s:' % X)
        m1 = A.mark()
        prev = qlag
        for r in range(4):
            wb()
            fill = {}
            if r % 2 == 1:
                xr = x_reads(((r + 1) >> 1) & 1)
                fill = {5 + i: [x] for i, x in enumerate(xr)}
            prev = untag(pipe_step(A, prev, q_frags(r), fill))
        A('s_add_u32 %s, %s, 1' % (s(sCnt), s(sCnt))); A('s_cmp_lt_u32 %s, 5' % s(sCnt)); A('s_cbranch_scc1 L_qloop' + X)
        qbody = A.lines[m1:]
        checks.append(('qloop', qbody + qbody))
        A('s_waitcnt vmcnt(0) lgkmcnt(0)')
        A('s_branch L_qend' + X)
        A('L_g2a%s:' % X)
        def kv_static(q):
            if q == 64: isv, tile = True, 31
            elif q % 2 == 0: isv, tile = False, q // 2
            else: isv, tile = True, (q - 3) // 2
            srd, vd = (sV, vVd) if isv else (sK, vKd)
            return [['s_add_u32 %s, %s, %d' % (s(sHi), s(sRot), tile & 15), 's_and_b32 %s, %s, 15' % (s(sHi), s(sHi)),
                     's_or_b32 %s, %s, %d' % (s(sHi), s(sHi), tile & 16),
                     's_add_u32 m0, %s, %d' % (s(sW3k), (q % NKV) * TILE), 's_mul_i32 %s, %s, %d' % (s(sHi), s(sHi), TILE),
                     dma(vd, srd, s(sHi), 0, cfg.kv_pol)], [dma(vd + 1, srd, s(sHi), 1024, cfg.kv_pol)], [dma(vd + 2, srd, s(sHi), 2048, cfg.kv_pol)]]
        def kv_dyn(isv):
            srd, vd, soff = (sV, vVd, sVoff) if isv else (sK, vKd, sKoff)
            return [['s_add_u32 %s, %s, %s' % (s(sHi), s(sRot), s(soff)), 's_and_b32 %s, %s, 15' % (s(sHi), s(sHi)),
                     's_and_b32 %s, %s, 16' % (s(sT2), s(soff)), 's_or_b32 %s, %s, %s' % (s(sHi), s(sHi), s(sT2)),
                     's_add_u32 m0, %s, %s' % (s(sW3k), s(sPrev)), 's_mul_i32 %s, %s, %d' % (s(sHi), s(sHi), TILE),
                     dma(vd, srd, s(sHi), 0, cfg.kv_pol)],
                    ['s_add_u32 %s, %s, %d' % (s(sPrev), s(sPrev), TILE),
                     's_cmp_ge_u32 %s, %d' % (s(sPrev), NKV * TILE),
                     's_cselect_b32 %s, 0, %s' % (s(sPrev), s(sPrev)),
                     dma(vd + 1, srd, s(sHi), 1024, cfg.kv_pol)],
                    [dma(vd + 2, srd, s(sHi), 2048, cfg.kv_pol), 's_add_u32 %s, %s, 1' % (s(soff), s(soff))]]
        m1 = A.mark()
        for t in flat(w_issue(1) + w_issue(2)): A(t)
        vm = Vm([('x', 0)] * 4 + [('w', 0)] * 3 + [('x', 1)] * 4 + [('w', 1)] * 3 + [('w', 2)] * 3)
        wb(vm.need(('x', 0)), False)
        kvpos = [0, 2, 3, 4, 5, 6]
        for st in range(21):
            ws = [vm.need(('x', (st + 1) // 2)) if st % 2 == 1 else None, vm.need(('w', st)) if st < 20 else None,
                  vm.need(('kv', 0)) if st == 20 else None]
            ws = [w for w in ws if w is not None]
            wb(ws[-1] if ws else None, False)
            if st == 16: A('s_mov_b32 %s, 0' % s(sXoff))
            if st == 17: A('s_mov_b32 %s, 384' % s(sWoff))
            if st % 2 == 0 and st < 20:
                for t in flat(x_issue((st // 2) & 1, NT, False)): A(t)
                vm.add(('x', st // 2 + 2), nx)
            if st < 20:
                for t in flat(w_issue((st + 3) & 3)): A(t)
                vm.add(('w', st + 3), 3)
            for i in range(6):
                if cfg.kv_at + i * cfg.kv_every == st:
                    for t in flat(kv_static(kvpos[i])): A(t)
                    vm.add(('kv', kvpos[i]), 3)
        assert cfg.kv_at + 5 * cfg.kv_every < 20
        stamp(1)
        for t in x_reads(0): A(t[0])
        A('s_waitcnt vmcnt(0)')
        checks.append(('g2 pro', A.lines[m1:]))
        if cfg.exp & 1: A('s_mov_b32 %s, 0x40000000' % s(sWoff))
        if cfg.exp & 3: A('s_mov_b32 %s, 0x40000000' % s(sXoff))
        A('L_q2loop%s:' % X)
        m1 = A.mark()
        allf = q_frags(0) + q_frags(1) + q_frags(2) + q_frags(3)
        prev = qlag
        for cch in range(6):
            wb(15 + nx)
            kd = kv_dyn(cch % 2 == 0)
            fill = {0: kd[0], 1: kd[1], 2: kd[2]}
            ii = x_issue(0 if cch == 1 else 1, NT) if cch in (1, 4) else w_issue({0: 3, 2: 0, 3: 1, 5: 2}[cch])
            fill = merge(fill, {3 + i: l for i, l in enumerate(ii)})
            if cch in (2, 5):
                xr = x_reads(1 if cch == 2 else 0)
                fill = merge(fill, {3 + i: [x] for i, x in enumerate(xr)})
            prev = untag(pipe_step(A, prev, allf[8 * cch:8 * cch + 8], fill))
        A('s_add_u32 %s, %s, 1' % (s(sCnt), s(sCnt))); A('s_cmp_lt_u32 %s, 5' % s(sCnt)); A('s_cbranch_scc1 L_q2loop' + X)
        body2 = A.lines[m1:]
        checks.append(('q2loop', body2 + body2))
        wb(15 + nx)
        for t in flat(kv_dyn(True)): A(t)
        A('L_qend%s:' % X)
        m2 = A.mark()
        for _, ms in qlag:
            for m in ms: A(m)
        addr_k = ['v_add_u32 %s, %s, %s' % (v(vKr), s(sCur), v(vKa)), 'v_xor_b32 %s, 64, %s' % (v(vKr + 1), v(vKr))]
        addr_v = ['v_add_u32 %s, %s, %s' % (v(vVr), s(sCur), v(vVa))] + \
                 ['v_xor_b32 %s, %d, %s' % (v(vVr + u), 32 * u, v(vVr)) for u in range(1, 4)]
        for t in addr_k: A(t)
        for i in range(4 * NT): A('v_mov_b32 %s, 0' % v(P + i)); A('v_mov_b32 %s, 0' % v(vLa + i))
        A('v_mov_b32 %s, %s' % (v(vF), s(sC)))
        nq = 24 * NT
        for i in range(nq + 2):
            if i < nq:
                for x in mul2(ACC + 2 * i, 0): A(x)
            if i >= 2: A('v_cvt_pk_bf16_f32 %s, %s, %s' % (v(QF + i - 2), v(ACC + 2 * i - 4), v(ACC + 2 * i - 3)))
        for op in ('v_permlane32_swap_b32', 'v_permlane16_swap_b32'):
            for f in range(nq // 4):
                for k in range(2): A('%s %s, %s' % (op, v(QF + 4 * f + k), v(QF + 4 * f + 2 + k)))
        if cfg.prio: A('s_setprio %d' % cfg.prio)
        def k_frags(Sb, first=False):
            fr = []
            for ss in range(6):
                for ee in range(2):
                    j = 2 * ss + ee; buf = AF + 4 * (j % 6)
                    fr.append((['ds_read_b128 %s, %s%s' % (v(buf, 4), v(vKr + (ss & 1)), off(128 * (ss >> 1) + 1536 * ee))],
                               [mfma(Sb + 8 * t + 4 * ee, buf, QF + 24 * t + 4 * ss, ss == 0 and first, vNM + 4 * t if ss == 0 else None) for t in TT]))
            return fr
        def v_frags():
            fr = []
            for dt in range(12):
                buf = AF + 4 * (dt % 6)
                rds = ['ds_read_b64_tr_b16 %s, %s%s' % (v(buf + 2 * vv, 2), v(vVr + (dt & 3)), off(1536 * vv + 128 * (dt >> 2))) for vv in range(2)]
                fr.append((rds, [mfma(ACC + 48 * t + 4 * dt, buf, P + 4 * t) for t in TT]))
            return fr
        ring_adv = ['s_add_u32 %s, %s, %d' % (s(sCur), s(sCur), TILE),
                    's_cmp_ge_u32 %s, %d' % (s(sCur), NKV * TILE),
                    's_cselect_b32 %s, 0, %s' % (s(sCur), s(sCur))]
        rare_tags = []; resc_tags = []
        def sm_max(Sb, tag):
            l = []
            for k in range(4):
                for t in TT:
                    tt = v(vT0 + t); bs = Sb + 8 * t
                    if k == 0: l.append('v_max3_f32 %s, %s, %s, %s' % (tt, v(bs), v(bs + 1), v(bs + 2)))
                    elif k < 3: l.append('v_max3_f32 %s, %s, %s, %s' % (tt, tt, v(bs + 1 + 2 * k), v(bs + 2 + 2 * k)))
                    else: l.append('v_max_f32 %s, %s, %s' % (tt, tt, v(bs + 7)))
            if tag is None: return l
            if NT == 2: l2 = ['v_max_f32 %s, %s, %s' % (v(vT2), v(vT0), v(vT1)), 'v_cmp_lt_f32 vcc, %s, %s' % (s(sTc), v(vT2))]
            else: l2 = ['v_cmp_lt_f32 vcc, %s, %s' % (s(sTc), v(vT0))]
            l2 += ['s_cbranch_vccnz L_rare_%s%s' % (tag, X), 'L_ret_%s%s:' % (tag, X)]
            rare_tags.append((tag, Sb))
            return l, l2
        def xlane(op, r):
            l = []
            for sw in ('v_permlane32_swap_b32', 'v_permlane16_swap_b32'):
                l += ['v_mov_b32 %s, %s' % (v(vT2), v(r)), 's_nop 1', '%s %s, %s' % (sw, v(r), v(vT2)),
                      '%s %s, %s, %s' % (op, v(r), v(r), v(vT2))]
            return l
        lsum = [mfma(vLa + 4 * t, vOne, P + 4 * t) for t in TT]
        def cvt(Sb, k): return 'v_cvt_pk_bf16_f32 %s, %s, %s' % (v(P + k), v(Sb + 2 * k), v(Sb + 2 * k + 1))
        VG = [6, 7, 8, 9, 10, 11]; KG = list(range(0, 11))
        def sm_fill(Sb):
            it = []
            it += [('v_exp_f32 %s, %s' % (v(Sb + r), v(Sb + r)), 2) for r in range(8 * NT)]
            it += [(cvt(Sb, k), 1) for k in range(4 * NT)]
            caps = [('v', g, cfg.vw) for g in VG] + [('k', g, cfg.kw) for g in KG]
            tot = sum(c for _, c in it); ctot = sum(c for _, _, c in caps)
            vf = {g: [] for g in VG}; kf = {g: [] for g in KG}
            acc = 0.0; gi = 0; lim = caps[0][2] * tot / ctot
            for tx, c in it:
                while acc + c / 2.0 > lim and gi < len(caps) - 1:
                    gi += 1; lim += caps[gi][2] * tot / ctot
                (vf if caps[gi][0] == 'v' else kf)[caps[gi][1]].append(tx); acc += c
                if tx.startswith('v_cvt'): assert caps[gi][0] == 'k' and caps[gi][1] >= 2
            return vf, kf
        def resc(tag):
            resc_tags.append(tag)
            return ['s_cmp_lg_u32 %s, 0' % s(sFlag), 's_cbranch_scc1 L_resc_%s%s' % (tag, X), 'L_rret_%s%s:' % (tag, X)]
        wb(11 + nx, False)
        stamp(3)
        zero_acc = ['v_mov_b32 %s, 0' % v(ACC + i) for i in range(48 * NT)]
        zn = 3 * NT
        fill = {0: ring_adv}
        for g in range(1, 9): fill[g] = zero_acc[(g - 1) * zn:g * zn]
        prev = untag(pipe_step(A, [], k_frags(SB[0], True), fill))
        wb(8 + nx)
        for k, (_, ms) in enumerate(prev):
            for m in ms: A(m)
            for t in zero_acc[(8 + k) * zn:(9 + k) * zn]: A(t)
        for t in ring_adv + addr_k + zero_acc[11 * zn:]: A(t)
        for t in sm_max(SB[0], None): A(t)
        for t in TT:
            for x in xlane('v_max_f32', vT0 + t): A(x)
            for i in range(4): A('v_sub_f32 %s, 0, %s' % (v(vNM + 4 * t + i), v(vT0 + t)))
            for i in range(8): A('v_sub_f32 %s, %s, %s' % (v(SB[0] + 8 * t + i), v(SB[0] + 8 * t + i), v(vT0 + t)))
        vf0, kf0 = sm_fill(SB[0]); vf1, kf1 = sm_fill(SB[1])
        for g in VG:
            for t in vf0[g]: A(t)
        A('s_mov_b32 %s, 0' % s(sFlag))
        A('s_mov_b32 %s, 0' % s(sCnt))
        A('s_waitcnt vmcnt(0)')
        checks.append(('q->attn', qbody[-40:] + A.lines[m2:]))
        pre_loop = A.lines[-40:]
        A('L_aloop%s:' % X)
        m3 = A.mark()
        pv_lag = [(None, f[1]) for f in v_frags()[-LAG:]]
        for par in range(2):
            kf = (kf0, kf1)[par]; vf = (vf1, vf0)[par]; Sn = SB[par ^ 1]
            wb()
            fill = merge(kf, {2: resc('l%d' % par), 10: ring_adv, 11: addr_v})
            prev = untag(pipe_step(A, pv_lag, k_frags(Sn), fill))
            wb()
            mx, mx2 = sm_max(Sn, 'l%d' % par)
            h = len(mx) // 2
            fill = merge({0: ring_adv, 2: addr_k + lsum, 4: mx[:h], 5: mx[h:] + mx2}, vf)
            if par == 0: fill = merge(fill, {11: ['s_add_u32 %s, %s, 1' % (s(sCnt), s(sCnt)), 's_cmp_eq_u32 %s, 8' % s(sCnt)]})
            prev = untag(pipe_step(A, prev, v_frags(), fill))
            if par == 0:
                A('s_cbranch_scc1 L_aexit' + X); ahalf = A.lines[m3:]
        A('s_branch L_aloop' + X)
        abody = A.lines[m3:]
        checks.append(('aloop', pre_loop + abody + abody))
        abody = ahalf
        A('L_aexit%s:' % X)
        stamp(4)
        def st_slot(j): return SS[j % 3] if j <= 12 else {13: SS[3], 14: 0, 15: 24576, 16: SS[1], 17: SS[2], 18: SS[0], 19: SS[3]}[j]
        def st_issue(j, part):
            o = ((j + 1) % 10) * 128 if j < 10 else 245760 + (j - 10) * 128
            o += part * 30720
            l = [['s_add_u32 m0, %s, %d' % (s(sW6k), st_slot(j) + part * 3072)], [], []]
            for i in range(3):
                l[i] += ['s_add_u32 %s, %s, %d' % (s(sT0 + i), s(sO1), o + i * 9216), dma(vOd, sWo, s(sT0 + i), 1024 * i, cfg.wo_pol)]
            return l
        def st_load(j, i, dst):
            o = 245760 + (j - 10) * 128 + i * 10240
            return ['s_add_u32 %s, %s, %d' % (s(sT1), s(sO1), o),
                    'buffer_load_dwordx4 %s, %s, %s, %s offen%s' % (v(dst, 4), v(vOd), s(sWo, 4), s(sT1), cfg.wo_pol)]
        stg = {14: 96, 15: 120, 16: 144, 17: 168, 18: 192, 19: 216}
        def attn_end(g, vm):
            Sb = SB[1]
            rest = [t for gg in KG for t in kf1[gg]]
            rcp = ['v_rcp_f32 %s, %s' % (v(vF + t), v(vLa + 4 * t)) for t in TT]
            def fin(ss):
                l1 = []; l2 = []
                for t in TT:
                    bs = ACC + 48 * t + 8 * ss; dst = QF + 24 * t + 4 * ss
                    l1 += flat([mul2(bs + 2 * k, t) for k in range(4)])
                    l2 += ['v_cvt_pk_bf16_f32 %s, %s, %s' % (v(dst + k), v(bs + 2 * k), v(bs + 2 * k + 1)) for k in range(4)]
                    if g == 1: l2.append(('ds_write_b128 %s, %s%s' % (v(vOr), v(dst, 4), off(1024 * (6 * t + ss))), 'w'))
                return l1, l2
            if g == 0:
                wb()
                for k, (_, ms) in enumerate(pv_lag):
                    for m in ms: A(m)
                    if k < 2:
                        for t in rest[2 * k:2 * k + 2]: A(t)
                for t in flat(kv_static(38)) + rest[4:] + resc('e0') + ring_adv + lsum + addr_v + flat(st_issue(0, 0)) + rcp: A(t)
                vm.add(('kv', 38), 3); vm.add(('st', 0), 3)
                wb(None, False)
                kk = kv_static(39); ii = st_issue(0, 1)
                fill = {0: kk[0], 1: kk[1], 2: kk[2], 3: ii[0], 4: ii[1], 5: ii[2]}
                vm.add(('kv', 39), 3); vm.add(('st', 0), 3)
                prev = []; o = 0
            else:
                for t in addr_v + ['v_add_u32 %s, %s, %s' % (v(vOr), s(sEx), v(vL16))]: A(t)
                wb()
                fill = {0: rest[0:2], 1: rest[2:4], 2: rest[4:] + resc('e1') + ['s_nop 0'] + lsum, 6: rcp}
                prev = pv_lag; o = 3
            for ss in range(4):
                l1, l2 = fin(ss)
                fill = merge(fill, {o + 2 * ss + 4: l1, o + 2 * ss + 5: l2})
            pipe_step(A, prev, v_frags(), fill, lag=0)
            l1, l2 = fin(4); l3, l4 = fin(5)
            if NT == 1: A('s_nop 3')
            for t in l1 + l2 + l3 + l4: emit(A, t)
            if cfg.prio: A('s_setprio 0')
            if g == 0:
                wb()
                for t in flat(kv_static(40)) + flat(st_issue(1, 0)): A(t)
                vm.add(('kv', 40), 3); vm.add(('st', 1), 3)
        A('s_cmp_lg_u32 %s, 0' % s(sG)); A('s_cbranch_scc1 L_g2tail' + X)
        m5 = A.mark()
        vm = Vm()
        if cfg.exp & 4: A('s_mov_b32 %s, 0x40000000' % s(sO1))
        attn_end(0, vm)
        def o_frags(u, acc, zero, extra=None):
            fr = []
            for ee in range(2):
                for ss in range(6):
                    buf = AF + 4 * ss
                    rds = ['ds_read_b64_tr_b16 %s, %s%s' % (v(buf + 2 * vv, 2), v(vOr), off(4096 * ss + 2048 * vv)) for vv in range(2)]
                    if extra and ee == 0: rds = extra(ss) + rds
                    if ss == 0:
                        if ee == 1: ad = 'v_xor_b32 %s, 32, %s' % (v(vOr), v(vOr))
                        elif u % 2 == 0: ad = 'v_add_u32 %s, %d, %s' % (v(vOr), st_slot(u // 2), v(vOa))
                        else: ad = 'v_xor_b32 %s, 96, %s' % (v(vOr), v(vOr))
                        rds = [ad] + rds
                    fr.append((rds, [mfma(acc + 8 * t + 4 * ee, buf, QF + 24 * t + 4 * ss, ss == 0 and zero) for t in TT]))
            return fr
        def pack_to(dst, acc):
            return ['v_cvt_pk_bf16_f32 %s, %s, %s' % (v(dst + k), v(acc + 2 * k), v(acc + 2 * k + 1)) for k in range(4 * NT)]
        wb(None, False)
        for t in flat(kv_static(41)) + flat(st_issue(1, 1)): A(t)
        vm.add(('kv', 41), 3); vm.add(('st', 1), 3)
        allo = []
        for n in range(20): allo += o_frags(n, TACC[n & 1], True)
        gfill = {}
        for n in range(18):
            pk = pack_to(stash(n + 2), TACC[n & 1])
            gfill[12 * n + 11 + 4] = pk[0:4]; gfill[12 * n + 11 + 5] = pk[4:8]
        nch = cfg.onch
        cb = [(240 * k) // nch for k in range(nch + 1)]
        assert 56 + nch <= 84
        pend = [(2, 0), (2, 1)]; rel = 0; prev = []
        for st in range(56, 85):
            k = st - 56
            ws = [vm.need(('kv', st - 20)), vm.need(('st', (cb[k + 1] - 1) // 24)) if k < nch else None]
            ws = [w for w in ws if w is not None]
            wb(ws[-1] if ws else None, k <= nch)
            while rel < 10 and cb[min(k, nch)] >= 24 * (rel + 1):
                pend += [(rel + 3, 0), (rel + 3, 1)]; rel += 1
            if st == 82: pend += [(13, 0), (13, 1)]
            kk = [[], [], []]
            if st - 14 <= 64:
                kk = kv_static(st - 14); vm.add(('kv', st - 14), 3)
            iss = []
            for _ in range(1 if st < 79 else (2 if st < 85 else 9)):
                if pend:
                    j, hh = pend.pop(0)
                    iss += st_issue(j, hh); vm.add(('st', j), 3)
            if cfg.warm_step <= st < cfg.warm_step + 3:
                kw = st - cfg.warm_step
                wl = []
                if kw == 0:
                    wl += ['s_lshl_b32 %s, %s, 2' % (s(sCnt), s(sB)), 's_add_u32 %s, %s, %s' % (s(sCnt), s(sCnt), s(sWv)),
                           's_mul_i32 %s, %s, %d' % (s(sCnt), s(sCnt), 3 * 1280), 's_add_u32 %s, %s, %s' % (s(sCnt), s(sCnt), s(sO1))]
                wl += ['s_lshl_b32 %s, %s, 10' % (s(sT2), s(sWv)), 's_add_u32 m0, %s, 159744' % s(sT2),
                       's_add_u32 %s, %s, %d' % (s(sT2), s(sCnt), 245760 + 512 + 1280 * kw),
                       's_mov_b32 exec_hi, 0xffff', dma(vL16, sWo, s(sT2), 0, cfg.wo_pol), 's_mov_b32 exec_hi, -1']
                iss = iss + [wl]; vm.add('warm', 1)
            if k < nch:
                if st == 78: fill = {-1: flat(kk)}
                else: fill = {0: kk[0], 1: kk[1], 2: kk[2]}
                g0 = 3 if st < 79 else 0
                if k == 0: g0 = 2
                fill = merge(fill, {g0 + i: l for i, l in enumerate(iss)})
                first = cb[k] - len(prev)
                for gi in range(first, cb[k + 1] - LAG):
                    if gi in gfill: fill = merge(fill, {gi - first: gfill[gi]})
                assert max(fill) < cb[k + 1] - LAG - first
                prev = untag(pipe_step(A, prev, allo[cb[k]:cb[k + 1]], fill))
            else:
                if k == nch:
                    for _, ms in prev:
                        for m in ms: A(m)
                for t in flat(kk) + flat(iss): A(t)
        dead = set()
        for ins in A.lines[m5:]:
            if ins.is_dma: assert not (ins.r & dead), ins.text
            dead |= ins.w & {'v%d' % i for i in range(vKd, vKd + 6)}
        assert not pend and rel == 10
        A('v_add_u32 %s, %s, %s' % (v(vOd), s(sEx), v(vL16)))
        wb(vm.need(('st', 10)), False)
        stamp(7)
        prev = []
        def outreg(t): return TACC[t & 1] if t in (0, 19) else stash(t + 1)
        def store(n):
            o = outreg(n)
            l = [['s_add_u32 %s, %s, %d' % (s(sT0), s(sSt if t == 0 else sSt1), 8192 * n),
                  'buffer_store_dwordx4 %s, %s, %s, %s offen%s' % (v(o + 4 * t, 4), v(vL16), s(sP, 4), s(sT0), cfg.st_pol)] for t in TT]
            return l + [[]] * (2 - NT)
        def unpack(n):
            acc = TACC[n & 1]; sr = stash(n); un = []
            for k in reversed(range(4 * NT)):
                un.append('v_lshlrev_b32 %s, 16, %s' % (v(acc + 2 * k), v(sr + k)))
                un.append('v_and_b32 %s, 0xffff0000, %s' % (v(acc + 2 * k + 1), v(sr + k)))
            return un
        carry = {}
        nst = 1
        for u in range(20):
            reset = True
            if u % 2 == 0 and u > 0: wb(vm.need(('st', 10 + u // 2)))
            elif u > 0: reset = False
            fill = dict(carry); carry = {}
            if u >= 1:
                pk = pack_to(outreg(u - 1), TACC[(u - 1) & 1])
                un = unpack(u + 1) if u + 1 < 20 else []
                fill = merge(fill, {5: pk[0:4], 6: pk[4:8], 9: un[0:4], 10: un[4:8], 11: un[8:12]})
                carry = {0: un[12:16]}
                if u == 1:
                    sl = store(0); fill = merge(fill, {6: sl[0], 7: sl[1]}); vm.add('store', NT)
                gaps = [1, 3, 7, 8, 2, 4]; gi = 0; cnt = 0
                while u >= cfg.st_delay and nst <= u - 2 and cnt < cfg.st_rate:
                    sl = store(nst)
                    fill = merge(fill, {gaps[gi]: sl[0], gaps[gi + 1]: sl[1]}); gi += 2
                    vm.add('store', NT); nst += 1; cnt += 1
            extra = None
            if u == 0:
                extra = lambda ss: ['ds_read_b128 %s, %s%s' % (v(QF + 24 * t + 4 * ss, 4), v(vOd), off(1024 * (6 * t + ss))) for t in TT]
            prev = pipe_step(A, untag(prev) if reset else prev, o_frags(20 + u, TACC[u & 1], False, extra), fill, reset=reset, tagp='t%d' % u)
        A('s_waitcnt lgkmcnt(0)')
        for _, ms in prev:
            for m in ms: A(m)
        while nst <= 18:
            for t in flat(store(nst)): A(t)
            nst += 1
        A('s_nop 5')
        for t in pack_to(outreg(19), TACC[1]) + flat(store(19)): A(t)
        checks.append(('g1 oproj', abody[-40:] + A.lines[m5:]))
        A('s_branch L_fin')
        A('L_g2tail%s:' % X)
        m6 = A.mark()
        vm = Vm()
        attn_end(1, vm)
        wb()
        stamp(7)
        regs = list(range(20 - cfg.nreg, 20))
        for n, j in enumerate(regs):
            for i in range(6):
                for t in st_load(j, i, 24 * n + 4 * i): A(t)
            vm.add(('st', j), 6)
        A('v_add_u32 %s, %s, %s' % (v(vOa), s(sW6k), v(vL16)))
        free_at = {14: 11, 15: 11, 16: 12, 17: 12, 18: 13, 19: 14}
        for j in range(11, 20):
            wb(vm.need(('st', j)) if j not in regs else None)
            for q in range(14, 20):
                if free_at[q] != j: continue
                if q in regs:
                    A('v_add_u32 %s, %d, %s' % (v(vOr), st_slot(q), v(vOa)))
                    w = vm.need(('st', q))
                    if w is not None: A('s_waitcnt vmcnt(%d)' % w)
                    for i in range(6): A('ds_write_b128 %s, %s%s' % (v(vOr), v(24 * regs.index(q) + 4 * i, 4), off(1024 * i)))
                else:
                    for t in flat(st_issue(q, 0) + st_issue(q, 1)): A(t)
                    vm.add(('st', q), 6)
        checks.append(('g2 tail', abody[-40:] + A.lines[m6:]))
        A('s_branch L_fin')
        tr = A.trace; A.trace = False
        for tag, Sb in rare_tags:
            m8 = A.mark()
            A('L_rare_%s%s:' % (tag, X))
            for t in TT:
                for x in xlane('v_max_f32', vT0 + t): A(x)
                A('v_max_f32 %s, 0, %s' % (v(vT0 + t), v(vT0 + t)))
                if cfg.dbgrare == 1: A('v_mov_b32 %s, 0' % v(vT0 + t))
                A('v_exp_f32 %s, -%s' % (v(vF + t), v(vT0 + t)))
                for i in range(4): A('v_sub_f32 %s, %s, %s' % (v(vNM + 4 * t + i), v(vNM + 4 * t + i), v(vT0 + t)))
                for i in range(8): A('v_sub_f32 %s, %s, %s' % (v(Sb + 8 * t + i), v(Sb + 8 * t + i), v(vT0 + t)))
            A('s_mov_b32 %s, 1' % s(sFlag))
            A('s_branch L_ret_%s%s' % (tag, X))
            checks.append(('rare', A.lines[m8:]))
        for tag in resc_tags:
            A('L_resc_%s%s:' % (tag, X))
            A('s_nop 15')
            for i in range(48 * NT): A('v_mul_f32 %s, %s, %s' % (v(ACC + i), v(ACC + i), v(vF + i // 48)))
            for i in range(4 * NT): A('v_mul_f32 %s, %s, %s' % (v(vLa + i), v(vLa + i), v(vF + i // 4)))
            A('s_mov_b32 %s, 0' % s(sFlag))
            A('s_nop 1')
            A('s_branch L_rret_%s%s' % (tag, X))
        A.trace = tr

    body(2, '')
    if cfg.light:
        A('L_light:')
        body(1, '_L')
    A.trace = False
    A('L_fin:')
    if cfg.stamp:
        A('s_waitcnt vmcnt(0)')
        stamp(10); stamp(12, True)
        A('s_mov_b32 %s, s14' % s(sP)); A('s_mov_b32 %s, s15' % s(sP + 1)); A('s_mov_b32 %s, 402653184' % s(sP + 2))
        A('s_lshl_b32 %s, s2, 3' % s(sT0)); A('s_add_u32 %s, %s, %s' % (s(sT0), s(sT0), s(sW8)))
        A('s_lshl_b32 %s, %s, 7' % (s(sT0), s(sT0))); A('s_add_u32 %s, %s, %d' % (s(sT0), s(sT0), 64 << 20))
        if cfg.stamp in (3, 6):
            A('s_lshl_b32 %s, s2, 3' % s(sT1)); A('s_add_u32 %s, %s, %s' % (s(sT1), s(sT1), s(sW8)))
            A('s_lshl_b32 %s, %s, 11' % (s(sT1), s(sT1))); A('s_add_u32 %s, %s, %d' % (s(sT1), s(sT1), 65 << 20))
            A('v_lshrrev_b32 v1, 2, %s' % v(vL16))
            for i in range(4):
                A('buffer_store_dword v%d, v1, %s, %s offen offset:%d' % (252 + i, s(sP, 4), s(sT1), 256 * i))
        A('v_mov_b32 v1, 0')
        A('s_mov_b64 exec, 1')
        for i in range(26):
            A('v_mov_b32 v0, %s' % s(76 + i))
            A('buffer_store_dword v0, v1, %s, %s offen offset:%d' % (s(sP, 4), s(sT0), 4 * i))
    A('L_end:')
    A('s_endpgm')
    A('.globl mha_k2_kernel'); A('.p2align 8'); A('.type mha_k2_kernel,@function'); A('mha_k2_kernel:')
    m9 = A.mark()
    A('s_cmp_ge_u32 s2, 256'); A('s_cbranch_scc1 L_end2')
    A('s_load_dwordx2 s[4:5], s[0:1], 40')
    A('s_load_dwordx2 s[8:9], s[0:1], 56')
    if cfg.dbg: A('s_memrealtime s[24:25]')
    A('v_readfirstlane_b32 s20, v0')
    A('v_and_b32 v2, 63, v0')
    A('s_lshr_b32 s20, s20, 6')
    A('s_lshr_b32 s13, s2, 4')
    A('s_and_b32 s14, s2, 15'); A('s_mul_i32 s14, s14, 5'); A('s_add_u32 s14, s14, s20')
    A('s_and_b32 s21, s14, 3')
    A('s_lshr_b32 s22, s14, 2')
    A('v_lshlrev_b32 v3, 4, v2')
    A('v_and_b32 v4, 15, v2')
    A('v_mul_u32_u24 v5, 1280, v4')
    A('v_lshrrev_b32 v6, 4, v2')
    A('v_lshl_add_u32 v5, v6, 4, v5')
    A('s_mul_i32 s15, s13, %d' % (16 * cfg.pstride))
    A('s_lshl_b32 s16, s14, 11'); A('s_add_u32 s15, s15, s16')
    A('s_mul_i32 s17, s13, 143360'); A('s_lshl_b32 s16, s22, 6'); A('s_add_u32 s17, s17, s16')
    A('s_mul_i32 s16, s21, %d' % (32 * 1280)); A('s_add_u32 s17, s17, s16')
    A('s_add_u32 s18, s17, %d' % (16 * 1280))
    A('s_cmp_eq_u32 s21, 3')
    A('s_cselect_b32 s18, 0x40000000, s18')
    A('s_cselect_b32 s19, 0x40000000, 0')
    A('v_add_u32 v7, s19, v3')
    A('s_mov_b32 s6, 2293760'); A('s_mov_b32 s7, 0x20000')
    A('s_mov_b32 s10, %d' % (256 * cfg.pstride)); A('s_mov_b32 s11, 0x20000')
    A('s_waitcnt lgkmcnt(0)')
    for p in range(16):
        A('buffer_load_dwordx4 %s, v3, s[8:11], s15 offen%s' % (v(32 + 8 * p, 4), cfg.r_pol))
        A('buffer_load_dwordx4 %s, v7, s[8:11], s15 offen offset:1024%s' % (v(36 + 8 * p, 4), cfg.r_pol))
        if p < 15: A('s_add_u32 s15, s15, %d' % cfg.pstride)
    for p in range(16):
        A('s_waitcnt vmcnt(%d)' % (2 * (15 - p)))
        for k in range(8):
            src = 32 + 8 * p + k
            if p == 0:
                A('v_lshlrev_b32 %s, 16, %s' % (v(8 + 2 * k), v(src)))
                A('v_and_b32 %s, 0xffff0000, %s' % (v(9 + 2 * k), v(src)))
            else:
                tt = 24 + 2 * (k & 1)
                A('v_lshlrev_b32 %s, 16, %s' % (v(tt), v(src)))
                A('v_and_b32 %s, 0xffff0000, %s' % (v(tt + 1), v(src)))
                A('v_pk_add_f32 %s, %s, %s' % (v(8 + 2 * k, 2), v(8 + 2 * k, 2), v(tt, 2)))
    for k in range(8): A('v_cvt_pk_bf16_f32 %s, %s, %s' % (v(24 + k), v(8 + 2 * k), v(9 + 2 * k)))
    for op in ('v_permlane32_swap_b32', 'v_permlane16_swap_b32'):
        for r in (24, 25, 28, 29): A('%s %s, %s' % (op, v(r), v(r + 2)))
    A('buffer_store_dwordx4 v[24:27], v5, s[4:7], s17 offen')
    A('buffer_store_dwordx4 v[28:31], v5, s[4:7], s18 offen')
    checks.append(('k2', A.lines[m9:]))
    if cfg.dbg:
        A('s_waitcnt vmcnt(0)')
        A('s_memrealtime s[26:27]')
        A('s_cmp_lg_u32 s20, 0'); A('s_cbranch_scc1 L_end2')
        A('s_mov_b32 s28, 0')
        A('s_cmp_eq_u32 s2, 0'); A('s_cbranch_scc1 L_dbgw')
        A('s_mov_b32 s28, 32')
        A('s_cmp_eq_u32 s2, 133'); A('s_cbranch_scc0 L_end2')
        A('L_dbgw:')
        A('s_load_dwordx2 s[4:5], s[0:1], 48'); A('s_mov_b32 s6, 256'); A('s_mov_b32 s10, 402653184')
        A('s_lshl_b32 s29, s2, 10'); A('s_add_u32 s29, s29, %d' % (64 << 20))
        A('v_mov_b32 v1, 0'); A('s_mov_b64 exec, 1')
        for k, i in enumerate((11, 2, 4, 6, 8, 12)):
            A('buffer_load_dword v%d, v1, s[8:11], s29 offen offset:%d' % (10 + k, 8 * i))
        A('s_waitcnt vmcnt(0) lgkmcnt(0)')
        A('v_mov_b32 v16, s24'); A('v_mov_b32 v17, s26')
        for k in range(1, 8):
            A('v_sub_u32 v%d, v%d, v10' % (10 + k, 10 + k))
            A('buffer_store_dword v%d, v1, s[4:7], s28 offen offset:%d' % (10 + k, 4 * (k - 1)))
    A('L_end2:')
    A('s_endpgm')
    if cfg.codepf:
        A('.set CODE_LAST, L_end2-L_pc')
        A('.set CODE_SHARE, ((L_end2-L_pc)/32/128+1)*128')
    A('.section .rodata,"a"')
    for name, nv, ns in (('mha_k1_kernel', 256, 102 if cfg.stamp else 80), ('mha_k2_kernel', 160, 32)):
        A('.p2align 6')
        A('.amdhsa_kernel %s' % name)
        A('  .amdhsa_next_free_vgpr %d' % nv); A('  .amdhsa_next_free_sgpr %d' % ns); A('  .amdhsa_accum_offset %d' % nv)
        A('  .amdhsa_group_segment_fixed_size 0'); A('  .amdhsa_kernarg_size 64'); A('  .amdhsa_user_sgpr_count 2')
        A('  .amdhsa_user_sgpr_kernarg_segment_ptr 1'); A('  .amdhsa_system_sgpr_workgroup_id_x 1')
        A('.end_amdhsa_kernel')
    nerr = 0
    for name, seq in checks:
        for e in check_seq(seq, name):
            print(e); nerr += 1
    assert nerr == 0, 'hazards'
    open(fname, 'w').write(A.text())

if __name__ == '__main__':
    cfg = Cfg()
    out = sys.argv[1] if len(sys.argv) > 1 else 'k.s'
    for kv in sys.argv[2:]:
        k, val = kv.split('=', 1)
        cur = getattr(cfg, k)
        setattr(cfg, k, type(cur)(val.replace('_', ' ')) if isinstance(cur, str) else type(cur)(val))
    gen(cfg, out)
```

```python
import sys, math, struct
from asmlib import Asm, check_seq, Ins, Vm

def f32bits(x): return struct.unpack('<I', struct.pack('<f', x))[0]

class Cfg:
    kv_pol = ' nt'
    wq_pol = ''
    wo_pol = ''
    x_pol = ''
    st_pol = ' sc1'
    r_pol = ''
    thr = 8.0
    prio = 0
    kv_at = 0
    kv_every = 3
    stamp = 0
    dbg = 0
    vw = 3.0
    kw = 4.5
    rot = 1
    pstride = 168192
    codepf = 1
    st_delay = 2
    st_rate = 2
    dbgrare = 0
    exp = 0
    o0 = 55
    c2 = 10
    c3 = 34
    warm_step = 70
    light = 1
    w2 = 1

TILE = 12288
NKV = 7
WBASE = NKV * TILE
XBASE = WBASE + 4 * TILE
XSLOT = 14336
LDS = 163840
LAG = 3
SS = [WBASE, WBASE + 24576, WBASE + 49152, 49152]

ACC = 0; QF = 96; P = 160; AF = 168
SB = [144, 232]
vNM = 192; vWa = 192; vXa = 196; vOne = 200; vKa = 204; vKr = 205; vT0 = 207; vT1 = 208; vT2 = 209
vKd = 210; vVd = 213; vLa = 216; vWd = 216; vXd = 219; vVa = 224; vVr = 225; vF = 230
T = 236
vOd = 248; vOa = 249; vOr = 250; vL16 = 251
TACC = [216, 232]
def stash(t):
    i = t - 2
    if i < 12: return 8 * i
    if i < 15: return 144 + 8 * (i - 12)
    return 192 + 8 * (i - 15)
sX = 16; sK = 20; sV = 24; sWq = 28; sWo = 32; sP = 36
sW8 = 40; sG = 41; sWv = 42; sB = 43; sHp = 44; sW3k = 45; sXm0 = 46; sXm1 = 47; sXa1 = 48; sCnt = 49
sWoff = 50; sXoff = 51; sCur = 52; sPrev = 53; sKoff = 54; sVoff = 55; sC = 56; sTc = 57; sFlag = 58
sW6k = 59; sO1 = 60; sSt = 61; sEx = 62; sRot = 63; sM2 = 64; sT0 = 66; sT1 = 67; sT2 = 68; sHi = 69; sSt1 = 72

def v(i, n=1): return 'v%d' % i if n == 1 else 'v[%d:%d]' % (i, i + n - 1)
def s(i, n=1): return 's%d' % i if n == 1 else 's[%d:%d]' % (i, i + n - 1)
def mfma(d, a, b, zero=False, c=None):
    return 'v_mfma_f32_16x16x32_bf16 %s, %s, %s, %s' % (v(d, 4), v(a, 4), v(b, 4), '0' if zero else v(d if c is None else c, 4))
def off(o): return ' offset:%d' % o if o else ''

W2 = [1]
def pipe_step(A, prev, frags, fill, lag=LAG, reset=True, tagp='f'):
    n = len(frags)
    if reset: A.lds_reset()
    nxt = 0
    def put(lst, tag):
        for t in lst:
            if t.startswith('ds_'): A.lds(t, tag)
            else: A(t)
    for _ in range(5 - len(prev)):
        put(frags[nxt][0], (tagp, nxt)); nxt += 1
    for t in fill.get(-1, []): emit(A, t)
    seq = list(prev) + [((tagp, j), frags[j][1]) for j in range(n - lag)]
    for k, (tag, ms) in enumerate(seq):
        if W2[0] and tag in A.ldsq and k + 1 < len(seq) and seq[k + 1][0] in A.ldsq: A.wait_lds(seq[k + 1][0])
        A.wait_lds(tag)
        rd = []
        if nxt < n: rd = frags[nxt][0]; rtag = (tagp, nxt); nxt += 1
        fl = fill.get(k, [])
        if len(ms) == 1:
            A(ms[0]); put(rd, rtag if rd else None)
            for t in fl: emit(A, t)
        else:
            h = (len(rd) + 1) // 2
            pure = all(isinstance(t, str) and t.startswith('v_') and not t.startswith('v_cvt') and not t.startswith('v_mfma') for t in fl)
            hf = max(0, (len(fl) + len(rd)) // 2 - h) if pure else 0
            A(ms[0]); put(rd[:h], rtag if rd else None)
            for t in fl[:hf]: emit(A, t)
            A(ms[1]); put(rd[h:], rtag if rd else None)
            for t in fl[hf:]: emit(A, t)
    assert nxt == n
    return [((tagp, j), frags[j][1]) for j in range(n - lag, n)]

def untag(prev): return [(None, m) for _, m in prev]
def emit(A, t):
    if isinstance(t, tuple): A.lds(t[0], t[1])
    else: A(t)
def merge(*ds):
    out = {}
    for d in ds:
        for k, l in d.items(): out.setdefault(k, []).extend(l)
    return out
def flat(l): return [x for y in l for x in y]
def dma(voff, srd, soff, o, pol):
    return 'buffer_load_dwordx4 %s, %s, %s offen%s%s lds' % (v(voff), s(srd, 4), soff, off(o), pol)
def mul2(r, t):
    return ['v_mul_f32 %s, %s, %s' % (v(r + i), v(r + i), v(vF + t)) for i in range(2)]

def gen(cfg, fname):
    A = Asm()
    W2[0] = cfg.w2
    def stamp(i, real=False):
        if cfg.stamp == 5 and i in (1, 3, 4, 7):
            k = {1: 1, 3: 3, 4: 5, 7: 7}[i]
            A('s_memtime %s' % s(76 + 2 * k, 2)); A('s_memrealtime %s' % s(78 + 2 * k, 2)); A('s_waitcnt lgkmcnt(0)')
        elif cfg.stamp and i in (0, 10, 11, 12):
            A('%s %s' % ('s_memrealtime' if real else 's_memtime', s(76 + 2 * i, 2)))
            A('s_waitcnt lgkmcnt(0)')
    def wb(vm=None, lg=True):
        t = []
        if vm is not None: t.append('vmcnt(%d)' % vm)
        if lg: t.append('lgkmcnt(0)')
        if t: A('s_waitcnt ' + ' '.join(t))
        A('s_barrier')
    checks = []
    A('; @launch kernel=mha_k1_kernel grid=(256,1,1) block=(512,1,1) lds=%d' % LDS)
    A('; @launch kernel=mha_k2_kernel grid=(256,1,1) block=(320,1,1) lds=0')
    A('.amdgcn_target "amdgcn-amd-amdhsa--gfx950"')
    A('.text'); A('.globl mha_k1_kernel'); A('.p2align 8'); A('.type mha_k1_kernel,@function'); A('mha_k1_kernel:')
    m0 = A.mark()
    A('s_cmp_ge_u32 s2, 256'); A('s_cbranch_scc1 L_end')
    A('s_load_dwordx8 s[4:11], s[0:1], 0')
    A('s_load_dwordx2 s[12:13], s[0:1], 32')
    A('s_load_dwordx2 s[14:15], s[0:1], 56')
    stamp(0); stamp(11, True)
    if cfg.stamp in (3, 6):
        A.trace = 6 if cfg.stamp == 6 else True
        A('s_mov_b32 s75, 0'); A('s_mov_b32 s94, s98')
        for i in range(252, 256): A('v_mov_b32 v%d, 0' % i)
    L = T; G = T + 1; I16 = T + 2; F = T + 3; a = T + 4; b = T + 5; c = T + 6; d = T + 7; e = T + 8
    A('v_readfirstlane_b32 %s, v0' % s(sW8))
    A('v_and_b32 %s, 63, v0' % v(L))
    A('s_lshr_b32 %s, %s, 6' % (s(sW8), s(sW8)))
    A('s_lshr_b32 %s, %s, 2' % (s(sG), s(sW8)))
    A('s_and_b32 %s, %s, 3' % (s(sWv), s(sW8)))
    A('s_and_b32 %s, s2, 7' % s(sT0))
    A('s_lshr_b32 %s, s2, 3' % s(sT1))
    A('s_lshr_b32 %s, %s, 1' % (s(sB), s(sT1)))
    A('s_and_b32 %s, %s, 1' % (s(sT1), s(sT1)))
    A('s_lshl_b32 %s, %s, 1' % (s(sHp), s(sT0)))
    A('s_add_u32 %s, %s, %s' % (s(sHp), s(sHp), s(sT1)))
    A('s_mul_i32 %s, %s, 3072' % (s(sW3k), s(sWv)))
    A('s_cmp_eq_u32 %s, 3' % s(sWv))
    A('s_cselect_b32 %s, 0, 2048' % s(sXm1)); A('s_cselect_b32 %s, 0, 20480' % s(sXa1))
    A('s_lshl_b32 %s, %s, 12' % (s(sXm0), s(sWv))); A('s_add_u32 %s, %s, %d' % (s(sXm0), s(sXm0), XBASE))
    A('s_add_u32 %s, %s, %s' % (s(sXm1), s(sXm1), s(sXm0)))
    A('s_mul_i32 %s, %s, %d' % (s(sT0), s(sWv), 32 * 1280))
    A('v_lshrrev_b32 %s, 3, %s' % (v(a), v(L)))
    A('v_lshrrev_b32 %s, 4, %s' % (v(G), v(L)))
    A('v_and_b32 %s, 7, %s' % (v(c), v(L)))
    A('v_xor_b32 %s, %s, %s' % (v(b), v(G), v(c)))
    A('v_mul_u32_u24 %s, 1280, %s' % (v(a), v(a)))
    A('v_add_u32 %s, %s, %s' % (v(a), s(sT0), v(a)))
    A('v_lshl_add_u32 %s, %s, 4, %s' % (v(vXd), v(b), v(a)))
    A('v_xor_b32 %s, 4, %s' % (v(b), v(b)))
    A('v_lshl_add_u32 %s, %s, 4, %s' % (v(vXd + 1), v(b), v(a)))
    A('v_add_u32 %s, %d, %s' % (v(vXd + 1), 8 * 1280 - 1024, v(vXd + 1)))
    A('s_lshl_b32 %s, %s, 3' % (s(sT0), s(sWv)))
    A('s_and_b32 %s, %s, 1' % (s(sT2), s(sWv))); A('s_lshl_b32 %s, %s, 2' % (s(sT2), s(sT2)))
    for p in range(3):
        A('v_add_u32 %s, %d, %s' % (v(a), 64 * p, v(L)))
        A('v_mul_u32_u24 %s, 171, %s' % (v(b), v(a)))
        A('v_lshrrev_b32 %s, 12, %s' % (v(b), v(b)))
        A('v_mul_u32_u24 %s, 24, %s' % (v(c), v(b)))
        A('v_sub_u32 %s, %s, %s' % (v(vVd + p), v(a), v(c)))
        A('v_add_u32 %s, %s, %s' % (v(vKd + p), s(sT0), v(b)))
        A('v_and_or_b32 %s, %s, 2, %s' % (v(d), v(b), s(sT2)))
        A('v_xor_b32 %s, %s, %s' % (v(d), v(vVd + p), v(d)))
        A('v_mul_u32_u24 %s, 12288, %s' % (v(e), v(vKd + p)))
        A('v_lshl_add_u32 %s, %s, 4, %s' % (v(d), v(d), v(e)))
        A('v_subrev_u32 %s, %d, %s' % (v(vWd + p), 1024 * p, v(d)))
    A('s_mul_i32 %s, %s, 143360' % (s(sT0), s(sB)))
    A('s_mul_i32 %s, %s, 768' % (s(sT1), s(sHp)))
    A('s_mov_b32 %s, 143360' % s(sX + 2)); A('s_mov_b32 %s, 0x20000' % s(sX + 3))
    A('s_sub_u32 %s, 7864320, %s' % (s(sWq + 2), s(sT1))); A('s_mov_b32 %s, 0x20000' % s(sWq + 3))
    A('s_mov_b32 %s, 0' % s(sWoff)); A('s_mov_b32 %s, 0' % s(sXoff))
    A('s_waitcnt lgkmcnt(0)')
    A('s_add_u32 %s, s4, %s' % (s(sX), s(sT0))); A('s_addc_u32 %s, s5, 0' % s(sX + 1))
    A('s_add_u32 %s, s10, %s' % (s(sWq), s(sT1))); A('s_addc_u32 %s, s11, 0' % s(sWq + 1))
    def x_issue(slot, NT=2, clamp=True):
        l = [['s_add_u32 m0, %s, %d' % (s(sXm0), slot * XSLOT),
              's_add_u32 %s, %s, %s' % (s(sT1), s(sXoff), s(sXa1)),
              dma(vXd, sX, s(sXoff), 0, cfg.x_pol)], [dma(vXd + 1, sX, s(sXoff), 1024, cfg.x_pol)]]
        if NT == 2:
            l += [['s_add_u32 m0, %s, %d' % (s(sXm1), slot * XSLOT),
                   's_add_u32 %s, %s, 128' % (s(sXoff), s(sXoff)),
                   dma(vXd, sX, s(sT1), 0, cfg.x_pol)], [dma(vXd + 1, sX, s(sT1), 1024, cfg.x_pol)]]
        else:
            l += [['s_add_u32 %s, %s, 128' % (s(sXoff), s(sXoff))], []]
        if clamp: l[3] = l[3] + ['s_cmp_ge_u32 %s, 1280' % s(sXoff), 's_cselect_b32 %s, 0x40000000, %s' % (s(sXoff), s(sXoff))]
        return l
    def w_issue(slot):
        return [['s_add_u32 m0, %s, %d' % (s(sW3k), WBASE + slot * TILE), 's_nop 0', dma(vWd, sWq, s(sWoff), 0, cfg.wq_pol)],
                [dma(vWd + 1, sWq, s(sWoff), 1024, cfg.wq_pol)],
                [dma(vWd + 2, sWq, s(sWoff), 2048, cfg.wq_pol), 's_add_u32 %s, %s, %d' % (s(sWoff), s(sWoff), 32 * 12288)]]
    A('s_cmp_eq_u32 %s, 0' % s(sG)); A('s_cbranch_scc1 L_p0')
    for t in flat(x_issue(0, 2, False) + w_issue(0) + x_issue(1, 2, False)): A(t)
    A('s_branch L_p1')
    A('L_p0:')
    if cfg.codepf:
        A('s_getpc_b64 %s' % s(70, 2))
        A('L_pc:')
        A('s_and_b32 %s, %s, 7' % (s(sT1), s(sB))); A('s_lshl_b32 %s, %s, 2' % (s(sT1), s(sT1)))
        A('s_add_u32 %s, %s, %s' % (s(sT1), s(sT1), s(sWv)))
        A('s_mul_i32 %s, %s, CODE_SHARE-0' % (s(sT1), s(sT1)))
        A('v_lshlrev_b32 %s, 7, %s' % (v(b), v(L)))
        A('v_min_u32 %s, CODE_SHARE-128, %s' % (v(b), v(b)))
        A('v_add_u32 %s, %s, %s' % (v(b), s(sT1), v(b)))
        A('v_min_u32 %s, CODE_LAST-0, %s' % (v(b), v(b)))
        A('global_load_dword %s, %s, %s' % (v(SB[0]), v(b), s(70, 2)))
    A('L_p1:')
    A('s_lshl_b32 %s, %s, 4' % (s(sT0), s(sB))); A('s_add_u32 %s, %s, %s' % (s(sT0), s(sT0), s(sHp)))
    A('s_mul_i32 %s, %s, 393216' % (s(sT1), s(sT0)))
    A('s_add_u32 %s, s6, %s' % (s(sK), s(sT1))); A('s_addc_u32 %s, s7, 0' % s(sK + 1))
    A('s_mov_b32 %s, 393216' % s(sK + 2)); A('s_mov_b32 %s, 0x20000' % s(sK + 3))
    A('s_add_u32 %s, s8, %s' % (s(sV), s(sT1))); A('s_addc_u32 %s, s9, 0' % s(sV + 1))
    A('s_mov_b32 %s, 393216' % s(sV + 2)); A('s_mov_b32 %s, 0x20000' % s(sV + 3))
    A('s_mul_i32 %s, %s, %d' % (s(sT1), s(sT0), cfg.pstride))
    A('s_add_u32 %s, s14, %s' % (s(sP), s(sT1))); A('s_addc_u32 %s, s15, 0' % s(sP + 1))
    A('s_mov_b32 %s, 163840' % s(sP + 2)); A('s_mov_b32 %s, 0x20000' % s(sP + 3))
    A('s_mov_b32 %s, s12' % s(sWo)); A('s_mov_b32 %s, s13' % s(sWo + 1))
    A('s_mov_b32 %s, 7864320' % s(sWo + 2)); A('s_mov_b32 %s, 0x20000' % s(sWo + 3))
    A('s_mul_i32 %s, %s, 491520' % (s(sO1), s(sHp)))
    A('s_mul_i32 %s, %s, 6144' % (s(sW6k), s(sWv)))
    A('s_min_u32 %s, %s, 1' % (s(sEx), s(sWv))); A('s_add_u32 %s, %s, %s' % (s(sEx), s(sEx), s(sWv)))
    A('s_cmp_eq_u32 %s, 3' % s(sWv)); A('s_cselect_b32 %s, 6, %s' % (s(sEx), s(sEx)))
    A('s_mul_i32 %s, %s, %d' % (s(sEx), s(sEx), TILE))
    A('s_lshl_b32 %s, %s, 11' % (s(sSt), s(sWv)))
    A('s_add_u32 %s, %s, 1024' % (s(sSt1), s(sSt)))
    A('s_cmp_eq_u32 %s, 3' % s(sWv)); A('s_cselect_b32 %s, 0x40000000, %s' % (s(sSt1), s(sSt1)))
    A('s_lshl_b32 %s, %s, 1' % (s(sT1), s(sWv)))
    for p in range(3):
        A('v_mul_u32_u24 %s, 384, %s' % (v(e), v(vKd + p)))
        A('v_subrev_u32 %s, %d, %s' % (v(e), 1024 * p, v(e)))
        A('v_bfe_u32 %s, %s, 1, 1' % (v(d), v(vKd + p)))
        A('v_or_b32 %s, %s, %s' % (v(d), s(sT1), v(d)))
        A('v_and_or_b32 %s, %s, 2, %s' % (v(c), v(vKd + p), s(sT2)))
        A('v_xor_b32 %s, %s, %s' % (v(d), v(vVd + p), v(d)))
        A('v_xor_b32 %s, %s, %s' % (v(c), v(vVd + p), v(c)))
        A('v_lshl_add_u32 %s, %s, 4, %s' % (v(vKd + p), v(d), v(e)))
        A('v_lshl_add_u32 %s, %s, 4, %s' % (v(vVd + p), v(c), v(e)))
    A('v_and_b32 %s, 15, %s' % (v(I16), v(L)))
    A('v_lshrrev_b32 %s, 2, %s' % (v(a), v(I16)))
    A('v_and_b32 %s, 3, %s' % (v(d), v(I16)))
    A('v_lshl_add_u32 %s, %s, 3, %s' % (v(b), v(a), v(d)))
    A('v_mul_u32_u24 %s, 384, %s' % (v(b), v(b)))
    A('v_lshrrev_b32 %s, 1, %s' % (v(c), v(I16)))
    A('v_xor_b32 %s, %s, %s' % (v(c), v(c), v(G)))
    A('v_lshl_add_u32 %s, %s, 4, %s' % (v(vKa), v(c), v(b)))
    A('v_lshlrev_b32 %s, 7, %s' % (v(b), v(I16)))
    A('v_add_u32 %s, %s, %s' % (v(b), s(sXm0), v(b)))
    A('v_lshl_add_u32 %s, %s, 4, %s' % (v(vXa), v(c), v(b)))
    A('v_xor_b32 %s, 64, %s' % (v(vXa + 1), v(vXa)))
    A('v_bfe_u32 %s, %s, 3, 2' % (v(F), v(L)))
    A('v_lshlrev_b32 %s, 5, %s' % (v(F), v(F)))
    A('v_lshl_add_u32 %s, %s, 3, %s' % (v(F), v(d), v(F)))
    A('v_lshl_add_u32 %s, %s, 3, %s' % (v(b), v(G), v(a)))
    A('v_mul_u32_u24 %s, 384, %s' % (v(b), v(b)))
    A('v_add_u32 %s, %s, %s' % (v(vVa), v(b), v(F)))
    A('v_add_u32 %s, %d, %s' % (v(vWa), WBASE, v(vVa)))
    for u in range(1, 4): A('v_xor_b32 %s, %d, %s' % (v(vWa + u), 32 * u, v(vWa)))
    A('v_lshl_add_u32 %s, %s, 2, %s' % (v(b), v(G), v(a)))
    A('v_lshl_add_u32 %s, %s, 7, %s' % (v(vOa), v(b), v(F)))
    A('s_mul_i32 %s, %s, %d' % (s(sT0), s(sWv), 48 * 1280))
    A('v_lshrrev_b32 %s, 3, %s' % (v(a), v(L)))
    A('v_mul_u32_u24 %s, 1280, %s' % (v(a), v(a)))
    A('v_and_b32 %s, 7, %s' % (v(b), v(L)))
    A('v_lshlrev_b32 %s, 1, %s' % (v(c), v(G)))
    A('v_xor_b32 %s, %s, %s' % (v(b), v(b), v(c)))
    A('v_lshlrev_b32 %s, 4, %s' % (v(b), v(b)))
    A('v_add3_u32 %s, %s, %s, %s' % (v(vOd), v(a), v(b), s(sT0)))
    A('v_lshlrev_b32 %s, 4, %s' % (v(vL16), v(L)))
    cc = math.log2(math.e) / math.sqrt(192.0)
    A('s_mov_b32 %s, 0x%08x' % (s(sC), f32bits(cc)))
    A('s_mov_b32 %s, 0x%08x' % (s(sTc), f32bits(cfg.thr)))
    for i in range(4): A('v_mov_b32 %s, 0x3f803f80' % v(vOne + i))
    A('s_mov_b32 %s, 0' % s(sFlag))
    A('s_mul_i32 %s, %s, %d' % (s(sCur), s(sG), (32 % NKV) * TILE))
    A('s_mov_b32 %s, 0' % s(sPrev))
    A('s_mov_b32 %s, 4' % s(sKoff)); A('s_mov_b32 %s, 2' % s(sVoff))
    if cfg.rot: A('s_add_u32 %s, %s, %s' % (s(sRot), s(sB), s(sHp)))
    else: A('s_mov_b32 %s, 0' % s(sRot))
    for i in list(range(ACC, ACC + 96)) + list(range(QF + 24, QF + 32)) + list(range(AF + 12, AF + 24)): A('v_mov_b32 %s, 0' % v(i))
    A('s_mov_b32 %s, 0' % s(sCnt))
    checks.append(('prologue', A.lines[m0:]))
    if cfg.light:
        A('s_cmp_eq_u32 %s, 3' % s(sWv)); A('s_cbranch_scc1 L_light')

    n1 = 79 - cfg.o0; rest1 = 240 - 5 * cfg.c2 - cfg.c3
    cum = {}
    for i in range(52, 96):
        if i <= cfg.o0: cum[i] = 0
        elif i <= 79: cum[i] = rest1 * (i - cfg.o0) // n1
        elif i <= 84: cum[i] = rest1 + cfg.c2 * (i - 79)
        else: cum[i] = 240 + 24 * (i - 85)
    avail = {52: [SS[0]], 54: [SS[1], SS[2]], 82: [SS[3]], 86: [0, 24576]}
    slot_of = {}; plan = {i: [] for i in range(52, 96)}; done_at = {}
    free = []; nrel = 0; nj = 0; nh = 0
    for i in range(52, 95):
        free += avail.get(i, [])
        while cum[i] >= 24 * (nrel + 1): free.append(slot_of[nrel]); nrel += 1
        for _ in range(1 if i < 79 else (2 if i < 85 else 4)):
            if nj >= 20: break
            if nh == 0:
                if not free: break
                slot_of[nj] = free.pop(0)
            plan[i].append((nj, nh)); nh += 1
            if nh == 2: done_at[nj] = i; nj += 1; nh = 0
    for i in range(cfg.o0, 95):
        j = (cum[i + 1] - 1) // 24
        assert done_at[j] <= i - 2, (i, j, done_at[j])
    if cfg.dbg == 2: print(cum, plan, slot_of)

    def body(NT, X):
        TT = range(NT)
        dupx = (NT == 2 and not cfg.light)
        def x_reads(slot):
            return [('ds_read_b128 %s, %s%s' % (v(QF + 16 * slot + 8 * ss + 4 * t, 4), v(vXa + ss), off(slot * XSLOT + 2048 * t)), 'x')
                    for ss in range(2) for t in TT]
        def q_frags(r):
            fr = []
            for dt in range(12):
                buf = AF + 4 * (dt % 6)
                rds = ['ds_read_b64_tr_b16 %s, %s%s' % (v(buf + 2 * vv, 2), v(vWa + (dt & 3)),
                        off(r * TILE + 4 * vv * 384 + 128 * (dt >> 2))) for vv in range(2)]
                fr.append((rds, [mfma(ACC + 48 * t + 4 * dt, buf, QF + 16 * (r >> 1) + 8 * (r & 1) + 4 * t) for t in TT]))
            return fr
        qlag = [(None, f[1]) for f in q_frags(3)[-LAG:]]
        nx = 2 * NT
        A('s_cmp_eq_u32 %s, 0' % s(sG)); A('s_cbranch_scc0 L_g2a' + X)
        stamp(1)
        wb(None, False)
        for t in x_reads(0): A(t[0])
        A('L_qloop%s:' % X)
        m1 = A.mark()
        prev = qlag
        for r in range(4):
            wb()
            fill = {}
            if r % 2 == 1:
                xr = x_reads(((r + 1) >> 1) & 1)
                fill = {5 + i: [x] for i, x in enumerate(xr)}
            prev = untag(pipe_step(A, prev, q_frags(r), fill))
        A('s_add_u32 %s, %s, 1' % (s(sCnt), s(sCnt))); A('s_cmp_lt_u32 %s, 5' % s(sCnt)); A('s_cbranch_scc1 L_qloop' + X)
        qbody = A.lines[m1:]
        checks.append(('qloop', qbody + qbody))
        A('s_waitcnt vmcnt(0) lgkmcnt(0)')
        A('s_branch L_qend' + X)
        A('L_g2a%s:' % X)
        def kv_static(q):
            if q == 64: isv, tile = True, 31
            elif q % 2 == 0: isv, tile = False, q // 2
            else: isv, tile = True, (q - 3) // 2
            srd, vd = (sV, vVd) if isv else (sK, vKd)
            return [['s_add_u32 %s, %s, %d' % (s(sHi), s(sRot), tile & 15), 's_and_b32 %s, %s, 15' % (s(sHi), s(sHi)),
                     's_or_b32 %s, %s, %d' % (s(sHi), s(sHi), tile & 16),
                     's_add_u32 m0, %s, %d' % (s(sW3k), (q % NKV) * TILE), 's_mul_i32 %s, %s, %d' % (s(sHi), s(sHi), TILE),
                     dma(vd, srd, s(sHi), 0, cfg.kv_pol)], [dma(vd + 1, srd, s(sHi), 1024, cfg.kv_pol)], [dma(vd + 2, srd, s(sHi), 2048, cfg.kv_pol)]]
        def kv_dyn(isv):
            srd, vd, soff = (sV, vVd, sVoff) if isv else (sK, vKd, sKoff)
            return [['s_add_u32 %s, %s, %s' % (s(sHi), s(sRot), s(soff)), 's_and_b32 %s, %s, 15' % (s(sHi), s(sHi)),
                     's_and_b32 %s, %s, 16' % (s(sT2), s(soff)), 's_or_b32 %s, %s, %s' % (s(sHi), s(sHi), s(sT2)),
                     's_add_u32 m0, %s, %s' % (s(sW3k), s(sPrev)), 's_mul_i32 %s, %s, %d' % (s(sHi), s(sHi), TILE),
                     dma(vd, srd, s(sHi), 0, cfg.kv_pol)],
                    ['s_add_u32 %s, %s, %d' % (s(sPrev), s(sPrev), TILE),
                     's_cmp_ge_u32 %s, %d' % (s(sPrev), NKV * TILE),
                     's_cselect_b32 %s, 0, %s' % (s(sPrev), s(sPrev)),
                     dma(vd + 1, srd, s(sHi), 1024, cfg.kv_pol)],
                    [dma(vd + 2, srd, s(sHi), 2048, cfg.kv_pol), 's_add_u32 %s, %s, 1' % (s(soff), s(soff))]]
        m1 = A.mark()
        for t in flat(w_issue(1) + w_issue(2)): A(t)
        vm = Vm([('x', 0)] * 4 + [('w', 0)] * 3 + [('x', 1)] * 4 + [('w', 1)] * 3 + [('w', 2)] * 3)
        wb(vm.need(('x', 0)), False)
        kvpos = [0, 2, 3, 4, 5, 6]
        for st in range(21):
            ws = [vm.need(('x', (st + 1) // 2)) if st % 2 == 1 else None, vm.need(('w', st)) if st < 20 else None,
                  vm.need(('kv', 0)) if st == 20 else None]
            ws = [w for w in ws if w is not None]
            wb(ws[-1] if ws else None, False)
            if st == 16: A('s_mov_b32 %s, 0' % s(sXoff))
            if st == 17: A('s_mov_b32 %s, 384' % s(sWoff))
            if st % 2 == 0 and st < 20:
                for t in flat(x_issue((st // 2) & 1, NT, False)): A(t)
                vm.add(('x', st // 2 + 2), nx)
            if st < 20:
                for t in flat(w_issue((st + 3) & 3)): A(t)
                vm.add(('w', st + 3), 3)
            for i in range(6):
                if cfg.kv_at + i * cfg.kv_every == st:
                    for t in flat(kv_static(kvpos[i])): A(t)
                    vm.add(('kv', kvpos[i]), 3)
        assert cfg.kv_at + 5 * cfg.kv_every < 20
        stamp(1)
        for t in x_reads(0): A(t[0])
        A('s_waitcnt vmcnt(0)')
        checks.append(('g2 pro', A.lines[m1:]))
        if cfg.exp & 1: A('s_mov_b32 %s, 0x40000000' % s(sWoff))
        if cfg.exp & 3: A('s_mov_b32 %s, 0x40000000' % s(sXoff))
        A('L_q2loop%s:' % X)
        m1 = A.mark()
        allf = q_frags(0) + q_frags(1) + q_frags(2) + q_frags(3)
        prev = qlag
        for cch in range(6):
            wb(15 + nx)
            kd = kv_dyn(cch % 2 == 0)
            fill = {0: kd[0], 1: kd[1], 2: kd[2]}
            ii = x_issue(0 if cch == 1 else 1, NT) if cch in (1, 4) else w_issue({0: 3, 2: 0, 3: 1, 5: 2}[cch])
            fill = merge(fill, {3 + i: l for i, l in enumerate(ii)})
            if cch in (2, 5):
                xr = x_reads(1 if cch == 2 else 0)
                fill = merge(fill, {3 + i: [x] for i, x in enumerate(xr)})
            prev = untag(pipe_step(A, prev, allf[8 * cch:8 * cch + 8], fill))
        A('s_add_u32 %s, %s, 1' % (s(sCnt), s(sCnt))); A('s_cmp_lt_u32 %s, 5' % s(sCnt)); A('s_cbranch_scc1 L_q2loop' + X)
        body2 = A.lines[m1:]
        checks.append(('q2loop', body2 + body2))
        wb(15 + nx)
        for t in flat(kv_dyn(True)): A(t)
        A('L_qend%s:' % X)
        m2 = A.mark()
        for _, ms in qlag:
            for m in ms: A(m)
        addr_k = ['v_add_u32 %s, %s, %s' % (v(vKr), s(sCur), v(vKa)), 'v_xor_b32 %s, 64, %s' % (v(vKr + 1), v(vKr))]
        addr_v = ['v_add_u32 %s, %s, %s' % (v(vVr), s(sCur), v(vVa))] + \
                 ['v_xor_b32 %s, %d, %s' % (v(vVr + u), 32 * u, v(vVr)) for u in range(1, 4)]
        for t in addr_k: A(t)
        for i in range(4 * NT): A('v_mov_b32 %s, 0' % v(P + i)); A('v_mov_b32 %s, 0' % v(vLa + i))
        A('v_mov_b32 %s, %s' % (v(vF), s(sC)))
        nq = 24 * NT
        for i in range(nq + 2):
            if i < nq:
                for x in mul2(ACC + 2 * i, 0): A(x)
            if i >= 2: A('v_cvt_pk_bf16_f32 %s, %s, %s' % (v(QF + i - 2), v(ACC + 2 * i - 4), v(ACC + 2 * i - 3)))
        for op in ('v_permlane32_swap_b32', 'v_permlane16_swap_b32'):
            for f in range(nq // 4):
                for k in range(2): A('%s %s, %s' % (op, v(QF + 4 * f + k), v(QF + 4 * f + 2 + k)))
        if cfg.prio: A('s_setprio %d' % cfg.prio)
        def k_frags(Sb, first=False):
            fr = []
            for ss in range(6):
                for ee in range(2):
                    j = 2 * ss + ee; buf = AF + 4 * (j % 6)
                    fr.append((['ds_read_b128 %s, %s%s' % (v(buf, 4), v(vKr + (ss & 1)), off(128 * (ss >> 1) + 1536 * ee))],
                               [mfma(Sb + 8 * t + 4 * ee, buf, QF + 24 * t + 4 * ss, ss == 0 and first, vNM + 4 * t if ss == 0 else None) for t in TT]))
            return fr
        def v_frags():
            fr = []
            for dt in range(12):
                buf = AF + 4 * (dt % 6)
                rds = ['ds_read_b64_tr_b16 %s, %s%s' % (v(buf + 2 * vv, 2), v(vVr + (dt & 3)), off(1536 * vv + 128 * (dt >> 2))) for vv in range(2)]
                fr.append((rds, [mfma(ACC + 48 * t + 4 * dt, buf, P + 4 * t) for t in TT]))
            return fr
        ring_adv = ['s_add_u32 %s, %s, %d' % (s(sCur), s(sCur), TILE),
                    's_cmp_ge_u32 %s, %d' % (s(sCur), NKV * TILE),
                    's_cselect_b32 %s, 0, %s' % (s(sCur), s(sCur))]
        rare_tags = []; resc_tags = []
        def sm_max(Sb, tag):
            l = []
            for k in range(4):
                for t in TT:
                    tt = v(vT0 + t); bs = Sb + 8 * t
                    if k == 0: l.append('v_max3_f32 %s, %s, %s, %s' % (tt, v(bs), v(bs + 1), v(bs + 2)))
                    elif k < 3: l.append('v_max3_f32 %s, %s, %s, %s' % (tt, tt, v(bs + 1 + 2 * k), v(bs + 2 + 2 * k)))
                    else: l.append('v_max_f32 %s, %s, %s' % (tt, tt, v(bs + 7)))
            if tag is None: return l
            if NT == 2: l2 = ['v_max_f32 %s, %s, %s' % (v(vT2), v(vT0), v(vT1)), 'v_cmp_lt_f32 vcc, %s, %s' % (s(sTc), v(vT2))]
            else: l2 = ['v_cmp_lt_f32 vcc, %s, %s' % (s(sTc), v(vT0))]
            l2 += ['s_cbranch_vccnz L_rare_%s%s' % (tag, X), 'L_ret_%s%s:' % (tag, X)]
            rare_tags.append((tag, Sb))
            return l, l2
        def xlane(op, r):
            l = []
            for sw in ('v_permlane32_swap_b32', 'v_permlane16_swap_b32'):
                l += ['v_mov_b32 %s, %s' % (v(vT2), v(r)), 's_nop 1', '%s %s, %s' % (sw, v(r), v(vT2)),
                      '%s %s, %s, %s' % (op, v(r), v(r), v(vT2))]
            return l
        lsum = [mfma(vLa + 4 * t, vOne, P + 4 * t) for t in TT]
        def cvt(Sb, k): return 'v_cvt_pk_bf16_f32 %s, %s, %s' % (v(P + k), v(Sb + 2 * k), v(Sb + 2 * k + 1))
        VG = [6, 7, 8, 9, 10, 11]; KG = list(range(0, 11))
        def sm_fill(Sb):
            it = []
            it += [('v_exp_f32 %s, %s' % (v(Sb + r), v(Sb + r)), 2) for r in range(8 * NT)]
            it += [(cvt(Sb, k), 1) for k in range(4 * NT)]
            caps = [('v', g, cfg.vw) for g in VG] + [('k', g, cfg.kw) for g in KG]
            tot = sum(c for _, c in it); ctot = sum(c for _, _, c in caps)
            vf = {g: [] for g in VG}; kf = {g: [] for g in KG}
            acc = 0.0; gi = 0; lim = caps[0][2] * tot / ctot
            for tx, c in it:
                while acc + c / 2.0 > lim and gi < len(caps) - 1:
                    gi += 1; lim += caps[gi][2] * tot / ctot
                (vf if caps[gi][0] == 'v' else kf)[caps[gi][1]].append(tx); acc += c
                if tx.startswith('v_cvt'): assert caps[gi][0] == 'k' and caps[gi][1] >= 2
            return vf, kf
        def resc(tag):
            resc_tags.append(tag)
            return ['s_cmp_lg_u32 %s, 0' % s(sFlag), 's_cbranch_scc1 L_resc_%s%s' % (tag, X), 'L_rret_%s%s:' % (tag, X)]
        wb(11 + nx, False)
        stamp(3)
        zero_acc = ['v_mov_b32 %s, 0' % v(ACC + i) for i in range(48 * NT)]
        zn = 3 * NT
        fill = {0: ring_adv}
        for g in range(1, 9): fill[g] = zero_acc[(g - 1) * zn:g * zn]
        prev = untag(pipe_step(A, [], k_frags(SB[0], True), fill))
        wb(8 + nx)
        for k, (_, ms) in enumerate(prev):
            for m in ms: A(m)
            for t in zero_acc[(8 + k) * zn:(9 + k) * zn]: A(t)
        for t in ring_adv + addr_k + zero_acc[11 * zn:]: A(t)
        for t in sm_max(SB[0], None): A(t)
        for t in TT:
            for x in xlane('v_max_f32', vT0 + t): A(x)
            for i in range(4): A('v_sub_f32 %s, 0, %s' % (v(vNM + 4 * t + i), v(vT0 + t)))
            for i in range(8): A('v_sub_f32 %s, %s, %s' % (v(SB[0] + 8 * t + i), v(SB[0] + 8 * t + i), v(vT0 + t)))
        vf0, kf0 = sm_fill(SB[0]); vf1, kf1 = sm_fill(SB[1])
        for g in VG:
            for t in vf0[g]: A(t)
        A('s_mov_b32 %s, 0' % s(sFlag))
        A('s_mov_b32 %s, 0' % s(sCnt))
        A('s_waitcnt vmcnt(0)')
        checks.append(('q->attn', qbody[-40:] + A.lines[m2:]))
        pre_loop = A.lines[-40:]
        A('L_aloop%s:' % X)
        m3 = A.mark()
        pv_lag = [(None, f[1]) for f in v_frags()[-LAG:]]
        for par in range(2):
            kf = (kf0, kf1)[par]; vf = (vf1, vf0)[par]; Sn = SB[par ^ 1]
            wb()
            fill = merge(kf, {2: resc('l%d' % par), 10: ring_adv, 11: addr_v})
            prev = untag(pipe_step(A, pv_lag, k_frags(Sn), fill))
            wb()
            mx, mx2 = sm_max(Sn, 'l%d' % par)
            h = len(mx) // 2
            fill = merge({0: ring_adv, 2: addr_k + lsum, 4: mx[:h], 5: mx[h:] + mx2}, vf)
            if par == 0: fill = merge(fill, {11: ['s_add_u32 %s, %s, 1' % (s(sCnt), s(sCnt)), 's_cmp_eq_u32 %s, 8' % s(sCnt)]})
            prev = untag(pipe_step(A, prev, v_frags(), fill))
            if par == 0:
                A('s_cbranch_scc1 L_aexit' + X); ahalf = A.lines[m3:]
        A('s_branch L_aloop' + X)
        abody = A.lines[m3:]
        checks.append(('aloop', pre_loop + abody + abody))
        abody = ahalf
        A('L_aexit%s:' % X)
        stamp(4)
        def st_slot(j): return slot_of[j]
        def st_issue(j, part):
            o = ((j + 1) % 10) * 128 if j < 10 else 245760 + (j - 10) * 128
            o += part * 30720
            l = [['s_add_u32 m0, %s, %d' % (s(sW6k), st_slot(j) + part * 3072)], [], []]
            for i in range(3):
                l[i] += ['s_add_u32 %s, %s, %d' % (s(sT0 + i), s(sO1), o + i * 9216), dma(vOd, sWo, s(sT0 + i), 1024 * i, cfg.wo_pol)]
            return l
        def planned(i, vm):
            l = []
            for j, hh in plan[i]:
                l += st_issue(j, hh); vm.add(('st', j), 3)
            return l
        def attn_end(g, vm):
            Sb = SB[1]
            rest = [t for gg in KG for t in kf1[gg]]
            rcp = ['v_rcp_f32 %s, %s' % (v(vF + t), v(vLa + 4 * t)) for t in TT]
            def fin(ss):
                l1 = []; l2 = []
                for t in TT:
                    bs = ACC + 48 * t + 8 * ss; dst = QF + 24 * t + 4 * ss
                    l1 += flat([mul2(bs + 2 * k, t) for k in range(4)])
                    l2 += ['v_cvt_pk_bf16_f32 %s, %s, %s' % (v(dst + k), v(bs + 2 * k), v(bs + 2 * k + 1)) for k in range(4)]
                    if g == 1: l2.append(('ds_write_b128 %s, %s%s' % (v(vOr), v(dst, 4), off(1024 * (6 * t + ss))), 'w'))
                return l1, l2
            if g == 0:
                wb()
                for k, (_, ms) in enumerate(pv_lag):
                    for m in ms: A(m)
                    if k < 2:
                        for t in rest[2 * k:2 * k + 2]: A(t)
                vm.add(('kv', 38), 3)
                for t in flat(kv_static(38)) + rest[4:] + resc('e0') + ring_adv + lsum + addr_v + flat(planned(52, vm)) + rcp: A(t)
                wb(None, False)
                vm.add(('kv', 39), 3)
                kk = kv_static(39); ii = planned(53, vm)
                fill = {0: kk[0], 1: kk[1], 2: kk[2], 3: ii[0], 4: ii[1], 5: ii[2]}
                prev = []; o = 0
            else:
                for t in addr_v + ['v_add_u32 %s, %s, %s' % (v(vOr), s(sEx), v(vL16))]: A(t)
                wb()
                fill = {0: rest[0:2], 1: rest[2:4], 2: rest[4:] + resc('e1') + ['s_nop 0'] + lsum, 6: rcp}
                prev = pv_lag; o = 3
            for ss in range(4):
                l1, l2 = fin(ss)
                fill = merge(fill, {o + 2 * ss + 4: l1, o + 2 * ss + 5: l2})
            pipe_step(A, prev, v_frags(), fill, lag=0)
            l1, l2 = fin(4); l3, l4 = fin(5)
            if NT == 1: A('s_nop 3')
            for t in l1 + l2 + l3 + l4: emit(A, t)
            if cfg.prio: A('s_setprio 0')
            if g == 0:
                wb()
                vm.add(('kv', 40), 3)
                for t in flat(kv_static(40)) + flat(planned(54, vm)): A(t)
        A('s_cmp_lg_u32 %s, 0' % s(sG)); A('s_cbranch_scc1 L_g2tail' + X)
        m5 = A.mark()
        vm = Vm()
        if cfg.exp & 4: A('s_mov_b32 %s, 0x40000000' % s(sO1))
        attn_end(0, vm)
        def o_frags(u, acc, zero, extra=None):
            fr = []
            for ee in range(2):
                for ss in range(6):
                    buf = AF + 4 * ss
                    rds = ['ds_read_b64_tr_b16 %s, %s%s' % (v(buf + 2 * vv, 2), v(vOr), off(4096 * ss + 2048 * vv)) for vv in range(2)]
                    if extra and ee == 0: rds = extra(ss) + rds
                    if ss == 0:
                        if ee == 1: ad = 'v_xor_b32 %s, 32, %s' % (v(vOr), v(vOr))
                        elif u % 2 == 0: ad = 'v_add_u32 %s, %d, %s' % (v(vOr), st_slot(u // 2), v(vOa))
                        else: ad = 'v_xor_b32 %s, 96, %s' % (v(vOr), v(vOr))
                        rds = [ad] + rds
                    fr.append((rds, [mfma(acc + 8 * t + 4 * ee, buf, QF + 24 * t + 4 * ss, ss == 0 and zero) for t in TT]))
            return fr
        def pack_to(dst, acc):
            return ['v_cvt_pk_bf16_f32 %s, %s, %s' % (v(dst + k), v(acc + 2 * k), v(acc + 2 * k + 1)) for k in range(4 * NT)]
        allo = []
        for n in range(20): allo += o_frags(n, TACC[n & 1], True)
        gfill = {}
        for n in range(18):
            pk = pack_to(stash(n + 2), TACC[n & 1])
            gfill[12 * n + 11 + 4] = pk[0:4]; gfill[12 * n + 11 + 5] = pk[4:8]
        prev = []
        for st in range(55, 85):
            n = cum[st + 1] - cum[st]
            ws = [vm.need(('kv', st - 20)), vm.need(('st', (cum[st + 1] - 1) // 24)) if n else None]
            ws = [w for w in ws if w is not None]
            wb(ws[-1] if ws else None, st > cfg.o0)
            iss = []
            if st - 14 <= 64:
                iss += kv_static(st - 14); vm.add(('kv', st - 14), 3)
            iss += planned(st, vm)
            if cfg.warm_step <= st < cfg.warm_step + 3:
                kw = st - cfg.warm_step
                wl = []
                if kw == 0:
                    wl += ['s_lshl_b32 %s, %s, 2' % (s(sCnt), s(sB)), 's_add_u32 %s, %s, %s' % (s(sCnt), s(sCnt), s(sWv)),
                           's_mul_i32 %s, %s, %d' % (s(sCnt), s(sCnt), 3 * 1280), 's_add_u32 %s, %s, %s' % (s(sCnt), s(sCnt), s(sO1))]
                wl += ['s_lshl_b32 %s, %s, 10' % (s(sT2), s(sWv)), 's_add_u32 m0, %s, 159744' % s(sT2),
                       's_add_u32 %s, %s, %d' % (s(sT2), s(sCnt), 245760 + 256 + 1280 * kw),
                       dma(vL16, sWo, s(sT2), 0, cfg.wo_pol)]
                iss = iss + [wl]; vm.add('warm', 1)
            if n:
                lag = 0 if st == 84 else LAG
                first = cum[st] - len(prev)
                ng = cum[st + 1] - lag - first
                fill = {}
                for i, l in enumerate(iss): fill = merge(fill, {min(i, ng - 1): l})
                for gi in range(first, first + ng):
                    if gi in gfill: fill = merge(fill, {gi - first: gfill[gi]})
                prev = untag(pipe_step(A, prev, allo[cum[st]:cum[st + 1]], fill, lag=lag))
            else:
                for t in flat(iss): A(t)
        dead = set()
        for ins in A.lines[m5:]:
            if ins.is_dma: assert not (ins.r & dead), ins.text
            dead |= ins.w & {'v%d' % i for i in range(vKd, vKd + 6)}
        A('v_add_u32 %s, %s, %s' % (v(vOd), s(sEx), v(vL16)))
        wb(vm.need(('st', 10)))
        stamp(7)
        prev = []
        def outreg(t): return TACC[t & 1] if t in (0, 19) else stash(t + 1)
        def store(n):
            o = outreg(n)
            l = [['s_add_u32 %s, %s, %d' % (s(sT0), s(sSt if t == 0 else sSt1), 8192 * n),
                  'buffer_store_dwordx4 %s, %s, %s, %s offen%s' % (v(o + 4 * t, 4), v(vL16), s(sP, 4), s(sT0), cfg.st_pol)] for t in TT]
            return l + [[]] * (2 - NT)
        def unpack(n):
            acc = TACC[n & 1]; sr = stash(n); un = []
            for k in reversed(range(4 * NT)):
                un.append('v_lshlrev_b32 %s, 16, %s' % (v(acc + 2 * k), v(sr + k)))
                un.append('v_and_b32 %s, 0xffff0000, %s' % (v(acc + 2 * k + 1), v(sr + k)))
            return un
        carry = {}
        nst = 1
        for u in range(20):
            reset = True
            if u % 2 == 0 and u > 0: wb(vm.need(('st', 10 + u // 2)))
            elif u > 0: reset = False
            fill = dict(carry); carry = {}
            if u >= 1:
                pk = pack_to(outreg(u - 1), TACC[(u - 1) & 1])
                un = unpack(u + 1) if u + 1 < 20 else []
                fill = merge(fill, {5: pk[0:4], 6: pk[4:8], 9: un[0:4], 10: un[4:8], 11: un[8:12]})
                carry = {0: un[12:16]}
                if u == 1:
                    sl = store(0); fill = merge(fill, {6: sl[0], 7: sl[1]}); vm.add('store', NT)
                gaps = [1, 3, 7, 8, 2, 4]; gi = 0; cnt = 0
                while u >= cfg.st_delay and nst <= u - 2 and cnt < cfg.st_rate:
                    sl = store(nst)
                    fill = merge(fill, {gaps[gi]: sl[0], gaps[gi + 1]: sl[1]}); gi += 2
                    vm.add('store', NT); nst += 1; cnt += 1
            extra = None
            if u == 0:
                extra = lambda ss: ['ds_read_b128 %s, %s%s' % (v(QF + 24 * t + 4 * ss, 4), v(vOd), off(1024 * (6 * t + ss))) for t in TT]
            prev = pipe_step(A, untag(prev) if reset else prev, o_frags(20 + u, TACC[u & 1], False, extra), fill, reset=reset, tagp='t%d' % u)
        A('s_waitcnt lgkmcnt(0)')
        for _, ms in prev:
            for m in ms: A(m)
        while nst <= 18:
            for t in flat(store(nst)): A(t)
            nst += 1
        A('s_nop 5')
        for t in pack_to(outreg(19), TACC[1]) + flat(store(19)): A(t)
        checks.append(('g1 oproj', abody[-40:] + A.lines[m5:]))
        A('s_branch L_fin')
        A('L_g2tail%s:' % X)
        m6 = A.mark()
        vm = Vm()
        attn_end(1, vm)
        wb()
        stamp(7)
        for i in range(85, 94):
            for t in flat(planned(i, vm)): A(t)
            wb(vm.need(('st', i - 74)), False)
        checks.append(('g2 tail', abody[-40:] + A.lines[m6:]))
        A('s_branch L_fin')
        tr = A.trace; A.trace = False
        for tag, Sb in rare_tags:
            m8 = A.mark()
            A('L_rare_%s%s:' % (tag, X))
            for t in TT:
                for x in xlane('v_max_f32', vT0 + t): A(x)
                A('v_max_f32 %s, 0, %s' % (v(vT0 + t), v(vT0 + t)))
                if cfg.dbgrare == 1: A('v_mov_b32 %s, 0' % v(vT0 + t))
                A('v_exp_f32 %s, -%s' % (v(vF + t), v(vT0 + t)))
                for i in range(4): A('v_sub_f32 %s, %s, %s' % (v(vNM + 4 * t + i), v(vNM + 4 * t + i), v(vT0 + t)))
                for i in range(8): A('v_sub_f32 %s, %s, %s' % (v(Sb + 8 * t + i), v(Sb + 8 * t + i), v(vT0 + t)))
            A('s_mov_b32 %s, 1' % s(sFlag))
            A('s_branch L_ret_%s%s' % (tag, X))
            checks.append(('rare', A.lines[m8:]))
        for tag in resc_tags:
            A('L_resc_%s%s:' % (tag, X))
            A('s_nop 15')
            for i in range(48 * NT): A('v_mul_f32 %s, %s, %s' % (v(ACC + i), v(ACC + i), v(vF + i // 48)))
            for i in range(4 * NT): A('v_mul_f32 %s, %s, %s' % (v(vLa + i), v(vLa + i), v(vF + i // 4)))
            A('s_mov_b32 %s, 0' % s(sFlag))
            A('s_nop 1')
            A('s_branch L_rret_%s%s' % (tag, X))
        A.trace = tr

    body(2, '')
    if cfg.light:
        A('L_light:')
        body(1, '_L')
    A.trace = False
    A('L_fin:')
    if cfg.stamp:
        A('s_waitcnt vmcnt(0)')
        stamp(10); stamp(12, True)
        A('s_mov_b32 %s, s14' % s(sP)); A('s_mov_b32 %s, s15' % s(sP + 1)); A('s_mov_b32 %s, 402653184' % s(sP + 2))
        A('s_lshl_b32 %s, s2, 3' % s(sT0)); A('s_add_u32 %s, %s, %s' % (s(sT0), s(sT0), s(sW8)))
        A('s_lshl_b32 %s, %s, 7' % (s(sT0), s(sT0))); A('s_add_u32 %s, %s, %d' % (s(sT0), s(sT0), 64 << 20))
        if cfg.stamp in (3, 6):
            A('s_lshl_b32 %s, s2, 3' % s(sT1)); A('s_add_u32 %s, %s, %s' % (s(sT1), s(sT1), s(sW8)))
            A('s_lshl_b32 %s, %s, 11' % (s(sT1), s(sT1))); A('s_add_u32 %s, %s, %d' % (s(sT1), s(sT1), 65 << 20))
            A('v_lshrrev_b32 v1, 2, %s' % v(vL16))
            for i in range(4):
                A('buffer_store_dword v%d, v1, %s, %s offen offset:%d' % (252 + i, s(sP, 4), s(sT1), 256 * i))
        A('v_mov_b32 v1, 0')
        A('s_mov_b64 exec, 1')
        for i in range(26):
            A('v_mov_b32 v0, %s' % s(76 + i))
            A('buffer_store_dword v0, v1, %s, %s offen offset:%d' % (s(sP, 4), s(sT0), 4 * i))
    A('L_end:')
    A('s_endpgm')
    A('.globl mha_k2_kernel'); A('.p2align 8'); A('.type mha_k2_kernel,@function'); A('mha_k2_kernel:')
    m9 = A.mark()
    A('s_cmp_ge_u32 s2, 256'); A('s_cbranch_scc1 L_end2')
    A('s_load_dwordx2 s[4:5], s[0:1], 40')
    A('s_load_dwordx2 s[8:9], s[0:1], 56')
    if cfg.dbg: A('s_memrealtime s[24:25]')
    A('v_readfirstlane_b32 s20, v0')
    A('v_and_b32 v2, 63, v0')
    A('s_lshr_b32 s20, s20, 6')
    A('s_lshr_b32 s13, s2, 4')
    A('s_and_b32 s14, s2, 15'); A('s_mul_i32 s14, s14, 5'); A('s_add_u32 s14, s14, s20')
    A('s_and_b32 s21, s14, 3')
    A('s_lshr_b32 s22, s14, 2')
    A('v_lshlrev_b32 v3, 4, v2')
    A('v_and_b32 v4, 15, v2')
    A('v_mul_u32_u24 v5, 1280, v4')
    A('v_lshrrev_b32 v6, 4, v2')
    A('v_lshl_add_u32 v5, v6, 4, v5')
    A('s_mul_i32 s15, s13, %d' % (16 * cfg.pstride))
    A('s_lshl_b32 s16, s14, 11'); A('s_add_u32 s15, s15, s16')
    A('s_mul_i32 s17, s13, 143360'); A('s_lshl_b32 s16, s22, 6'); A('s_add_u32 s17, s17, s16')
    A('s_mul_i32 s16, s21, %d' % (32 * 1280)); A('s_add_u32 s17, s17, s16')
    A('s_add_u32 s18, s17, %d' % (16 * 1280))
    A('s_cmp_eq_u32 s21, 3')
    A('s_cselect_b32 s18, 0x40000000, s18')
    A('s_cselect_b32 s19, 0x40000000, 0')
    A('v_add_u32 v7, s19, v3')
    A('s_mov_b32 s6, 2293760'); A('s_mov_b32 s7, 0x20000')
    A('s_mov_b32 s10, %d' % (256 * cfg.pstride)); A('s_mov_b32 s11, 0x20000')
    A('s_waitcnt lgkmcnt(0)')
    for p in range(16):
        A('buffer_load_dwordx4 %s, v3, s[8:11], s15 offen%s' % (v(32 + 8 * p, 4), cfg.r_pol))
        A('buffer_load_dwordx4 %s, v7, s[8:11], s15 offen offset:1024%s' % (v(36 + 8 * p, 4), cfg.r_pol))
        if p < 15: A('s_add_u32 s15, s15, %d' % cfg.pstride)
    for p in range(16):
        A('s_waitcnt vmcnt(%d)' % (2 * (15 - p)))
        for k in range(8):
            src = 32 + 8 * p + k
            if p == 0:
                A('v_lshlrev_b32 %s, 16, %s' % (v(8 + 2 * k), v(src)))
                A('v_and_b32 %s, 0xffff0000, %s' % (v(9 + 2 * k), v(src)))
            else:
                tt = 24 + 2 * (k & 1)
                A('v_lshlrev_b32 %s, 16, %s' % (v(tt), v(src)))
                A('v_and_b32 %s, 0xffff0000, %s' % (v(tt + 1), v(src)))
                A('v_pk_add_f32 %s, %s, %s' % (v(8 + 2 * k, 2), v(8 + 2 * k, 2), v(tt, 2)))
    for k in range(8): A('v_cvt_pk_bf16_f32 %s, %s, %s' % (v(24 + k), v(8 + 2 * k), v(9 + 2 * k)))
    for op in ('v_permlane32_swap_b32', 'v_permlane16_swap_b32'):
        for r in (24, 25, 28, 29): A('%s %s, %s' % (op, v(r), v(r + 2)))
    A('buffer_store_dwordx4 v[24:27], v5, s[4:7], s17 offen')
    A('buffer_store_dwordx4 v[28:31], v5, s[4:7], s18 offen')
    checks.append(('k2', A.lines[m9:]))
    if cfg.dbg:
        A('s_waitcnt vmcnt(0)')
        A('s_memrealtime s[26:27]')
        A('s_cmp_lg_u32 s20, 0'); A('s_cbranch_scc1 L_end2')
        A('s_mov_b32 s28, 0')
        A('s_cmp_eq_u32 s2, 0'); A('s_cbranch_scc1 L_dbgw')
        A('s_mov_b32 s28, 32')
        A('s_cmp_eq_u32 s2, 133'); A('s_cbranch_scc0 L_end2')
        A('L_dbgw:')
        A('s_load_dwordx2 s[4:5], s[0:1], 48'); A('s_mov_b32 s6, 256'); A('s_mov_b32 s10, 402653184')
        A('s_lshl_b32 s29, s2, 10'); A('s_add_u32 s29, s29, %d' % (64 << 20))
        A('v_mov_b32 v1, 0'); A('s_mov_b64 exec, 1')
        for k, i in enumerate((11, 2, 4, 6, 8, 12)):
            A('buffer_load_dword v%d, v1, s[8:11], s29 offen offset:%d' % (10 + k, 8 * i))
        A('s_waitcnt vmcnt(0) lgkmcnt(0)')
        A('v_mov_b32 v16, s24'); A('v_mov_b32 v17, s26')
        for k in range(1, 8):
            A('v_sub_u32 v%d, v%d, v10' % (10 + k, 10 + k))
            A('buffer_store_dword v%d, v1, s[4:7], s28 offen offset:%d' % (10 + k, 4 * (k - 1)))
    A('L_end2:')
    A('s_endpgm')
    if cfg.codepf:
        A('.set CODE_LAST, L_end2-L_pc')
        A('.set CODE_SHARE, ((L_end2-L_pc)/32/128+1)*128')
    A('.section .rodata,"a"')
    for name, nv, ns in (('mha_k1_kernel', 256, 102 if cfg.stamp else 80), ('mha_k2_kernel', 160, 32)):
        A('.p2align 6')
        A('.amdhsa_kernel %s' % name)
        A('  .amdhsa_next_free_vgpr %d' % nv); A('  .amdhsa_next_free_sgpr %d' % ns); A('  .amdhsa_accum_offset %d' % nv)
        A('  .amdhsa_group_segment_fixed_size 0'); A('  .amdhsa_kernarg_size 64'); A('  .amdhsa_user_sgpr_count 2')
        A('  .amdhsa_user_sgpr_kernarg_segment_ptr 1'); A('  .amdhsa_system_sgpr_workgroup_id_x 1')
        A('.end_amdhsa_kernel')
    nerr = 0
    for name, seq in checks:
        for e in check_seq(seq, name):
            print(e); nerr += 1
    assert nerr == 0, 'hazards'
    open(fname, 'w').write(A.text())

if __name__ == '__main__':
    cfg = Cfg()
    out = sys.argv[1] if len(sys.argv) > 1 else 'k.s'
    for kv in sys.argv[2:]:
        k, val = kv.split('=', 1)
        cur = getattr(cfg, k)
        setattr(cfg, k, type(cur)(val.replace('_', ' ')) if isinstance(cur, str) else type(cur)(val))
    gen(cfg, out)
```

```python
import sys, math, struct
from asmlib import Asm, check_seq, Ins, Vm

def f32bits(x): return struct.unpack('<I', struct.pack('<f', x))[0]

class Cfg:
    kv_pol = ' nt'
    wq_pol = ''
    wo_pol = ''
    x_pol = ''
    st_pol = ' sc1'
    r_pol = ''
    thr = 8.0
    prio = 0
    kv_at = 0
    kv_every = 3
    stamp = 0
    dbg = 0
    vw = 3.0
    kw = 4.5
    rot = 1
    pstride = 168192
    codepf = 1
    st_delay = 2
    st_rate = 2
    dbgrare = 0
    probe = -1
    exp = 0
    o0 = 55
    c2 = 10
    c3 = 34
    warm_step = 70
    light = 1
    w2 = 1

TILE = 12288
NKV = 7
WBASE = NKV * TILE
XBASE = WBASE + 4 * TILE
XSLOT = 14336
LDS = 163840
LAG = 3
SS = [WBASE, WBASE + 24576, WBASE + 49152, 49152]

ACC = 0; QF = 96; P = 160; AF = 168
SB = [144, 232]
vNM = 192; vWa = 192; vXa = 196; vOne = 200; vKa = 204; vKr = 205; vT0 = 207; vT1 = 208; vT2 = 209
vKd = 210; vVd = 213; vLa = 216; vWd = 216; vXd = 219; vVa = 224; vVr = 225; vF = 230
T = 236
vOd = 248; vOa = 249; vOr = 250; vL16 = 251
TACC = [216, 232]
def stash(t):
    i = t - 2
    if i < 12: return 8 * i
    if i < 15: return 144 + 8 * (i - 12)
    return 192 + 8 * (i - 15)
sX = 16; sK = 20; sV = 24; sWq = 28; sWo = 32; sP = 36
sW8 = 40; sG = 41; sWv = 42; sB = 43; sHp = 44; sW3k = 45; sXm0 = 46; sXm1 = 47; sXa1 = 48; sCnt = 49
sWoff = 50; sXoff = 51; sCur = 52; sPrev = 53; sKoff = 54; sVoff = 55; sC = 56; sTc = 57; sFlag = 58
sW6k = 59; sO1 = 60; sSt = 61; sEx = 62; sRot = 63; sM2 = 64; sT0 = 66; sT1 = 67; sT2 = 68; sHi = 69; sSt1 = 72

def v(i, n=1): return 'v%d' % i if n == 1 else 'v[%d:%d]' % (i, i + n - 1)
def s(i, n=1): return 's%d' % i if n == 1 else 's[%d:%d]' % (i, i + n - 1)
def mfma(d, a, b, zero=False, c=None):
    return 'v_mfma_f32_16x16x32_bf16 %s, %s, %s, %s' % (v(d, 4), v(a, 4), v(b, 4), '0' if zero else v(d if c is None else c, 4))
def off(o): return ' offset:%d' % o if o else ''

W2 = [1]
def pipe_step(A, prev, frags, fill, lag=LAG, reset=True, tagp='f'):
    n = len(frags)
    if reset: A.lds_reset()
    nxt = 0
    def put(lst, tag):
        for t in lst:
            if t.startswith('ds_'): A.lds(t, tag)
            else: A(t)
    for _ in range(5 - len(prev)):
        put(frags[nxt][0], (tagp, nxt)); nxt += 1
    for t in fill.get(-1, []): emit(A, t)
    seq = list(prev) + [((tagp, j), frags[j][1]) for j in range(n - lag)]
    for k, (tag, ms) in enumerate(seq):
        if W2[0] and tag in A.ldsq and k + 1 < len(seq) and seq[k + 1][0] in A.ldsq: A.wait_lds(seq[k + 1][0])
        A.wait_lds(tag)
        rd = []
        if nxt < n: rd = frags[nxt][0]; rtag = (tagp, nxt); nxt += 1
        fl = fill.get(k, [])
        if len(ms) == 1:
            A(ms[0]); put(rd, rtag if rd else None)
            for t in fl: emit(A, t)
        else:
            h = (len(rd) + 1) // 2
            pure = all(isinstance(t, str) and t.startswith('v_') and not t.startswith('v_cvt') and not t.startswith('v_mfma') for t in fl)
            hf = max(0, (len(fl) + len(rd)) // 2 - h) if pure else 0
            A(ms[0]); put(rd[:h], rtag if rd else None)
            for t in fl[:hf]: emit(A, t)
            A(ms[1]); put(rd[h:], rtag if rd else None)
            for t in fl[hf:]: emit(A, t)
    assert nxt == n
    return [((tagp, j), frags[j][1]) for j in range(n - lag, n)]

def untag(prev): return [(None, m) for _, m in prev]
def emit(A, t):
    if isinstance(t, tuple): A.lds(t[0], t[1])
    else: A(t)
def merge(*ds):
    out = {}
    for d in ds:
        for k, l in d.items(): out.setdefault(k, []).extend(l)
    return out
def flat(l): return [x for y in l for x in y]
def dma(voff, srd, soff, o, pol):
    return 'buffer_load_dwordx4 %s, %s, %s offen%s%s lds' % (v(voff), s(srd, 4), soff, off(o), pol)
def mul2(r, t):
    return ['v_mul_f32 %s, %s, %s' % (v(r + i), v(r + i), v(vF + t)) for i in range(2)]

def gen(cfg, fname):
    A = Asm()
    W2[0] = cfg.w2
    def stamp(i, real=False):
        if cfg.stamp == 5 and i in (1, 3, 4, 7):
            k = {1: 1, 3: 3, 4: 5, 7: 7}[i]
            A('s_memtime %s' % s(76 + 2 * k, 2)); A('s_memrealtime %s' % s(78 + 2 * k, 2)); A('s_waitcnt lgkmcnt(0)')
        elif cfg.stamp and i in (0, 10, 11, 12):
            A('%s %s' % ('s_memrealtime' if real else 's_memtime', s(76 + 2 * i, 2)))
            A('s_waitcnt lgkmcnt(0)')
    def wb(vm=None, lg=True):
        t = []
        if vm is not None: t.append('vmcnt(%d)' % vm)
        if lg: t.append('lgkmcnt(0)')
        if t: A('s_waitcnt ' + ' '.join(t))
        A('s_barrier')
    checks = []
    A('; @launch kernel=mha_k1_kernel grid=(256,1,1) block=(512,1,1) lds=%d' % LDS)
    A('; @launch kernel=mha_k2_kernel grid=(256,1,1) block=(320,1,1) lds=0')
    A('.amdgcn_target "amdgcn-amd-amdhsa--gfx950"')
    A('.text'); A('.globl mha_k1_kernel'); A('.p2align 8'); A('.type mha_k1_kernel,@function'); A('mha_k1_kernel:')
    m0 = A.mark()
    A('s_cmp_ge_u32 s2, 256'); A('s_cbranch_scc1 L_end')
    A('s_load_dwordx8 s[4:11], s[0:1], 0')
    A('s_load_dwordx2 s[12:13], s[0:1], 32')
    A('s_load_dwordx2 s[14:15], s[0:1], 56')
    stamp(0); stamp(11, True)
    if cfg.stamp in (3, 6):
        A.trace = 6 if cfg.stamp == 6 else True
        A('s_mov_b32 s75, 0'); A('s_mov_b32 s94, s98')
        for i in range(252, 256): A('v_mov_b32 v%d, 0' % i)
    L = T; G = T + 1; I16 = T + 2; F = T + 3; a = T + 4; b = T + 5; c = T + 6; d = T + 7; e = T + 8
    A('v_readfirstlane_b32 %s, v0' % s(sW8))
    A('v_and_b32 %s, 63, v0' % v(L))
    A('s_lshr_b32 %s, %s, 6' % (s(sW8), s(sW8)))
    A('s_lshr_b32 %s, %s, 2' % (s(sG), s(sW8)))
    A('s_and_b32 %s, %s, 3' % (s(sWv), s(sW8)))
    A('s_and_b32 %s, s2, 7' % s(sT0))
    A('s_lshr_b32 %s, s2, 3' % s(sT1))
    A('s_lshr_b32 %s, %s, 1' % (s(sB), s(sT1)))
    A('s_and_b32 %s, %s, 1' % (s(sT1), s(sT1)))
    A('s_lshl_b32 %s, %s, 1' % (s(sHp), s(sT0)))
    A('s_add_u32 %s, %s, %s' % (s(sHp), s(sHp), s(sT1)))
    A('s_mul_i32 %s, %s, 3072' % (s(sW3k), s(sWv)))
    A('s_cmp_eq_u32 %s, 3' % s(sWv))
    A('s_cselect_b32 %s, 0, 2048' % s(sXm1)); A('s_cselect_b32 %s, 0, 20480' % s(sXa1))
    A('s_lshl_b32 %s, %s, 12' % (s(sXm0), s(sWv))); A('s_add_u32 %s, %s, %d' % (s(sXm0), s(sXm0), XBASE))
    A('s_add_u32 %s, %s, %s' % (s(sXm1), s(sXm1), s(sXm0)))
    A('s_mul_i32 %s, %s, %d' % (s(sT0), s(sWv), 32 * 1280))
    A('v_lshrrev_b32 %s, 3, %s' % (v(a), v(L)))
    A('v_lshrrev_b32 %s, 4, %s' % (v(G), v(L)))
    A('v_and_b32 %s, 7, %s' % (v(c), v(L)))
    A('v_xor_b32 %s, %s, %s' % (v(b), v(G), v(c)))
    A('v_mul_u32_u24 %s, 1280, %s' % (v(a), v(a)))
    A('v_add_u32 %s, %s, %s' % (v(a), s(sT0), v(a)))
    A('v_lshl_add_u32 %s, %s, 4, %s' % (v(vXd), v(b), v(a)))
    A('v_xor_b32 %s, 4, %s' % (v(b), v(b)))
    A('v_lshl_add_u32 %s, %s, 4, %s' % (v(vXd + 1), v(b), v(a)))
    A('v_add_u32 %s, %d, %s' % (v(vXd + 1), 8 * 1280 - 1024, v(vXd + 1)))
    A('s_lshl_b32 %s, %s, 3' % (s(sT0), s(sWv)))
    A('s_and_b32 %s, %s, 1' % (s(sT2), s(sWv))); A('s_lshl_b32 %s, %s, 2' % (s(sT2), s(sT2)))
    for p in range(3):
        A('v_add_u32 %s, %d, %s' % (v(a), 64 * p, v(L)))
        A('v_mul_u32_u24 %s, 171, %s' % (v(b), v(a)))
        A('v_lshrrev_b32 %s, 12, %s' % (v(b), v(b)))
        A('v_mul_u32_u24 %s, 24, %s' % (v(c), v(b)))
        A('v_sub_u32 %s, %s, %s' % (v(vVd + p), v(a), v(c)))
        A('v_add_u32 %s, %s, %s' % (v(vKd + p), s(sT0), v(b)))
        A('v_and_or_b32 %s, %s, 2, %s' % (v(d), v(b), s(sT2)))
        A('v_xor_b32 %s, %s, %s' % (v(d), v(vVd + p), v(d)))
        A('v_mul_u32_u24 %s, 12288, %s' % (v(e), v(vKd + p)))
        A('v_lshl_add_u32 %s, %s, 4, %s' % (v(d), v(d), v(e)))
        A('v_subrev_u32 %s, %d, %s' % (v(vWd + p), 1024 * p, v(d)))
    A('s_mul_i32 %s, %s, 143360' % (s(sT0), s(sB)))
    A('s_mul_i32 %s, %s, 768' % (s(sT1), s(sHp)))
    A('s_mov_b32 %s, 143360' % s(sX + 2)); A('s_mov_b32 %s, 0x20000' % s(sX + 3))
    A('s_sub_u32 %s, 7864320, %s' % (s(sWq + 2), s(sT1))); A('s_mov_b32 %s, 0x20000' % s(sWq + 3))
    A('s_mov_b32 %s, 0' % s(sWoff)); A('s_mov_b32 %s, 0' % s(sXoff))
    A('s_waitcnt lgkmcnt(0)')
    A('s_add_u32 %s, s4, %s' % (s(sX), s(sT0))); A('s_addc_u32 %s, s5, 0' % s(sX + 1))
    A('s_add_u32 %s, s10, %s' % (s(sWq), s(sT1))); A('s_addc_u32 %s, s11, 0' % s(sWq + 1))
    def x_issue(slot, NT=2, clamp=True):
        l = [['s_add_u32 m0, %s, %d' % (s(sXm0), slot * XSLOT),
              's_add_u32 %s, %s, %s' % (s(sT1), s(sXoff), s(sXa1)),
              dma(vXd, sX, s(sXoff), 0, cfg.x_pol)], [dma(vXd + 1, sX, s(sXoff), 1024, cfg.x_pol)]]
        if NT == 2:
            l += [['s_add_u32 m0, %s, %d' % (s(sXm1), slot * XSLOT),
                   's_add_u32 %s, %s, 128' % (s(sXoff), s(sXoff)),
                   dma(vXd, sX, s(sT1), 0, cfg.x_pol)], [dma(vXd + 1, sX, s(sT1), 1024, cfg.x_pol)]]
        else:
            l += [['s_add_u32 %s, %s, 128' % (s(sXoff), s(sXoff))], []]
        if clamp: l[3] = l[3] + ['s_cmp_ge_u32 %s, 1280' % s(sXoff), 's_cselect_b32 %s, 0x40000000, %s' % (s(sXoff), s(sXoff))]
        return l
    def w_issue(slot):
        return [['s_add_u32 m0, %s, %d' % (s(sW3k), WBASE + slot * TILE), 's_nop 0', dma(vWd, sWq, s(sWoff), 0, cfg.wq_pol)],
                [dma(vWd + 1, sWq, s(sWoff), 1024, cfg.wq_pol)],
                [dma(vWd + 2, sWq, s(sWoff), 2048, cfg.wq_pol), 's_add_u32 %s, %s, %d' % (s(sWoff), s(sWoff), 32 * 12288)]]
    A('s_cmp_eq_u32 %s, 0' % s(sG)); A('s_cbranch_scc1 L_p0')
    for t in flat(x_issue(0, 2, False) + w_issue(0) + x_issue(1, 2, False)): A(t)
    A('s_branch L_p1')
    A('L_p0:')
    if cfg.codepf:
        A('s_getpc_b64 %s' % s(70, 2))
        A('L_pc:')
        A('s_and_b32 %s, %s, 7' % (s(sT1), s(sB))); A('s_lshl_b32 %s, %s, 2' % (s(sT1), s(sT1)))
        A('s_add_u32 %s, %s, %s' % (s(sT1), s(sT1), s(sWv)))
        A('s_mul_i32 %s, %s, CODE_SHARE-0' % (s(sT1), s(sT1)))
        A('v_lshlrev_b32 %s, 7, %s' % (v(b), v(L)))
        A('v_min_u32 %s, CODE_SHARE-128, %s' % (v(b), v(b)))
        A('v_add_u32 %s, %s, %s' % (v(b), s(sT1), v(b)))
        A('v_min_u32 %s, CODE_LAST-0, %s' % (v(b), v(b)))
        A('global_load_dword %s, %s, %s' % (v(SB[0]), v(b), s(70, 2)))
    A('L_p1:')
    A('s_lshl_b32 %s, %s, 4' % (s(sT0), s(sB))); A('s_add_u32 %s, %s, %s' % (s(sT0), s(sT0), s(sHp)))
    A('s_mul_i32 %s, %s, 393216' % (s(sT1), s(sT0)))
    A('s_add_u32 %s, s6, %s' % (s(sK), s(sT1))); A('s_addc_u32 %s, s7, 0' % s(sK + 1))
    A('s_mov_b32 %s, 393216' % s(sK + 2)); A('s_mov_b32 %s, 0x20000' % s(sK + 3))
    A('s_add_u32 %s, s8, %s' % (s(sV), s(sT1))); A('s_addc_u32 %s, s9, 0' % s(sV + 1))
    A('s_mov_b32 %s, 393216' % s(sV + 2)); A('s_mov_b32 %s, 0x20000' % s(sV + 3))
    A('s_mul_i32 %s, %s, %d' % (s(sT1), s(sT0), cfg.pstride))
    A('s_add_u32 %s, s14, %s' % (s(sP), s(sT1))); A('s_addc_u32 %s, s15, 0' % s(sP + 1))
    A('s_mov_b32 %s, 163840' % s(sP + 2)); A('s_mov_b32 %s, 0x20000' % s(sP + 3))
    A('s_mov_b32 %s, s12' % s(sWo)); A('s_mov_b32 %s, s13' % s(sWo + 1))
    A('s_mov_b32 %s, 7864320' % s(sWo + 2)); A('s_mov_b32 %s, 0x20000' % s(sWo + 3))
    A('s_mul_i32 %s, %s, 491520' % (s(sO1), s(sHp)))
    A('s_mul_i32 %s, %s, 6144' % (s(sW6k), s(sWv)))
    A('s_min_u32 %s, %s, 1' % (s(sEx), s(sWv))); A('s_add_u32 %s, %s, %s' % (s(sEx), s(sEx), s(sWv)))
    A('s_cmp_eq_u32 %s, 3' % s(sWv)); A('s_cselect_b32 %s, 6, %s' % (s(sEx), s(sEx)))
    A('s_mul_i32 %s, %s, %d' % (s(sEx), s(sEx), TILE))
    A('s_lshl_b32 %s, %s, 11' % (s(sSt), s(sWv)))
    A('s_add_u32 %s, %s, 1024' % (s(sSt1), s(sSt)))
    A('s_cmp_eq_u32 %s, 3' % s(sWv)); A('s_cselect_b32 %s, 0x40000000, %s' % (s(sSt1), s(sSt1)))
    A('s_lshl_b32 %s, %s, 1' % (s(sT1), s(sWv)))
    for p in range(3):
        A('v_mul_u32_u24 %s, 384, %s' % (v(e), v(vKd + p)))
        A('v_subrev_u32 %s, %d, %s' % (v(e), 1024 * p, v(e)))
        A('v_bfe_u32 %s, %s, 1, 1' % (v(d), v(vKd + p)))
        A('v_or_b32 %s, %s, %s' % (v(d), s(sT1), v(d)))
        A('v_and_or_b32 %s, %s, 2, %s' % (v(c), v(vKd + p), s(sT2)))
        A('v_xor_b32 %s, %s, %s' % (v(d), v(vVd + p), v(d)))
        A('v_xor_b32 %s, %s, %s' % (v(c), v(vVd + p), v(c)))
        A('v_lshl_add_u32 %s, %s, 4, %s' % (v(vKd + p), v(d), v(e)))
        A('v_lshl_add_u32 %s, %s, 4, %s' % (v(vVd + p), v(c), v(e)))
    A('v_and_b32 %s, 15, %s' % (v(I16), v(L)))
    A('v_lshrrev_b32 %s, 2, %s' % (v(a), v(I16)))
    A('v_and_b32 %s, 3, %s' % (v(d), v(I16)))
    A('v_lshl_add_u32 %s, %s, 3, %s' % (v(b), v(a), v(d)))
    A('v_mul_u32_u24 %s, 384, %s' % (v(b), v(b)))
    A('v_lshrrev_b32 %s, 1, %s' % (v(c), v(I16)))
    A('v_xor_b32 %s, %s, %s' % (v(c), v(c), v(G)))
    A('v_lshl_add_u32 %s, %s, 4, %s' % (v(vKa), v(c), v(b)))
    A('v_lshlrev_b32 %s, 7, %s' % (v(b), v(I16)))
    A('v_add_u32 %s, %s, %s' % (v(b), s(sXm0), v(b)))
    A('v_lshl_add_u32 %s, %s, 4, %s' % (v(vXa), v(c), v(b)))
    A('v_xor_b32 %s, 64, %s' % (v(vXa + 1), v(vXa)))
    A('v_bfe_u32 %s, %s, 3, 2' % (v(F), v(L)))
    A('v_lshlrev_b32 %s, 5, %s' % (v(F), v(F)))
    A('v_lshl_add_u32 %s, %s, 3, %s' % (v(F), v(d), v(F)))
    A('v_lshl_add_u32 %s, %s, 3, %s' % (v(b), v(G), v(a)))
    A('v_mul_u32_u24 %s, 384, %s' % (v(b), v(b)))
    A('v_add_u32 %s, %s, %s' % (v(vVa), v(b), v(F)))
    A('v_add_u32 %s, %d, %s' % (v(vWa), WBASE, v(vVa)))
    for u in range(1, 4): A('v_xor_b32 %s, %d, %s' % (v(vWa + u), 32 * u, v(vWa)))
    A('v_lshl_add_u32 %s, %s, 2, %s' % (v(b), v(G), v(a)))
    A('v_lshl_add_u32 %s, %s, 7, %s' % (v(vOa), v(b), v(F)))
    A('s_mul_i32 %s, %s, %d' % (s(sT0), s(sWv), 48 * 1280))
    A('v_lshrrev_b32 %s, 3, %s' % (v(a), v(L)))
    A('v_mul_u32_u24 %s, 1280, %s' % (v(a), v(a)))
    A('v_and_b32 %s, 7, %s' % (v(b), v(L)))
    A('v_lshlrev_b32 %s, 1, %s' % (v(c), v(G)))
    A('v_xor_b32 %s, %s, %s' % (v(b), v(b), v(c)))
    A('v_lshlrev_b32 %s, 4, %s' % (v(b), v(b)))
    A('v_add3_u32 %s, %s, %s, %s' % (v(vOd), v(a), v(b), s(sT0)))
    A('v_lshlrev_b32 %s, 4, %s' % (v(vL16), v(L)))
    cc = math.log2(math.e) / math.sqrt(192.0)
    A('s_mov_b32 %s, 0x%08x' % (s(sC), f32bits(cc)))
    A('s_mov_b32 %s, 0x%08x' % (s(sTc), f32bits(cfg.thr)))
    for i in range(4): A('v_mov_b32 %s, 0x3f803f80' % v(vOne + i))
    A('s_mov_b32 %s, 0' % s(sFlag))
    A('s_mul_i32 %s, %s, %d' % (s(sCur), s(sG), (32 % NKV) * TILE))
    A('s_mov_b32 %s, 0' % s(sPrev))
    A('s_mov_b32 %s, 4' % s(sKoff)); A('s_mov_b32 %s, 2' % s(sVoff))
    if cfg.rot: A('s_add_u32 %s, %s, %s' % (s(sRot), s(sB), s(sHp)))
    else: A('s_mov_b32 %s, 0' % s(sRot))
    for i in list(range(ACC, ACC + 96)) + list(range(QF + 24, QF + 32)) + list(range(AF + 12, AF + 24)): A('v_mov_b32 %s, 0' % v(i))
    A('s_mov_b32 %s, 0' % s(sCnt))
    checks.append(('prologue', A.lines[m0:]))
    if cfg.light:
        A('s_cmp_eq_u32 %s, 3' % s(sWv)); A('s_cbranch_scc1 L_light')

    n1 = 79 - cfg.o0; rest1 = 240 - 5 * cfg.c2 - cfg.c3
    cum = {}
    for i in range(52, 96):
        if i <= cfg.o0: cum[i] = 0
        elif i <= 79: cum[i] = rest1 * (i - cfg.o0) // n1
        elif i <= 84: cum[i] = rest1 + cfg.c2 * (i - 79)
        else: cum[i] = 240 + 24 * (i - 85)
    avail = {52: [SS[0]], 54: [SS[1], SS[2]], 82: [SS[3]], 86: [0, 24576]}
    slot_of = {}; plan = {i: [] for i in range(52, 96)}; done_at = {}
    free = []; nrel = 0; nj = 0; nh = 0
    for i in range(52, 95):
        free += avail.get(i, [])
        while cum[i] >= 24 * (nrel + 1): free.append(slot_of[nrel]); nrel += 1
        for _ in range(1 if i < 79 else (2 if i < 85 else 4)):
            if nj >= 20: break
            if nh == 0:
                if not free: break
                slot_of[nj] = free.pop(0)
            plan[i].append((nj, nh)); nh += 1
            if nh == 2: done_at[nj] = i; nj += 1; nh = 0
    for i in range(cfg.o0, 95):
        j = (cum[i + 1] - 1) // 24
        assert done_at[j] <= i - 2, (i, j, done_at[j])
    if cfg.dbg == 2: print(cum, plan, slot_of)

    def body(NT, X):
        TT = range(NT)
        dupx = (NT == 2 and not cfg.light)
        def x_reads(slot):
            return [('ds_read_b128 %s, %s%s' % (v(QF + 16 * slot + 8 * ss + 4 * t, 4), v(vXa + ss), off(slot * XSLOT + 2048 * t)), 'x')
                    for ss in range(2) for t in TT]
        def q_frags(r):
            fr = []
            for dt in range(12):
                buf = AF + 4 * (dt % 6)
                rds = ['ds_read_b64_tr_b16 %s, %s%s' % (v(buf + 2 * vv, 2), v(vWa + (dt & 3)),
                        off(r * TILE + 4 * vv * 384 + 128 * (dt >> 2))) for vv in range(2)]
                fr.append((rds, [mfma(ACC + 48 * t + 4 * dt, buf, QF + 16 * (r >> 1) + 8 * (r & 1) + 4 * t) for t in TT]))
            return fr
        qlag = [(None, f[1]) for f in q_frags(3)[-LAG:]]
        nx = 2 * NT
        A('s_cmp_eq_u32 %s, 0' % s(sG)); A('s_cbranch_scc0 L_g2a' + X)
        stamp(1)
        wb(None, False)
        for t in x_reads(0): A(t[0])
        A('L_qloop%s:' % X)
        m1 = A.mark()
        prev = qlag
        for r in range(4):
            wb()
            fill = {}
            if r % 2 == 1:
                xr = x_reads(((r + 1) >> 1) & 1)
                fill = {5 + i: [x] for i, x in enumerate(xr)}
            prev = untag(pipe_step(A, prev, q_frags(r), fill))
        A('s_add_u32 %s, %s, 1' % (s(sCnt), s(sCnt))); A('s_cmp_lt_u32 %s, 5' % s(sCnt)); A('s_cbranch_scc1 L_qloop' + X)
        qbody = A.lines[m1:]
        checks.append(('qloop', qbody + qbody))
        A('s_waitcnt vmcnt(0) lgkmcnt(0)')
        A('s_branch L_qend' + X)
        A('L_g2a%s:' % X)
        def kv_static(q):
            if q == 64: isv, tile = True, 31
            elif q % 2 == 0: isv, tile = False, q // 2
            else: isv, tile = True, (q - 3) // 2
            srd, vd = (sV, vVd) if isv else (sK, vKd)
            return [['s_add_u32 %s, %s, %d' % (s(sHi), s(sRot), tile & 15), 's_and_b32 %s, %s, 15' % (s(sHi), s(sHi)),
                     's_or_b32 %s, %s, %d' % (s(sHi), s(sHi), tile & 16),
                     's_add_u32 m0, %s, %d' % (s(sW3k), (q % NKV) * TILE), 's_mul_i32 %s, %s, %d' % (s(sHi), s(sHi), TILE),
                     dma(vd, srd, s(sHi), 0, cfg.kv_pol)], [dma(vd + 1, srd, s(sHi), 1024, cfg.kv_pol)], [dma(vd + 2, srd, s(sHi), 2048, cfg.kv_pol)]]
        def kv_dyn(isv):
            srd, vd, soff = (sV, vVd, sVoff) if isv else (sK, vKd, sKoff)
            return [['s_add_u32 %s, %s, %s' % (s(sHi), s(sRot), s(soff)), 's_and_b32 %s, %s, 15' % (s(sHi), s(sHi)),
                     's_and_b32 %s, %s, 16' % (s(sT2), s(soff)), 's_or_b32 %s, %s, %s' % (s(sHi), s(sHi), s(sT2)),
                     's_add_u32 m0, %s, %s' % (s(sW3k), s(sPrev)), 's_mul_i32 %s, %s, %d' % (s(sHi), s(sHi), TILE),
                     dma(vd, srd, s(sHi), 0, cfg.kv_pol)],
                    ['s_add_u32 %s, %s, %d' % (s(sPrev), s(sPrev), TILE),
                     's_cmp_ge_u32 %s, %d' % (s(sPrev), NKV * TILE),
                     's_cselect_b32 %s, 0, %s' % (s(sPrev), s(sPrev)),
                     dma(vd + 1, srd, s(sHi), 1024, cfg.kv_pol)],
                    [dma(vd + 2, srd, s(sHi), 2048, cfg.kv_pol), 's_add_u32 %s, %s, 1' % (s(soff), s(soff))]]
        m1 = A.mark()
        for t in flat(w_issue(1) + w_issue(2)): A(t)
        vm = Vm([('x', 0)] * 4 + [('w', 0)] * 3 + [('x', 1)] * 4 + [('w', 1)] * 3 + [('w', 2)] * 3)
        wb(vm.need(('x', 0)), False)
        kvpos = [0, 2, 3, 4, 5, 6]
        for st in range(21):
            ws = [vm.need(('x', (st + 1) // 2)) if st % 2 == 1 else None, vm.need(('w', st)) if st < 20 else None,
                  vm.need(('kv', 0)) if st == 20 else None]
            ws = [w for w in ws if w is not None]
            wb(ws[-1] if ws else None, False)
            if st == 16: A('s_mov_b32 %s, 0' % s(sXoff))
            if st == 17: A('s_mov_b32 %s, 384' % s(sWoff))
            if st % 2 == 0 and st < 20:
                for t in flat(x_issue((st // 2) & 1, NT, False)): A(t)
                vm.add(('x', st // 2 + 2), nx)
            if st < 20:
                for t in flat(w_issue((st + 3) & 3)): A(t)
                vm.add(('w', st + 3), 3)
            for i in range(6):
                if cfg.kv_at + i * cfg.kv_every == st:
                    for t in flat(kv_static(kvpos[i])): A(t)
                    vm.add(('kv', kvpos[i]), 3)
        assert cfg.kv_at + 5 * cfg.kv_every < 20
        stamp(1)
        for t in x_reads(0): A(t[0])
        A('s_waitcnt vmcnt(0)')
        checks.append(('g2 pro', A.lines[m1:]))
        if cfg.exp & 1: A('s_mov_b32 %s, 0x40000000' % s(sWoff))
        if cfg.exp & 3: A('s_mov_b32 %s, 0x40000000' % s(sXoff))
        A('L_q2loop%s:' % X)
        m1 = A.mark()
        allf = q_frags(0) + q_frags(1) + q_frags(2) + q_frags(3)
        prev = qlag
        for cch in range(6):
            wb(15 + nx)
            kd = kv_dyn(cch % 2 == 0)
            fill = {0: kd[0], 1: kd[1], 2: kd[2]}
            ii = x_issue(0 if cch == 1 else 1, NT) if cch in (1, 4) else w_issue({0: 3, 2: 0, 3: 1, 5: 2}[cch])
            fill = merge(fill, {3 + i: l for i, l in enumerate(ii)})
            if cch in (2, 5):
                xr = x_reads(1 if cch == 2 else 0)
                fill = merge(fill, {3 + i: [x] for i, x in enumerate(xr)})
            prev = untag(pipe_step(A, prev, allf[8 * cch:8 * cch + 8], fill))
        A('s_add_u32 %s, %s, 1' % (s(sCnt), s(sCnt))); A('s_cmp_lt_u32 %s, 5' % s(sCnt)); A('s_cbranch_scc1 L_q2loop' + X)
        body2 = A.lines[m1:]
        checks.append(('q2loop', body2 + body2))
        wb(15 + nx)
        for t in flat(kv_dyn(True)): A(t)
        A('L_qend%s:' % X)
        m2 = A.mark()
        for _, ms in qlag:
            for m in ms: A(m)
        addr_k = ['v_add_u32 %s, %s, %s' % (v(vKr), s(sCur), v(vKa)), 'v_xor_b32 %s, 64, %s' % (v(vKr + 1), v(vKr))]
        addr_v = ['v_add_u32 %s, %s, %s' % (v(vVr), s(sCur), v(vVa))] + \
                 ['v_xor_b32 %s, %d, %s' % (v(vVr + u), 32 * u, v(vVr)) for u in range(1, 4)]
        for t in addr_k: A(t)
        for i in range(4 * NT): A('v_mov_b32 %s, 0' % v(P + i)); A('v_mov_b32 %s, 0' % v(vLa + i))
        A('v_mov_b32 %s, %s' % (v(vF), s(sC)))
        nq = 24 * NT
        for i in range(nq + 2):
            if i < nq:
                for x in mul2(ACC + 2 * i, 0): A(x)
            if i >= 2: A('v_cvt_pk_bf16_f32 %s, %s, %s' % (v(QF + i - 2), v(ACC + 2 * i - 4), v(ACC + 2 * i - 3)))
        for op in ('v_permlane32_swap_b32', 'v_permlane16_swap_b32'):
            for f in range(nq // 4):
                for k in range(2): A('%s %s, %s' % (op, v(QF + 4 * f + k), v(QF + 4 * f + 2 + k)))
        if cfg.prio: A('s_setprio %d' % cfg.prio)
        def k_frags(Sb, first=False):
            fr = []
            for ss in range(6):
                for ee in range(2):
                    j = 2 * ss + ee; buf = AF + 4 * (j % 6)
                    fr.append((['ds_read_b128 %s, %s%s' % (v(buf, 4), v(vKr + (ss & 1)), off(128 * (ss >> 1) + 1536 * ee))],
                               [mfma(Sb + 8 * t + 4 * ee, buf, QF + 24 * t + 4 * ss, ss == 0 and first, vNM + 4 * t if ss == 0 else None) for t in TT]))
            return fr
        def v_frags():
            fr = []
            for dt in range(12):
                buf = AF + 4 * (dt % 6)
                rds = ['ds_read_b64_tr_b16 %s, %s%s' % (v(buf + 2 * vv, 2), v(vVr + (dt & 3)), off(1536 * vv + 128 * (dt >> 2))) for vv in range(2)]
                fr.append((rds, [mfma(ACC + 48 * t + 4 * dt, buf, P + 4 * t) for t in TT]))
            return fr
        ring_adv = ['s_add_u32 %s, %s, %d' % (s(sCur), s(sCur), TILE),
                    's_cmp_ge_u32 %s, %d' % (s(sCur), NKV * TILE),
                    's_cselect_b32 %s, 0, %s' % (s(sCur), s(sCur))]
        rare_tags = []; resc_tags = []
        def sm_max(Sb, tag):
            l = []
            for k in range(4):
                for t in TT:
                    tt = v(vT0 + t); bs = Sb + 8 * t
                    if k == 0: l.append('v_max3_f32 %s, %s, %s, %s' % (tt, v(bs), v(bs + 1), v(bs + 2)))
                    elif k < 3: l.append('v_max3_f32 %s, %s, %s, %s' % (tt, tt, v(bs + 1 + 2 * k), v(bs + 2 + 2 * k)))
                    else: l.append('v_max_f32 %s, %s, %s' % (tt, tt, v(bs + 7)))
            if tag is None: return l
            if NT == 2: l2 = ['v_max_f32 %s, %s, %s' % (v(vT2), v(vT0), v(vT1)), 'v_cmp_lt_f32 vcc, %s, %s' % (s(sTc), v(vT2))]
            else: l2 = ['v_cmp_lt_f32 vcc, %s, %s' % (s(sTc), v(vT0))]
            l2 += ['s_cbranch_vccnz L_rare_%s%s' % (tag, X), 'L_ret_%s%s:' % (tag, X)]
            rare_tags.append((tag, Sb))
            return l, l2
        def xlane(op, r):
            l = []
            for sw in ('v_permlane32_swap_b32', 'v_permlane16_swap_b32'):
                l += ['v_mov_b32 %s, %s' % (v(vT2), v(r)), 's_nop 1', '%s %s, %s' % (sw, v(r), v(vT2)),
                      '%s %s, %s, %s' % (op, v(r), v(r), v(vT2))]
            return l
        lsum = [mfma(vLa + 4 * t, vOne, P + 4 * t) for t in TT]
        def cvt(Sb, k): return 'v_cvt_pk_bf16_f32 %s, %s, %s' % (v(P + k), v(Sb + 2 * k), v(Sb + 2 * k + 1))
        VG = [6, 7, 8, 9, 10, 11]; KG = list(range(0, 11))
        def sm_fill(Sb):
            it = []
            it += [('v_exp_f32 %s, %s' % (v(Sb + r), v(Sb + r)), 2) for r in range(8 * NT)]
            it += [(cvt(Sb, k), 1) for k in range(4 * NT)]
            caps = [('v', g, cfg.vw) for g in VG] + [('k', g, cfg.kw) for g in KG]
            tot = sum(c for _, c in it); ctot = sum(c for _, _, c in caps)
            vf = {g: [] for g in VG}; kf = {g: [] for g in KG}
            acc = 0.0; gi = 0; lim = caps[0][2] * tot / ctot
            for tx, c in it:
                while acc + c / 2.0 > lim and gi < len(caps) - 1:
                    gi += 1; lim += caps[gi][2] * tot / ctot
                (vf if caps[gi][0] == 'v' else kf)[caps[gi][1]].append(tx); acc += c
                if tx.startswith('v_cvt'): assert caps[gi][0] == 'k' and caps[gi][1] >= 2
            return vf, kf
        def resc(tag):
            resc_tags.append(tag)
            return ['s_cmp_lg_u32 %s, 0' % s(sFlag), 's_cbranch_scc1 L_resc_%s%s' % (tag, X), 'L_rret_%s%s:' % (tag, X)]
        wb(11 + nx, False)
        stamp(3)
        zero_acc = ['v_mov_b32 %s, 0' % v(ACC + i) for i in range(48 * NT)]
        zn = 3 * NT
        fill = {0: ring_adv}
        for g in range(1, 9): fill[g] = zero_acc[(g - 1) * zn:g * zn]
        prev = untag(pipe_step(A, [], k_frags(SB[0], True), fill))
        wb(8 + nx)
        for k, (_, ms) in enumerate(prev):
            for m in ms: A(m)
            for t in zero_acc[(8 + k) * zn:(9 + k) * zn]: A(t)
        for t in ring_adv + addr_k + zero_acc[11 * zn:]: A(t)
        for t in sm_max(SB[0], None): A(t)
        for t in TT:
            for x in xlane('v_max_f32', vT0 + t): A(x)
            for i in range(4): A('v_sub_f32 %s, 0, %s' % (v(vNM + 4 * t + i), v(vT0 + t)))
            for i in range(8): A('v_sub_f32 %s, %s, %s' % (v(SB[0] + 8 * t + i), v(SB[0] + 8 * t + i), v(vT0 + t)))
        vf0, kf0 = sm_fill(SB[0]); vf1, kf1 = sm_fill(SB[1])
        for g in VG:
            for t in vf0[g]: A(t)
        A('s_mov_b32 %s, 0' % s(sFlag))
        A('s_mov_b32 %s, 0' % s(sCnt))
        A('s_waitcnt vmcnt(0)')
        checks.append(('q->attn', qbody[-40:] + A.lines[m2:]))
        pre_loop = A.lines[-40:]
        A('L_aloop%s:' % X)
        m3 = A.mark()
        pv_lag = [(None, f[1]) for f in v_frags()[-LAG:]]
        for par in range(2):
            kf = (kf0, kf1)[par]; vf = (vf1, vf0)[par]; Sn = SB[par ^ 1]
            wb()
            fill = merge(kf, {2: resc('l%d' % par), 10: ring_adv, 11: addr_v})
            prev = untag(pipe_step(A, pv_lag, k_frags(Sn), fill))
            wb()
            mx, mx2 = sm_max(Sn, 'l%d' % par)
            h = len(mx) // 2
            fill = merge({0: ring_adv, 2: addr_k + lsum, 4: mx[:h], 5: mx[h:] + mx2}, vf)
            if par == 0: fill = merge(fill, {11: ['s_add_u32 %s, %s, 1' % (s(sCnt), s(sCnt)), 's_cmp_eq_u32 %s, 8' % s(sCnt)]})
            prev = untag(pipe_step(A, prev, v_frags(), fill))
            if par == 0:
                A('s_cbranch_scc1 L_aexit' + X); ahalf = A.lines[m3:]
        A('s_branch L_aloop' + X)
        abody = A.lines[m3:]
        checks.append(('aloop', pre_loop + abody + abody))
        abody = ahalf
        A('L_aexit%s:' % X)
        stamp(4)
        def st_slot(j): return slot_of[j]
        def st_issue(j, part):
            o = ((j + 1) % 10) * 128 if j < 10 else 245760 + (j - 10) * 128
            o += part * 30720
            l = [['s_add_u32 m0, %s, %d' % (s(sW6k), st_slot(j) + part * 3072)], [], []]
            for i in range(3):
                l[i] += ['s_add_u32 %s, %s, %d' % (s(sT0 + i), s(sO1), o + i * 9216), dma(vOd, sWo, s(sT0 + i), 1024 * i, cfg.wo_pol)]
            return l
        def planned(i, vm):
            l = []
            for j, hh in plan[i]:
                l += st_issue(j, hh); vm.add(('st', j), 3)
            return l
        def attn_end(g, vm):
            Sb = SB[1]
            rest = [t for gg in KG for t in kf1[gg]]
            rcp = ['v_rcp_f32 %s, %s' % (v(vF + t), v(vLa + 4 * t)) for t in TT]
            def fin(ss):
                l1 = []; l2 = []
                for t in TT:
                    bs = ACC + 48 * t + 8 * ss; dst = QF + 24 * t + 4 * ss
                    l1 += flat([mul2(bs + 2 * k, t) for k in range(4)])
                    l2 += ['v_cvt_pk_bf16_f32 %s, %s, %s' % (v(dst + k), v(bs + 2 * k), v(bs + 2 * k + 1)) for k in range(4)]
                    if g == 1: l2.append(('ds_write_b128 %s, %s%s' % (v(vOr), v(dst, 4), off(1024 * (6 * t + ss))), 'w'))
                return l1, l2
            if g == 0:
                wb()
                for k, (_, ms) in enumerate(pv_lag):
                    for m in ms: A(m)
                    if k < 2:
                        for t in rest[2 * k:2 * k + 2]: A(t)
                vm.add(('kv', 38), 3)
                for t in flat(kv_static(38)) + rest[4:] + resc('e0') + ring_adv + lsum + addr_v + flat(planned(52, vm)) + rcp: A(t)
                wb(None, False)
                vm.add(('kv', 39), 3)
                kk = kv_static(39); ii = planned(53, vm)
                fill = {0: kk[0], 1: kk[1], 2: kk[2], 3: ii[0], 4: ii[1], 5: ii[2]}
                prev = []; o = 0
            else:
                for t in addr_v + ['v_add_u32 %s, %s, %s' % (v(vOr), s(sEx), v(vL16))]: A(t)
                wb()
                fill = {0: rest[0:2], 1: rest[2:4], 2: rest[4:] + resc('e1') + ['s_nop 0'] + lsum, 6: rcp}
                prev = pv_lag; o = 3
            for ss in range(4):
                l1, l2 = fin(ss)
                fill = merge(fill, {o + 2 * ss + 4: l1, o + 2 * ss + 5: l2})
            pipe_step(A, prev, v_frags(), fill, lag=0)
            l1, l2 = fin(4); l3, l4 = fin(5)
            if NT == 1: A('s_nop 3')
            for t in l1 + l2 + l3 + l4: emit(A, t)
            if cfg.prio: A('s_setprio 0')
            if g == 0:
                wb()
                vm.add(('kv', 40), 3)
                for t in flat(kv_static(40)) + flat(planned(54, vm)): A(t)
        A('s_cmp_lg_u32 %s, 0' % s(sG)); A('s_cbranch_scc1 L_g2tail' + X)
        m5 = A.mark()
        vm = Vm()
        if cfg.exp & 4: A('s_mov_b32 %s, 0x40000000' % s(sO1))
        attn_end(0, vm)
        def o_frags(u, acc, zero, extra=None):
            fr = []
            for ee in range(2):
                for ss in range(6):
                    buf = AF + 4 * ss
                    rds = ['ds_read_b64_tr_b16 %s, %s%s' % (v(buf + 2 * vv, 2), v(vOr), off(4096 * ss + 2048 * vv)) for vv in range(2)]
                    if extra and ee == 0: rds = extra(ss) + rds
                    if ss == 0:
                        if ee == 1: ad = 'v_xor_b32 %s, 32, %s' % (v(vOr), v(vOr))
                        elif u % 2 == 0: ad = 'v_add_u32 %s, %d, %s' % (v(vOr), st_slot(u // 2), v(vOa))
                        else: ad = 'v_xor_b32 %s, 96, %s' % (v(vOr), v(vOr))
                        rds = [ad] + rds
                    fr.append((rds, [mfma(acc + 8 * t + 4 * ee, buf, QF + 24 * t + 4 * ss, ss == 0 and zero) for t in TT]))
            return fr
        def pack_to(dst, acc):
            return ['v_cvt_pk_bf16_f32 %s, %s, %s' % (v(dst + k), v(acc + 2 * k), v(acc + 2 * k + 1)) for k in range(4 * NT)]
        allo = []
        for n in range(20): allo += o_frags(n, TACC[n & 1], True)
        gfill = {}
        for n in range(18):
            pk = pack_to(stash(n + 2), TACC[n & 1])
            gfill[12 * n + 11 + 4] = pk[0:4]; gfill[12 * n + 11 + 5] = pk[4:8]
        prev = []
        for st in range(55, 85):
            n = cum[st + 1] - cum[st]
            ws = [vm.need(('kv', st - 20)), vm.need(('st', (cum[st + 1] - 1) // 24)) if n else None]
            ws = [w for w in ws if w is not None]
            wb(ws[-1] if ws else None, st > cfg.o0)
            iss = []
            if st - 14 <= 64:
                iss += kv_static(st - 14); vm.add(('kv', st - 14), 3)
            iss += planned(st, vm)
            if cfg.warm_step <= st < cfg.warm_step + 3:
                kw = st - cfg.warm_step
                wl = []
                if kw == 0:
                    wl += ['s_lshl_b32 %s, %s, 2' % (s(sCnt), s(sB)), 's_add_u32 %s, %s, %s' % (s(sCnt), s(sCnt), s(sWv)),
                           's_mul_i32 %s, %s, %d' % (s(sCnt), s(sCnt), 3 * 1280), 's_add_u32 %s, %s, %s' % (s(sCnt), s(sCnt), s(sO1))]
                wl += ['s_lshl_b32 %s, %s, 10' % (s(sT2), s(sWv)), 's_add_u32 m0, %s, 159744' % s(sT2),
                       's_add_u32 %s, %s, %d' % (s(sT2), s(sCnt), 245760 + 256 + 1280 * kw),
                       dma(vL16, sWo, s(sT2), 0, cfg.wo_pol)]
                iss = iss + [wl]; vm.add('warm', 1)
            if n:
                lag = 0 if st == 84 else LAG
                first = cum[st] - len(prev)
                ng = cum[st + 1] - lag - first
                fill = {}
                for i, l in enumerate(iss): fill = merge(fill, {min(i, ng - 1): l})
                for gi in range(first, first + ng):
                    if gi in gfill: fill = merge(fill, {gi - first: gfill[gi]})
                prev = untag(pipe_step(A, prev, allo[cum[st]:cum[st + 1]], fill, lag=lag))
            else:
                for t in flat(iss): A(t)
        dead = set()
        for ins in A.lines[m5:]:
            if ins.is_dma: assert not (ins.r & dead), ins.text
            dead |= ins.w & {'v%d' % i for i in range(vKd, vKd + 6)}
        A('v_add_u32 %s, %s, %s' % (v(vOd), s(sEx), v(vL16)))
        wb(vm.need(('st', 10)))
        stamp(7)
        prev = []
        def outreg(t): return TACC[t & 1] if t in (0, 19) else stash(t + 1)
        def store(n):
            o = outreg(n)
            l = [['s_add_u32 %s, %s, %d' % (s(sT0), s(sSt if t == 0 else sSt1), 8192 * n),
                  'buffer_store_dwordx4 %s, %s, %s, %s offen%s' % (v(o + 4 * t, 4), v(vL16), s(sP, 4), s(sT0), cfg.st_pol)] for t in TT]
            return l + [[]] * (2 - NT)
        def unpack(n):
            acc = TACC[n & 1]; sr = stash(n); un = []
            for k in reversed(range(4 * NT)):
                un.append('v_lshlrev_b32 %s, 16, %s' % (v(acc + 2 * k), v(sr + k)))
                un.append('v_and_b32 %s, 0xffff0000, %s' % (v(acc + 2 * k + 1), v(sr + k)))
            return un
        carry = {}
        nst = 1
        for u in range(20):
            reset = True
            if u % 2 == 0 and u > 0: wb(vm.need(('st', 10 + u // 2)))
            elif u > 0: reset = False
            fill = dict(carry); carry = {}
            if u >= 1:
                pk = pack_to(outreg(u - 1), TACC[(u - 1) & 1])
                un = unpack(u + 1) if u + 1 < 20 else []
                fill = merge(fill, {5: pk[0:4], 6: pk[4:8], 9: un[0:4], 10: un[4:8], 11: un[8:12]})
                carry = {0: un[12:16]}
                if u == 1:
                    sl = store(0); fill = merge(fill, {6: sl[0], 7: sl[1]}); vm.add('store', NT)
                gaps = [1, 3, 7, 8, 2, 4]; gi = 0; cnt = 0
                while u >= cfg.st_delay and nst <= u - 2 and cnt < cfg.st_rate:
                    sl = store(nst)
                    fill = merge(fill, {gaps[gi]: sl[0], gaps[gi + 1]: sl[1]}); gi += 2
                    vm.add('store', NT); nst += 1; cnt += 1
            extra = None
            if u == 0:
                extra = lambda ss: ['ds_read_b128 %s, %s%s' % (v(QF + 24 * t + 4 * ss, 4), v(vOd), off(1024 * (6 * t + ss))) for t in TT]
            prev = pipe_step(A, untag(prev) if reset else prev, o_frags(20 + u, TACC[u & 1], False, extra), fill, reset=reset, tagp='t%d' % u)
        A('s_waitcnt lgkmcnt(0)')
        for _, ms in prev:
            for m in ms: A(m)
        while nst <= 18:
            for t in flat(store(nst)): A(t)
            nst += 1
        A('s_nop 5')
        for t in pack_to(outreg(19), TACC[1]) + flat(store(19)): A(t)
        checks.append(('g1 oproj', abody[-40:] + A.lines[m5:]))
        A('s_branch L_fin')
        A('L_g2tail%s:' % X)
        m6 = A.mark()
        vm = Vm()
        attn_end(1, vm)
        wb()
        stamp(7)
        for i in range(85, 94):
            for t in flat(planned(i, vm)): A(t)
            wb(vm.need(('st', i - 74)), False)
        checks.append(('g2 tail', abody[-40:] + A.lines[m6:]))
        A('s_branch L_fin')
        tr = A.trace; A.trace = False
        for tag, Sb in rare_tags:
            m8 = A.mark()
            A('L_rare_%s%s:' % (tag, X))
            for t in TT:
                for x in xlane('v_max_f32', vT0 + t): A(x)
                A('v_max_f32 %s, 0, %s' % (v(vT0 + t), v(vT0 + t)))
                if cfg.dbgrare == 1: A('v_mov_b32 %s, 0' % v(vT0 + t))
                A('v_exp_f32 %s, -%s' % (v(vF + t), v(vT0 + t)))
                for i in range(4): A('v_sub_f32 %s, %s, %s' % (v(vNM + 4 * t + i), v(vNM + 4 * t + i), v(vT0 + t)))
                for i in range(8): A('v_sub_f32 %s, %s, %s' % (v(Sb + 8 * t + i), v(Sb + 8 * t + i), v(vT0 + t)))
            A('s_mov_b32 %s, 1' % s(sFlag))
            A('s_branch L_ret_%s%s' % (tag, X))
            checks.append(('rare', A.lines[m8:]))
        for tag in resc_tags:
            A('L_resc_%s%s:' % (tag, X))
            A('s_nop 15')
            for i in range(48 * NT): A('v_mul_f32 %s, %s, %s' % (v(ACC + i), v(ACC + i), v(vF + i // 48)))
            for i in range(4 * NT): A('v_mul_f32 %s, %s, %s' % (v(vLa + i), v(vLa + i), v(vF + i // 4)))
            A('s_mov_b32 %s, 0' % s(sFlag))
            A('s_nop 1')
            A('s_branch L_rret_%s%s' % (tag, X))
        A.trace = tr

    body(2, '')
    if cfg.light:
        A('L_light:')
        body(1, '_L')
    A.trace = False
    A('L_fin:')
    if cfg.stamp:
        A('s_waitcnt vmcnt(0)')
        stamp(10); stamp(12, True)
        A('s_mov_b32 %s, s14' % s(sP)); A('s_mov_b32 %s, s15' % s(sP + 1)); A('s_mov_b32 %s, 402653184' % s(sP + 2))
        A('s_lshl_b32 %s, s2, 3' % s(sT0)); A('s_add_u32 %s, %s, %s' % (s(sT0), s(sT0), s(sW8)))
        A('s_lshl_b32 %s, %s, 7' % (s(sT0), s(sT0))); A('s_add_u32 %s, %s, %d' % (s(sT0), s(sT0), 64 << 20))
        if cfg.stamp in (3, 6):
            A('s_lshl_b32 %s, s2, 3' % s(sT1)); A('s_add_u32 %s, %s, %s' % (s(sT1), s(sT1), s(sW8)))
            A('s_lshl_b32 %s, %s, 11' % (s(sT1), s(sT1))); A('s_add_u32 %s, %s, %d' % (s(sT1), s(sT1), 65 << 20))
            A('v_lshrrev_b32 v1, 2, %s' % v(vL16))
            for i in range(4):
                A('buffer_store_dword v%d, v1, %s, %s offen offset:%d' % (252 + i, s(sP, 4), s(sT1), 256 * i))
        A('v_mov_b32 v1, 0')
        A('s_mov_b64 exec, 1')
        for i in range(26):
            A('v_mov_b32 v0, %s' % s(76 + i))
            A('buffer_store_dword v0, v1, %s, %s offen offset:%d' % (s(sP, 4), s(sT0), 4 * i))
    A('L_end:')
    A('s_endpgm')
    A('.globl mha_k2_kernel'); A('.p2align 8'); A('.type mha_k2_kernel,@function'); A('mha_k2_kernel:')
    m9 = A.mark()
    A('s_cmp_ge_u32 s2, 256'); A('s_cbranch_scc1 L_end2')
    A('s_load_dwordx2 s[4:5], s[0:1], 40')
    A('s_load_dwordx2 s[8:9], s[0:1], 56')
    if cfg.dbg or cfg.probe >= 0: A('s_memrealtime s[24:25]')
    A('v_readfirstlane_b32 s20, v0')
    A('v_and_b32 v2, 63, v0')
    A('s_lshr_b32 s20, s20, 6')
    A('s_lshr_b32 s13, s2, 4')
    A('s_and_b32 s14, s2, 15'); A('s_mul_i32 s14, s14, 5'); A('s_add_u32 s14, s14, s20')
    A('s_and_b32 s21, s14, 3')
    A('s_lshr_b32 s22, s14, 2')
    A('v_lshlrev_b32 v3, 4, v2')
    A('v_and_b32 v4, 15, v2')
    A('v_mul_u32_u24 v5, 1280, v4')
    A('v_lshrrev_b32 v6, 4, v2')
    A('v_lshl_add_u32 v5, v6, 4, v5')
    A('s_mul_i32 s15, s13, %d' % (16 * cfg.pstride))
    A('s_lshl_b32 s16, s14, 11'); A('s_add_u32 s15, s15, s16')
    A('s_mul_i32 s17, s13, 143360'); A('s_lshl_b32 s16, s22, 6'); A('s_add_u32 s17, s17, s16')
    A('s_mul_i32 s16, s21, %d' % (32 * 1280)); A('s_add_u32 s17, s17, s16')
    A('s_add_u32 s18, s17, %d' % (16 * 1280))
    A('s_cmp_eq_u32 s21, 3')
    A('s_cselect_b32 s18, 0x40000000, s18')
    A('s_cselect_b32 s19, 0x40000000, 0')
    A('v_add_u32 v7, s19, v3')
    A('s_mov_b32 s6, 2293760'); A('s_mov_b32 s7, 0x20000')
    A('s_mov_b32 s10, %d' % (256 * cfg.pstride)); A('s_mov_b32 s11, 0x20000')
    A('s_waitcnt lgkmcnt(0)')
    for p in range(16):
        A('buffer_load_dwordx4 %s, v3, s[8:11], s15 offen%s' % (v(32 + 8 * p, 4), cfg.r_pol))
        A('buffer_load_dwordx4 %s, v7, s[8:11], s15 offen offset:1024%s' % (v(36 + 8 * p, 4), cfg.r_pol))
        if p < 15: A('s_add_u32 s15, s15, %d' % cfg.pstride)
    for p in range(16):
        A('s_waitcnt vmcnt(%d)' % (2 * (15 - p)))
        for k in range(8):
            src = 32 + 8 * p + k
            if p == 0:
                A('v_lshlrev_b32 %s, 16, %s' % (v(8 + 2 * k), v(src)))
                A('v_and_b32 %s, 0xffff0000, %s' % (v(9 + 2 * k), v(src)))
            else:
                tt = 24 + 2 * (k & 1)
                A('v_lshlrev_b32 %s, 16, %s' % (v(tt), v(src)))
                A('v_and_b32 %s, 0xffff0000, %s' % (v(tt + 1), v(src)))
                A('v_pk_add_f32 %s, %s, %s' % (v(8 + 2 * k, 2), v(8 + 2 * k, 2), v(tt, 2)))
    for k in range(8): A('v_cvt_pk_bf16_f32 %s, %s, %s' % (v(24 + k), v(8 + 2 * k), v(9 + 2 * k)))
    for op in ('v_permlane32_swap_b32', 'v_permlane16_swap_b32'):
        for r in (24, 25, 28, 29): A('%s %s, %s' % (op, v(r), v(r + 2)))
    A('buffer_store_dwordx4 v[24:27], v5, s[4:7], s17 offen')
    A('buffer_store_dwordx4 v[28:31], v5, s[4:7], s18 offen')
    checks.append(('k2', A.lines[m9:]))
    if cfg.probe >= 0:
        A('s_waitcnt vmcnt(0)')
        A('s_memrealtime s[26:27]')
        A('s_cmp_lg_u32 s20, 0'); A('s_cbranch_scc1 L_end2')
        A('s_cmp_eq_u32 s2, 64'); A('s_cbranch_scc0 L_end2')
        A('s_mov_b32 s10, 402653184')
        A('s_lshl_b32 s29, s2, 10'); A('s_add_u32 s29, s29, %d' % (64 << 20))
        A('v_mov_b32 v1, 0')
        for k, i in enumerate((11, 2, 4, 6, 8, 12)):
            A('buffer_load_dword v%d, v1, s[8:11], s29 offen offset:%d' % (10 + k, 8 * i))
        A('s_waitcnt vmcnt(0) lgkmcnt(0)')
        A('v_mov_b32 v16, s24'); A('v_mov_b32 v17, s26')
        if cfg.probe == 0: A('v_mov_b32 v18, 0')
        else: A('v_sub_u32 v18, v%d, v%d' % (10 + cfg.probe, 9 + cfg.probe))
        A('v_min_u32 v18, 10000, v18')
        A('s_nop 1')
        A('v_readfirstlane_b32 s28, v18')
        A('s_lshl_b32 s28, s28, 2')
        A('L_spin:')
        A('s_memrealtime s[30:31]'); A('s_waitcnt lgkmcnt(0)')
        A('s_sub_u32 s30, s30, s26')
        A('s_cmp_lt_u32 s30, s28'); A('s_cbranch_scc1 L_spin')
    if cfg.dbg:
        A('s_waitcnt vmcnt(0)')
        A('s_memrealtime s[26:27]')
        A('s_cmp_lg_u32 s20, 0'); A('s_cbranch_scc1 L_end2')
        A('s_mov_b32 s28, 0')
        A('s_cmp_eq_u32 s2, 0'); A('s_cbranch_scc1 L_dbgw')
        A('s_mov_b32 s28, 32')
        A('s_cmp_eq_u32 s2, 133'); A('s_cbranch_scc0 L_end2')
        A('L_dbgw:')
        A('s_load_dwordx2 s[4:5], s[0:1], 48'); A('s_mov_b32 s6, 256'); A('s_mov_b32 s10, 402653184')
        A('s_lshl_b32 s29, s2, 10'); A('s_add_u32 s29, s29, %d' % (64 << 20))
        A('v_mov_b32 v1, 0'); A('s_mov_b64 exec, 1')
        for k, i in enumerate((11, 2, 4, 6, 8, 12)):
            A('buffer_load_dword v%d, v1, s[8:11], s29 offen offset:%d' % (10 + k, 8 * i))
        A('s_waitcnt vmcnt(0) lgkmcnt(0)')
        A('v_mov_b32 v16, s24'); A('v_mov_b32 v17, s26')
        for k in range(1, 8):
            A('v_sub_u32 v%d, v%d, v10' % (10 + k, 10 + k))
            A('buffer_store_dword v%d, v1, s[4:7], s28 offen offset:%d' % (10 + k, 4 * (k - 1)))
    A('L_end2:')
    A('s_endpgm')
    if cfg.codepf:
        A('.set CODE_LAST, L_end2-L_pc')
        A('.set CODE_SHARE, ((L_end2-L_pc)/32/128+1)*128')
    A('.section .rodata,"a"')
    for name, nv, ns in (('mha_k1_kernel', 256, 102 if cfg.stamp else 80), ('mha_k2_kernel', 160, 40)):
        A('.p2align 6')
        A('.amdhsa_kernel %s' % name)
        A('  .amdhsa_next_free_vgpr %d' % nv); A('  .amdhsa_next_free_sgpr %d' % ns); A('  .amdhsa_accum_offset %d' % nv)
        A('  .amdhsa_group_segment_fixed_size 0'); A('  .amdhsa_kernarg_size 64'); A('  .amdhsa_user_sgpr_count 2')
        A('  .amdhsa_user_sgpr_kernarg_segment_ptr 1'); A('  .amdhsa_system_sgpr_workgroup_id_x 1')
        A('.end_amdhsa_kernel')
    nerr = 0
    for name, seq in checks:
        for e in check_seq(seq, name):
            print(e); nerr += 1
    assert nerr == 0, 'hazards'
    open(fname, 'w').write(A.text())

if __name__ == '__main__':
    cfg = Cfg()
    out = sys.argv[1] if len(sys.argv) > 1 else 'k.s'
    for kv in sys.argv[2:]:
        k, val = kv.split('=', 1)
        cur = getattr(cfg, k)
        setattr(cfg, k, type(cur)(val.replace('_', ' ')) if isinstance(cur, str) else type(cur)(val))
    gen(cfg, out)
```

```python
import sys, math, struct
from asmlib import Asm, check_seq, Ins, Vm

def f32bits(x): return struct.unpack('<I', struct.pack('<f', x))[0]

class Cfg:
    kv_pol = ' nt'
    wq_pol = ''
    wo_pol = ''
    x_pol = ''
    st_pol = ' sc1'
    r_pol = ''
    thr = 8.0
    prio = 1
    kv_steps = '5,9,13,17,19,20'
    cpre = 3
    cap = 7
    krot = 1
    krot2 = 0
    nrot = 1
    stamp = 0
    dbg = 0
    vw = 3.0
    kw = 4.5
    rot = 1
    pstride = 168192
    codepf = 1
    tw = 2
    st_delay = 2
    st_rate = 2
    dbgrare = 0
    probe = -1
    exp = 0
    o0 = 55
    c2 = 8
    c3 = 24
    warm_step = 99
    light = 1
    w2 = 1

TILE = 12288
NKV = 7
WBASE = NKV * TILE
XBASE = WBASE + 4 * TILE
XSLOT = 14336
LDS = 163840
LAG = 3
SS = [WBASE, WBASE + 24576, WBASE + 49152, 49152]

ACC = 0; QF = 96; P = 160; AF = 168
SB = [144, 232]
vNM = 192; vWa = 192; vXa = 196; vOne = 200; vKa = 204; vKr = 205; vT0 = 207; vT1 = 208; vT2 = 209
vKd = 210; vVd = 213; vLa = 216; vWd = 216; vXd = 219; vVa = 224; vVr = 225; vF = 230
T = 236
vOd = 248; vOa = 249; vOr = 250; vL16 = 251
TACC = [216, 232]
def stash(t):
    i = t - 2
    if i < 12: return 8 * i
    if i < 15: return 144 + 8 * (i - 12)
    return 192 + 8 * (i - 15)
sX = 16; sK = 20; sV = 24; sWq = 28; sWo = 32; sP = 36
sW8 = 40; sG = 41; sWv = 42; sB = 43; sHp = 44; sW3k = 45; sXm0 = 46; sXm1 = 47; sXa1 = 48; sCnt = 49
sWoff = 50; sXoff = 51; sCur = 52; sPrev = 53; sKoff = 54; sVoff = 55; sC = 56; sTc = 57; sFlag = 58
sW6k = 59; sO1 = 60; sSt = 61; sEx = 62; sRot = 63; sM2 = 64; sT0 = 66; sT1 = 67; sT2 = 68; sHi = 69; sSt1 = 72; sWend = 73; sXend = 74; sNr = 65

def v(i, n=1): return 'v%d' % i if n == 1 else 'v[%d:%d]' % (i, i + n - 1)
def s(i, n=1): return 's%d' % i if n == 1 else 's[%d:%d]' % (i, i + n - 1)
def mfma(d, a, b, zero=False, c=None):
    return 'v_mfma_f32_16x16x32_bf16 %s, %s, %s, %s' % (v(d, 4), v(a, 4), v(b, 4), '0' if zero else v(d if c is None else c, 4))
def off(o): return ' offset:%d' % o if o else ''

W2 = [1]
def pipe_step(A, prev, frags, fill, lag=LAG, reset=True, tagp='f', fine=None, wgrp=None):
    n = len(frags)
    if reset: A.lds_reset()
    nxt = 0
    def put(lst, tag):
        for t in lst:
            if t.startswith('ds_'): A.lds(t, tag)
            else: A(t)
    for _ in range(5 - len(prev)):
        put(frags[nxt][0], (tagp, nxt)); nxt += 1
    for t in fill.get(-1, []): emit(A, t)
    seq = list(prev) + [((tagp, j), frags[j][1]) for j in range(n - lag)]
    for k, (tag, ms) in enumerate(seq):
        if tag in A.ldsq:
            for dk in range(W2[0] if wgrp is None else wgrp, 0, -1):
                if k + dk < len(seq) and seq[k + dk][0] in A.ldsq:
                    A.wait_lds(seq[k + dk][0]); break
        A.wait_lds(tag)
        rd = []
        if nxt < n: rd = frags[nxt][0]; rtag = (tagp, nxt); nxt += 1
        fl = fill.get(k, [])
        if fine is not None:
            h = (len(rd) + 1) // 2 if len(ms) == 2 else len(rd)
            for hh, m in enumerate(ms):
                A(m); put(rd[:h] if hh == 0 else rd[h:], rtag if rd else None)
                for t in fine.get((k, hh), []): emit(A, t)
            for t in fl: emit(A, t)
        elif len(ms) == 1:
            A(ms[0]); put(rd, rtag if rd else None)
            for t in fl: emit(A, t)
        else:
            h = (len(rd) + 1) // 2
            pure = all(isinstance(t, str) and t.startswith('v_') and not t.startswith('v_cvt') and not t.startswith('v_mfma') for t in fl)
            hf = max(0, (len(fl) + len(rd)) // 2 - h) if pure else 0
            A(ms[0]); put(rd[:h], rtag if rd else None)
            for t in fl[:hf]: emit(A, t)
            A(ms[1]); put(rd[h:], rtag if rd else None)
            for t in fl[hf:]: emit(A, t)
    assert nxt == n
    return [((tagp, j), frags[j][1]) for j in range(n - lag, n)]

def untag(prev): return [(None, m) for _, m in prev]
def emit(A, t):
    if isinstance(t, tuple): A.lds(t[0], t[1])
    else: A(t)
def merge(*ds):
    out = {}
    for d in ds:
        for k, l in d.items(): out.setdefault(k, []).extend(l)
    return out
def flat(l): return [x for y in l for x in y]
def dma(voff, srd, soff, o, pol):
    return 'buffer_load_dwordx4 %s, %s, %s offen%s%s lds' % (v(voff), s(srd, 4), soff, off(o), pol)
def mul2(r, t):
    return ['v_mul_f32 %s, %s, %s' % (v(r + i), v(r + i), v(vF + t)) for i in range(2)]

def gen(cfg, fname):
    A = Asm()
    W2[0] = cfg.w2
    def stamp(i, real=False):
        if cfg.stamp == 5 and i in (1, 3, 4, 7):
            k = {1: 1, 3: 3, 4: 5, 7: 7}[i]
            A('s_memtime %s' % s(76 + 2 * k, 2)); A('s_memrealtime %s' % s(78 + 2 * k, 2)); A('s_waitcnt lgkmcnt(0)')
        elif cfg.stamp and i in (0, 10, 11, 12):
            A('%s %s' % ('s_memrealtime' if real else 's_memtime', s(76 + 2 * i, 2)))
            A('s_waitcnt lgkmcnt(0)')
    def wb(vm=None, lg=True):
        t = []
        if vm is not None: t.append('vmcnt(%d)' % vm)
        if lg: t.append('lgkmcnt(0)')
        if t: A('s_waitcnt ' + ' '.join(t))
        A('s_barrier')
    checks = []
    A('; @launch kernel=mha_k1_kernel grid=(256,1,1) block=(512,1,1) lds=%d' % LDS)
    A('; @launch kernel=mha_k2_kernel grid=(256,1,1) block=(320,1,1) lds=0')
    A('.amdgcn_target "amdgcn-amd-amdhsa--gfx950"')
    A('.text'); A('.globl mha_k1_kernel'); A('.p2align 8'); A('.type mha_k1_kernel,@function'); A('mha_k1_kernel:')
    m0 = A.mark()
    A('s_cmp_ge_u32 s2, 256'); A('s_cbranch_scc1 L_end')
    A('s_load_dwordx8 s[4:11], s[0:1], 0')
    A('s_load_dwordx2 s[12:13], s[0:1], 32')
    A('s_load_dwordx2 s[14:15], s[0:1], 56')
    stamp(0); stamp(11, True)
    if cfg.stamp in (3, 6):
        A.trace = 6 if cfg.stamp == 6 else True
        A('s_mov_b32 s75, 0'); A('s_mov_b32 s94, s98')
        for i in range(252, 256): A('v_mov_b32 v%d, 0' % i)
    L = T; G = T + 1; I16 = T + 2; F = T + 3; a = T + 4; b = T + 5; c = T + 6; d = T + 7; e = T + 8
    A('v_readfirstlane_b32 %s, v0' % s(sW8))
    A('v_and_b32 %s, 63, v0' % v(L))
    A('s_lshr_b32 %s, %s, 6' % (s(sW8), s(sW8)))
    A('s_lshr_b32 %s, %s, 2' % (s(sG), s(sW8)))
    A('s_and_b32 %s, %s, 3' % (s(sWv), s(sW8)))
    A('s_and_b32 %s, s2, 7' % s(sT0))
    A('s_lshr_b32 %s, s2, 3' % s(sT1))
    A('s_lshr_b32 %s, %s, 1' % (s(sB), s(sT1)))
    A('s_and_b32 %s, %s, 1' % (s(sT1), s(sT1)))
    A('s_lshl_b32 %s, %s, 1' % (s(sHp), s(sT0)))
    A('s_add_u32 %s, %s, %s' % (s(sHp), s(sHp), s(sT1)))
    A('s_mul_i32 %s, %s, 3072' % (s(sW3k), s(sWv)))
    A('s_cmp_eq_u32 %s, 3' % s(sWv))
    A('s_cselect_b32 %s, 0, 2048' % s(sXm1)); A('s_cselect_b32 %s, 0, 20480' % s(sXa1))
    A('s_lshl_b32 %s, %s, 12' % (s(sXm0), s(sWv))); A('s_add_u32 %s, %s, %d' % (s(sXm0), s(sXm0), XBASE))
    A('s_add_u32 %s, %s, %s' % (s(sXm1), s(sXm1), s(sXm0)))
    A('s_mul_i32 %s, %s, %d' % (s(sT0), s(sWv), 32 * 1280))
    A('v_lshrrev_b32 %s, 3, %s' % (v(a), v(L)))
    A('v_lshrrev_b32 %s, 4, %s' % (v(G), v(L)))
    A('v_and_b32 %s, 7, %s' % (v(c), v(L)))
    A('v_xor_b32 %s, %s, %s' % (v(b), v(G), v(c)))
    A('v_mul_u32_u24 %s, 1280, %s' % (v(a), v(a)))
    A('v_add_u32 %s, %s, %s' % (v(a), s(sT0), v(a)))
    A('v_lshl_add_u32 %s, %s, 4, %s' % (v(vXd), v(b), v(a)))
    A('v_xor_b32 %s, 4, %s' % (v(b), v(b)))
    A('v_lshl_add_u32 %s, %s, 4, %s' % (v(vXd + 1), v(b), v(a)))
    A('v_add_u32 %s, %d, %s' % (v(vXd + 1), 8 * 1280 - 1024, v(vXd + 1)))
    A('s_lshl_b32 %s, %s, 3' % (s(sT0), s(sWv)))
    A('s_and_b32 %s, %s, 1' % (s(sT2), s(sWv))); A('s_lshl_b32 %s, %s, 2' % (s(sT2), s(sT2)))
    for p in range(3):
        A('v_add_u32 %s, %d, %s' % (v(a), 64 * p, v(L)))
        A('v_mul_u32_u24 %s, 171, %s' % (v(b), v(a)))
        A('v_lshrrev_b32 %s, 12, %s' % (v(b), v(b)))
        A('v_mul_u32_u24 %s, 24, %s' % (v(c), v(b)))
        A('v_sub_u32 %s, %s, %s' % (v(vVd + p), v(a), v(c)))
        A('v_add_u32 %s, %s, %s' % (v(vKd + p), s(sT0), v(b)))
        A('v_and_or_b32 %s, %s, 2, %s' % (v(d), v(b), s(sT2)))
        A('v_xor_b32 %s, %s, %s' % (v(d), v(vVd + p), v(d)))
        A('v_mul_u32_u24 %s, 12288, %s' % (v(e), v(vKd + p)))
        A('v_lshl_add_u32 %s, %s, 4, %s' % (v(d), v(d), v(e)))
        A('v_subrev_u32 %s, %d, %s' % (v(vWd + p), 1024 * p, v(d)))
    A('s_mul_i32 %s, %s, 143360' % (s(sT0), s(sB)))
    A('s_mul_i32 %s, %s, 768' % (s(sT1), s(sHp)))
    A('s_mov_b32 %s, 143360' % s(sX + 2)); A('s_mov_b32 %s, 0x20000' % s(sX + 3))
    A('s_sub_u32 %s, 7864320, %s' % (s(sWq + 2), s(sT1))); A('s_mov_b32 %s, 0x20000' % s(sWq + 3))
    if cfg.krot:
        A('s_and_b32 %s, %s, 1' % (s(sXoff), s(sHp))); A('s_mul_i32 %s, %s, 5' % (s(sXoff), s(sXoff)))
        A('s_lshr_b32 %s, %s, 1' % (s(sWoff), s(sHp))); A('s_add_u32 %s, %s, %s' % (s(sXoff), s(sXoff), s(sWoff)))
        if cfg.krot == 2: A('s_mul_i32 %s, %s, 3' % (s(sWoff), s(sB)))
        else: A('s_mov_b32 %s, %s' % (s(sWoff), s(sB)))
        A('s_add_u32 %s, %s, %s' % (s(sXoff), s(sXoff), s(sWoff)))
        A('s_mul_i32 %s, %s, 205' % (s(sWoff), s(sXoff))); A('s_lshr_b32 %s, %s, 11' % (s(sWoff), s(sWoff)))
        A('s_mul_i32 %s, %s, 10' % (s(sWoff), s(sWoff))); A('s_sub_u32 %s, %s, %s' % (s(sXoff), s(sXoff), s(sWoff)))
        A('s_mul_i32 %s, %s, %d' % (s(sWoff), s(sXoff), 64 * 12288)); A('s_lshl_b32 %s, %s, 7' % (s(sXoff), s(sXoff)))
    else:
        A('s_mov_b32 %s, 0' % s(sWoff)); A('s_mov_b32 %s, 0' % s(sXoff))
    A('s_waitcnt lgkmcnt(0)')
    A('s_add_u32 %s, s4, %s' % (s(sX), s(sT0))); A('s_addc_u32 %s, s5, 0' % s(sX + 1))
    A('s_add_u32 %s, s10, %s' % (s(sWq), s(sT1))); A('s_addc_u32 %s, s11, 0' % s(sWq + 1))
    def x_issue(slot, NT=2, clamp=True):
        l = [['s_add_u32 m0, %s, %d' % (s(sXm0), slot * XSLOT),
              's_add_u32 %s, %s, %s' % (s(sT1), s(sXoff), s(sXa1)),
              dma(vXd, sX, s(sXoff), 0, cfg.x_pol)], [dma(vXd + 1, sX, s(sXoff), 1024, cfg.x_pol)]]
        if NT == 2:
            l += [['s_add_u32 m0, %s, %d' % (s(sXm1), slot * XSLOT),
                   's_add_u32 %s, %s, 128' % (s(sXoff), s(sXoff)),
                   dma(vXd, sX, s(sT1), 0, cfg.x_pol)], [dma(vXd + 1, sX, s(sT1), 1024, cfg.x_pol)]]
        else:
            l += [['s_add_u32 %s, %s, 128' % (s(sXoff), s(sXoff))], []]
        l[3] = l[3] + ['s_cmp_ge_u32 %s, 1280' % s(sXoff), 's_cselect_b32 %s, %s, %s' % (s(sXoff), '0x40000000' if clamp else '0', s(sXoff))]
        return l
    def w_wrap(): return [['s_cmp_ge_u32 %s, 7864320' % s(sWoff), 's_cselect_b32 %s, 0, %s' % (s(sWoff), s(sWoff))]]
    def w_issue(slot):
        return [['s_add_u32 m0, %s, %d' % (s(sW3k), WBASE + slot * TILE), 's_nop 0', dma(vWd, sWq, s(sWoff), 0, cfg.wq_pol)],
                [dma(vWd + 1, sWq, s(sWoff), 1024, cfg.wq_pol)],
                [dma(vWd + 2, sWq, s(sWoff), 2048, cfg.wq_pol), 's_add_u32 %s, %s, %d' % (s(sWoff), s(sWoff), 32 * 12288)]]
    A('s_cmp_eq_u32 %s, 0' % s(sG)); A('s_cbranch_scc1 L_p0')
    for t in flat(x_issue(0, 2, False) + w_issue(0) + w_issue(1) + w_wrap()): A(t)
    A('s_branch L_p1')
    A('L_p0:')
    if cfg.codepf:
        A('s_getpc_b64 %s' % s(70, 2))
        A('L_pc:')
        A('s_and_b32 %s, %s, 7' % (s(sT1), s(sB))); A('s_lshl_b32 %s, %s, 2' % (s(sT1), s(sT1)))
        A('s_add_u32 %s, %s, %s' % (s(sT1), s(sT1), s(sWv)))
        A('s_mul_i32 %s, %s, CODE_SHARE-0' % (s(sT1), s(sT1)))
        A('v_lshlrev_b32 %s, 7, %s' % (v(b), v(L)))
        A('v_min_u32 %s, CODE_SHARE-128, %s' % (v(b), v(b)))
        A('v_add_u32 %s, %s, %s' % (v(b), s(sT1), v(b)))
        A('v_min_u32 %s, CODE_LAST-0, %s' % (v(b), v(b)))
        A('global_load_dword %s, %s, %s' % (v(SB[0]), v(b), s(70, 2)))
    A('L_p1:')
    A('s_lshl_b32 %s, %s, 4' % (s(sT0), s(sB))); A('s_add_u32 %s, %s, %s' % (s(sT0), s(sT0), s(sHp)))
    A('s_mul_i32 %s, %s, 393216' % (s(sT1), s(sT0)))
    A('s_add_u32 %s, s6, %s' % (s(sK), s(sT1))); A('s_addc_u32 %s, s7, 0' % s(sK + 1))
    A('s_mov_b32 %s, 393216' % s(sK + 2)); A('s_mov_b32 %s, 0x20000' % s(sK + 3))
    A('s_add_u32 %s, s8, %s' % (s(sV), s(sT1))); A('s_addc_u32 %s, s9, 0' % s(sV + 1))
    A('s_mov_b32 %s, 393216' % s(sV + 2)); A('s_mov_b32 %s, 0x20000' % s(sV + 3))
    A('s_mul_i32 %s, %s, %d' % (s(sT1), s(sT0), cfg.pstride))
    A('s_add_u32 %s, s14, %s' % (s(sP), s(sT1))); A('s_addc_u32 %s, s15, 0' % s(sP + 1))
    A('s_mov_b32 %s, 163840' % s(sP + 2)); A('s_mov_b32 %s, 0x20000' % s(sP + 3))
    A('s_mov_b32 %s, s12' % s(sWo)); A('s_mov_b32 %s, s13' % s(sWo + 1))
    A('s_mov_b32 %s, 7864320' % s(sWo + 2)); A('s_mov_b32 %s, 0x20000' % s(sWo + 3))
    A('s_mul_i32 %s, %s, 491520' % (s(sO1), s(sHp)))
    if cfg.nrot:
        A('s_mul_i32 %s, %s, 5' % (s(sNr), s(sB))); A('s_lshr_b32 %s, %s, 3' % (s(sNr), s(sNr)))
    else: A('s_mov_b32 %s, 0' % s(sNr))
    A('s_mul_i32 %s, %s, 6144' % (s(sW6k), s(sWv)))
    A('s_min_u32 %s, %s, 1' % (s(sEx), s(sWv))); A('s_add_u32 %s, %s, %s' % (s(sEx), s(sEx), s(sWv)))
    A('s_cmp_eq_u32 %s, 3' % s(sWv)); A('s_cselect_b32 %s, 6, %s' % (s(sEx), s(sEx)))
    A('s_mul_i32 %s, %s, %d' % (s(sEx), s(sEx), TILE))
    A('s_lshl_b32 %s, %s, 11' % (s(sSt), s(sWv)))
    A('s_add_u32 %s, %s, 1024' % (s(sSt1), s(sSt)))
    A('s_cmp_eq_u32 %s, 3' % s(sWv)); A('s_cselect_b32 %s, 0x40000000, %s' % (s(sSt1), s(sSt1)))
    A('s_lshl_b32 %s, %s, 1' % (s(sT1), s(sWv)))
    for p in range(3):
        A('v_mul_u32_u24 %s, 384, %s' % (v(e), v(vKd + p)))
        A('v_subrev_u32 %s, %d, %s' % (v(e), 1024 * p, v(e)))
        A('v_bfe_u32 %s, %s, 1, 1' % (v(d), v(vKd + p)))
        A('v_or_b32 %s, %s, %s' % (v(d), s(sT1), v(d)))
        A('v_and_or_b32 %s, %s, 2, %s' % (v(c), v(vKd + p), s(sT2)))
        A('v_xor_b32 %s, %s, %s' % (v(d), v(vVd + p), v(d)))
        A('v_xor_b32 %s, %s, %s' % (v(c), v(vVd + p), v(c)))
        A('v_lshl_add_u32 %s, %s, 4, %s' % (v(vKd + p), v(d), v(e)))
        A('v_lshl_add_u32 %s, %s, 4, %s' % (v(vVd + p), v(c), v(e)))
    A('v_and_b32 %s, 15, %s' % (v(I16), v(L)))
    A('v_lshrrev_b32 %s, 2, %s' % (v(a), v(I16)))
    A('v_and_b32 %s, 3, %s' % (v(d), v(I16)))
    A('v_lshl_add_u32 %s, %s, 3, %s' % (v(b), v(a), v(d)))
    A('v_mul_u32_u24 %s, 384, %s' % (v(b), v(b)))
    A('v_lshrrev_b32 %s, 1, %s' % (v(c), v(I16)))
    A('v_xor_b32 %s, %s, %s' % (v(c), v(c), v(G)))
    A('v_lshl_add_u32 %s, %s, 4, %s' % (v(vKa), v(c), v(b)))
    A('v_lshlrev_b32 %s, 7, %s' % (v(b), v(I16)))
    A('v_add_u32 %s, %s, %s' % (v(b), s(sXm0), v(b)))
    A('v_lshl_add_u32 %s, %s, 4, %s' % (v(vXa), v(c), v(b)))
    A('v_xor_b32 %s, 64, %s' % (v(vXa + 1), v(vXa)))
    A('v_bfe_u32 %s, %s, 3, 2' % (v(F), v(L)))
    A('v_lshlrev_b32 %s, 5, %s' % (v(F), v(F)))
    A('v_lshl_add_u32 %s, %s, 3, %s' % (v(F), v(d), v(F)))
    A('v_lshl_add_u32 %s, %s, 3, %s' % (v(b), v(G), v(a)))
    A('v_mul_u32_u24 %s, 384, %s' % (v(b), v(b)))
    A('v_add_u32 %s, %s, %s' % (v(vVa), v(b), v(F)))
    A('v_add_u32 %s, %d, %s' % (v(vWa), WBASE, v(vVa)))
    for u in range(1, 4): A('v_xor_b32 %s, %d, %s' % (v(vWa + u), 32 * u, v(vWa)))
    A('v_lshl_add_u32 %s, %s, 2, %s' % (v(b), v(G), v(a)))
    A('v_lshl_add_u32 %s, %s, 7, %s' % (v(vOa), v(b), v(F)))
    A('s_mul_i32 %s, %s, %d' % (s(sT0), s(sWv), 48 * 1280))
    A('v_lshrrev_b32 %s, 3, %s' % (v(a), v(L)))
    A('v_mul_u32_u24 %s, 1280, %s' % (v(a), v(a)))
    A('v_and_b32 %s, 7, %s' % (v(b), v(L)))
    A('v_lshlrev_b32 %s, 1, %s' % (v(c), v(G)))
    A('v_xor_b32 %s, %s, %s' % (v(b), v(b), v(c)))
    A('v_lshlrev_b32 %s, 4, %s' % (v(b), v(b)))
    A('v_add3_u32 %s, %s, %s, %s' % (v(vOd), v(a), v(b), s(sT0)))
    A('v_lshlrev_b32 %s, 4, %s' % (v(vL16), v(L)))
    cc = math.log2(math.e) / math.sqrt(192.0)
    A('s_mov_b32 %s, 0x%08x' % (s(sC), f32bits(cc)))
    A('s_mov_b32 %s, 0x%08x' % (s(sTc), f32bits(cfg.thr)))
    for i in range(4): A('v_mov_b32 %s, 0x3f803f80' % v(vOne + i))
    A('s_mov_b32 %s, 0' % s(sFlag))
    A('s_mul_i32 %s, %s, %d' % (s(sCur), s(sG), (32 % NKV) * TILE))
    A('s_mov_b32 %s, 0' % s(sPrev))
    A('s_mov_b32 %s, 4' % s(sKoff)); A('s_mov_b32 %s, 2' % s(sVoff))
    if cfg.rot: A('s_add_u32 %s, %s, %s' % (s(sRot), s(sB), s(sHp)))
    else: A('s_mov_b32 %s, 0' % s(sRot))
    for i in list(range(ACC, ACC + 96)) + list(range(QF + 24, QF + 32)) + list(range(AF + 12, AF + 24)): A('v_mov_b32 %s, 0' % v(i))
    A('s_mov_b32 %s, 0' % s(sCnt))
    checks.append(('prologue', A.lines[m0:]))
    if cfg.light:
        A('s_cmp_eq_u32 %s, 3' % s(sWv)); A('s_cbranch_scc1 L_light')

    n1 = 79 - cfg.o0; rest1 = 240 - 5 * cfg.c2 - cfg.c3
    cum = {}
    for i in range(52, 96):
        if i <= cfg.o0: cum[i] = 0
        elif i <= 79: cum[i] = rest1 * (i - cfg.o0) // n1
        elif i <= 84: cum[i] = rest1 + cfg.c2 * (i - 79)
        else: cum[i] = 240 + 24 * (i - 85)
    avail = {52: [SS[0]], 54: [SS[1], SS[2]], 82: [SS[3]], 86: [0, 24576]}
    slot_of = {}; plan = {i: [] for i in range(52, 96)}; done_at = {}
    free = []; nrel = 0; nj = 0; nh = 0
    for i in range(52, 95):
        free += avail.get(i, [])
        while cum[i] >= 24 * (nrel + 1): free.append(slot_of[nrel]); nrel += 1
        for _ in range(1 if i < 79 else (2 if i < 85 else 4)):
            if nj >= 20: break
            if nh == 0:
                if not free: break
                slot_of[nj] = free.pop(0)
            plan[i].append((nj, nh)); nh += 1
            if nh == 2: done_at[nj] = i; nj += 1; nh = 0
    for i in range(cfg.o0, 95):
        j = (cum[i + 1] - 1) // 24
        if cum[i + 1] > cum[i]: assert done_at[j] <= i - 2, (i, j, done_at[j])
    if cfg.dbg == 2: print(cum, plan, slot_of)

    def body(NT, X):
        TT = range(NT)
        dupx = (NT == 2 and not cfg.light)
        def x_reads(slot):
            return [('ds_read_b128 %s, %s%s' % (v(QF + 16 * slot + 8 * ss + 4 * t, 4), v(vXa + ss), off(slot * XSLOT + 2048 * t)), 'x')
                    for ss in range(2) for t in TT]
        def q_frags(r):
            fr = []
            for dt in range(12):
                buf = AF + 4 * (dt % 6)
                rds = ['ds_read_b64_tr_b16 %s, %s%s' % (v(buf + 2 * vv, 2), v(vWa + (dt & 3)),
                        off(r * TILE + 4 * vv * 384 + 128 * (dt >> 2))) for vv in range(2)]
                fr.append((rds, [mfma(ACC + 48 * t + 4 * dt, buf, QF + 16 * (r >> 1) + 8 * (r & 1) + 4 * t) for t in TT]))
            return fr
        qlag = [(None, f[1]) for f in q_frags(3)[-LAG:]]
        nx = 2 * NT
        A('s_cmp_eq_u32 %s, 0' % s(sG)); A('s_cbranch_scc0 L_g2a' + X)
        stamp(1)
        wb(None, False)
        for t in x_reads(0): A(t[0])
        A('L_qloop%s:' % X)
        m1 = A.mark()
        prev = qlag
        for r in range(4):
            wb()
            fill = {}
            if r % 2 == 1:
                xr = x_reads(((r + 1) >> 1) & 1)
                fill = {5 + i: [x] for i, x in enumerate(xr)}
            prev = untag(pipe_step(A, prev, q_frags(r), fill))
        A('s_add_u32 %s, %s, 1' % (s(sCnt), s(sCnt))); A('s_cmp_lt_u32 %s, 5' % s(sCnt)); A('s_cbranch_scc1 L_qloop' + X)
        qbody = A.lines[m1:]
        checks.append(('qloop', qbody + qbody))
        A('s_waitcnt vmcnt(0) lgkmcnt(0)')
        A('s_branch L_qend' + X)
        A('L_g2a%s:' % X)
        def kv_static(q):
            if q == 64: isv, tile = True, 31
            elif q % 2 == 0: isv, tile = False, q // 2
            else: isv, tile = True, (q - 3) // 2
            srd, vd = (sV, vVd) if isv else (sK, vKd)
            return [['s_add_u32 %s, %s, %d' % (s(sHi), s(sRot), tile & 15), 's_and_b32 %s, %s, 15' % (s(sHi), s(sHi)),
                     's_or_b32 %s, %s, %d' % (s(sHi), s(sHi), tile & 16),
                     's_add_u32 m0, %s, %d' % (s(sW3k), (q % NKV) * TILE), 's_mul_i32 %s, %s, %d' % (s(sHi), s(sHi), TILE),
                     dma(vd, srd, s(sHi), 0, cfg.kv_pol)], [dma(vd + 1, srd, s(sHi), 1024, cfg.kv_pol)], [dma(vd + 2, srd, s(sHi), 2048, cfg.kv_pol)]]
        def kv_dyn(isv):
            srd, vd, soff = (sV, vVd, sVoff) if isv else (sK, vKd, sKoff)
            return [['s_add_u32 %s, %s, %s' % (s(sHi), s(sRot), s(soff)), 's_and_b32 %s, %s, 15' % (s(sHi), s(sHi)),
                     's_and_b32 %s, %s, 16' % (s(sT2), s(soff)), 's_or_b32 %s, %s, %s' % (s(sHi), s(sHi), s(sT2)),
                     's_add_u32 m0, %s, %s' % (s(sW3k), s(sPrev)), 's_mul_i32 %s, %s, %d' % (s(sHi), s(sHi), TILE),
                     dma(vd, srd, s(sHi), 0, cfg.kv_pol)],
                    ['s_add_u32 %s, %s, %d' % (s(sPrev), s(sPrev), TILE),
                     's_cmp_ge_u32 %s, %d' % (s(sPrev), NKV * TILE),
                     's_cselect_b32 %s, 0, %s' % (s(sPrev), s(sPrev)),
                     dma(vd + 1, srd, s(sHi), 1024, cfg.kv_pol)],
                    [dma(vd + 2, srd, s(sHi), 2048, cfg.kv_pol), 's_add_u32 %s, %s, 1' % (s(soff), s(soff))]]
        m1 = A.mark()
        vm = Vm([('x', 0)] * 4 + [('w', 0)] * 3 + [('w', 1)] * 3)
        wb(vm.need(('x', 0)), False)
        for t in flat(x_issue(1, NT, False)): A(t)
        vm.add(('x', 1), nx)
        kvpos = [0, 2, 3, 4, 5, 6]
        for st in range(21):
            ws = [vm.need(('x', (st + 1) // 2)) if st % 2 == 1 else None, vm.need(('w', st)) if st < 20 else None,
                  vm.need(('kv', 0)) if st == 20 else None]
            ws = [w for w in ws if w is not None]
            wb(ws[-1] if ws else None, False)
            if st == 0:
                for t in flat(w_issue(2)): A(t)
                vm.add(('w', 2), 3)
            if cfg.krot2:
                if st == 16: A('s_mov_b32 %s, %s' % (s(sXend), s(sXoff)))
                if st == 17:
                    A('s_mov_b32 %s, %s' % (s(sWend), s(sWoff)))
                    A('s_add_u32 %s, %s, 384' % (s(sWq), s(sWq))); A('s_addc_u32 %s, %s, 0' % (s(sWq + 1), s(sWq + 1)))
                    A('s_sub_u32 %s, %s, 384' % (s(sWq + 2), s(sWq + 2)))
            else:
                if st == 16: A('s_mov_b32 %s, 0' % s(sXoff))
                if st == 17: A('s_mov_b32 %s, 384' % s(sWoff))
            if st % 2 == 0 and st < 20:
                for t in flat(x_issue((st // 2) & 1, NT, False)): A(t)
                vm.add(('x', st // 2 + 2), nx)
            if st < 20:
                for t in flat(w_issue((st + 3) & 3) + (w_wrap() if st % 2 == 0 else [])): A(t)
                vm.add(('w', st + 3), 3)
            for i in range(6):
                if int(cfg.kv_steps.split(',')[i]) == st:
                    for t in flat(kv_static(kvpos[i])): A(t)
                    vm.add(('kv', kvpos[i]), 3)
        stamp(1)
        for t in x_reads(0): A(t[0])
        first_wait = []
        for cch in range(4):
            ws = [vm.need(('w', 22)), vm.need(('kv', cch + 1))]
            ws = [w for w in ws if w is not None]
            first_wait.append(ws[-1] if ws else None)
            vm.add('loop', 3 + (nx if cch == 1 else 3))
        checks.append(('g2 pro', A.lines[m1:]))
        if cfg.exp & 1: A('s_mov_b32 %s, 0x40000000' % s(sWoff))
        if cfg.exp & 3: A('s_mov_b32 %s, 0x40000000' % s(sXoff))
        A('L_q2loop%s:' % X)
        m1 = A.mark()
        allf = q_frags(0) + q_frags(1) + q_frags(2) + q_frags(3)
        prev = qlag
        for cch in range(6):
            if cch < 4 and first_wait[cch] is not None and first_wait[cch] < 15 + nx:
                A('s_cmp_eq_u32 %s, 0' % s(sCnt)); A('s_cbranch_scc0 L_fw%d%s' % (cch, X))
                A('s_waitcnt vmcnt(%d)' % first_wait[cch])
                A('L_fw%d%s:' % (cch, X))
            wb(min(cfg.cap, 15 + nx))
            kd = kv_dyn(cch % 2 == 0)
            fill = {0: kd[0], 1: kd[1], 2: kd[2]}
            ii = x_issue(0 if cch == 1 else 1, NT) if cch in (1, 4) else w_issue({0: 3, 2: 0, 3: 1, 5: 2}[cch])
            if cfg.krot2:
                if cch in (1, 4):
                    ii[3] = ii[3][:-2] + ['s_cmp_eq_u32 %s, 1280' % s(sXoff), 's_cselect_b32 %s, 0, %s' % (s(sXoff), s(sXoff)),
                                          's_cmp_eq_u32 %s, %s' % (s(sXoff), s(sXend)), 's_cselect_b32 %s, 0x40000000, %s' % (s(sXoff), s(sXoff))]
                elif cch in (0, 3):
                    ii[2] = ii[2] + ['s_cmp_eq_u32 %s, 7864320' % s(sWoff), 's_cselect_b32 %s, 0, %s' % (s(sWoff), s(sWoff)),
                                     's_cmp_eq_u32 %s, %s' % (s(sWoff), s(sWend)), 's_cselect_b32 %s, 0x40000000, %s' % (s(sWoff), s(sWoff))]
            fill = merge(fill, {3 + i: l for i, l in enumerate(ii)})
            if cch in (2, 5):
                xr = x_reads(1 if cch == 2 else 0)
                fill = merge(fill, {3 + i: [x] for i, x in enumerate(xr)})
            prev = untag(pipe_step(A, prev, allf[8 * cch:8 * cch + 8], fill))
        A('s_add_u32 %s, %s, 1' % (s(sCnt), s(sCnt))); A('s_cmp_lt_u32 %s, 5' % s(sCnt)); A('s_cbranch_scc1 L_q2loop' + X)
        body2 = A.lines[m1:]
        checks.append(('q2loop', body2 + body2))
        wb(15 + nx)
        for t in flat(kv_dyn(True)): A(t)
        A('L_qend%s:' % X)
        m2 = A.mark()
        addr_k = ['v_add_u32 %s, %s, %s' % (v(vKr), s(sCur), v(vKa)), 'v_xor_b32 %s, 64, %s' % (v(vKr + 1), v(vKr))]
        addr_v = ['v_add_u32 %s, %s, %s' % (v(vVr), s(sCur), v(vVa))] + \
                 ['v_xor_b32 %s, %d, %s' % (v(vVr + u), 32 * u, v(vVr)) for u in range(1, 4)]
        def conv(ss):
            l = ['v_mul_f32 %s, %s, %s' % (v(ACC + 48 * t + 8 * ss + i), s(sC), v(ACC + 48 * t + 8 * ss + i)) for t in TT for i in range(8)]
            l += ['v_cvt_pk_bf16_f32 %s, %s, %s' % (v(QF + 24 * t + 4 * ss + k), v(ACC + 48 * t + 8 * ss + 2 * k),
                  v(ACC + 48 * t + 8 * ss + 2 * k + 1)) for t in TT for k in range(4)]
            for op in ('v_permlane32_swap_b32', 'v_permlane16_swap_b32'):
                if NT == 1: l.append('s_nop 1')
                l += ['%s %s, %s' % (op, v(QF + 24 * t + 4 * ss + k), v(QF + 24 * t + 4 * ss + 2 + k)) for t in TT for k in range(2)]
            return l
        pre = addr_k + ['v_mov_b32 %s, 0' % v(P + i) for i in range(4 * NT)] + flat([conv(ss) for ss in range(cfg.cpre)])
        k = 0
        for _, ms in qlag:
            for m in ms:
                A(m)
                for t in pre[k:k + 2]: A(t)
                k += 2
        for t in pre[k:]: A(t)
        if cfg.prio: A('s_setprio %d' % cfg.prio)
        def k_frags(Sb, first=False):
            fr = []
            for ss in range(6):
                for ee in range(2):
                    j = 2 * ss + ee; buf = AF + 4 * (j % 6)
                    fr.append((['ds_read_b128 %s, %s%s' % (v(buf, 4), v(vKr + (ss & 1)), off(128 * (ss >> 1) + 1536 * ee))],
                               [mfma(Sb + 8 * t + 4 * ee, buf, QF + 24 * t + 4 * ss, ss == 0 and first, vNM + 4 * t if ss == 0 else None) for t in TT]))
            return fr
        def v_frags():
            fr = []
            for dt in range(12):
                buf = AF + 4 * (dt % 6)
                rds = ['ds_read_b64_tr_b16 %s, %s%s' % (v(buf + 2 * vv, 2), v(vVr + (dt & 3)), off(1536 * vv + 128 * (dt >> 2))) for vv in range(2)]
                fr.append((rds, [mfma(ACC + 48 * t + 4 * dt, buf, P + 4 * t) for t in TT]))
            return fr
        ring_adv = ['s_add_u32 %s, %s, %d' % (s(sCur), s(sCur), TILE),
                    's_cmp_ge_u32 %s, %d' % (s(sCur), NKV * TILE),
                    's_cselect_b32 %s, 0, %s' % (s(sCur), s(sCur))]
        rare_tags = []; resc_tags = []
        def sm_max(Sb, tag):
            l = []
            for k in range(4):
                for t in TT:
                    tt = v(vT0 + t); bs = Sb + 8 * t
                    if k == 0: l.append('v_max3_f32 %s, %s, %s, %s' % (tt, v(bs), v(bs + 1), v(bs + 2)))
                    elif k < 3: l.append('v_max3_f32 %s, %s, %s, %s' % (tt, tt, v(bs + 1 + 2 * k), v(bs + 2 + 2 * k)))
                    else: l.append('v_max_f32 %s, %s, %s' % (tt, tt, v(bs + 7)))
            if tag is None: return l
            if NT == 2: l2 = ['v_max_f32 %s, %s, %s' % (v(vT2), v(vT0), v(vT1)), 'v_cmp_lt_f32 vcc, %s, %s' % (s(sTc), v(vT2))]
            else: l2 = ['v_cmp_lt_f32 vcc, %s, %s' % (s(sTc), v(vT0))]
            l2 += ['s_cbranch_vccnz L_rare_%s%s' % (tag, X), 'L_ret_%s%s:' % (tag, X)]
            rare_tags.append((tag, Sb))
            return l, l2
        def xlane(op, r):
            l = []
            for sw in ('v_permlane32_swap_b32', 'v_permlane16_swap_b32'):
                l += ['v_mov_b32 %s, %s' % (v(vT2), v(r)), 's_nop 1', '%s %s, %s' % (sw, v(r), v(vT2)),
                      '%s %s, %s, %s' % (op, v(r), v(r), v(vT2))]
            return l
        lsum = [mfma(vLa + 4 * t, vOne, P + 4 * t) for t in TT]
        def cvt(Sb, k): return 'v_cvt_pk_bf16_f32 %s, %s, %s' % (v(P + k), v(Sb + 2 * k), v(Sb + 2 * k + 1))
        VG = [6, 7, 8, 9, 10, 11]; KG = list(range(0, 11))
        def sm_fill(Sb):
            it = []
            it += [('v_exp_f32 %s, %s' % (v(Sb + r), v(Sb + r)), 2) for r in range(8 * NT)]
            it += [(cvt(Sb, k), 1) for k in range(4 * NT)]
            caps = [('v', g, cfg.vw) for g in VG] + [('k', g, cfg.kw) for g in KG]
            tot = sum(c for _, c in it); ctot = sum(c for _, _, c in caps)
            vf = {g: [] for g in VG}; kf = {g: [] for g in KG}
            acc = 0.0; gi = 0; lim = caps[0][2] * tot / ctot
            for tx, c in it:
                while acc + c / 2.0 > lim and gi < len(caps) - 1:
                    gi += 1; lim += caps[gi][2] * tot / ctot
                (vf if caps[gi][0] == 'v' else kf)[caps[gi][1]].append(tx); acc += c
                if tx.startswith('v_cvt'): assert caps[gi][0] == 'k' and caps[gi][1] >= 2
            return vf, kf
        def resc(tag):
            resc_tags.append(tag)
            return ['s_cmp_lg_u32 %s, 0' % s(sFlag), 's_cbranch_scc1 L_resc_%s%s' % (tag, X), 'L_rret_%s%s:' % (tag, X)]
        wb(11 + nx, False)
        stamp(3)
        rest_c = flat([conv(ss) for ss in range(cfg.cpre, 6)])
        fine = {}
        nsl = 9 * NT
        for i in range(nsl):
            fine[(i // NT, i % NT)] = rest_c[len(rest_c) * i // nsl:len(rest_c) * (i + 1) // nsl]
        prev = untag(pipe_step(A, [], k_frags(SB[0], True), {0: ring_adv}, fine=fine))
        wb(8 + nx)
        for k, (_, ms) in enumerate(prev):
            for m in ms: A(m)
        zs = [mfma(ACC + 4 * i, vOne, P, True) for i in range(12 * NT)] + [mfma(vLa + 4 * t, vOne, P, True) for t in TT]
        vs = sm_max(SB[0], None)
        for t in TT:
            vs += xlane('v_max_f32', vT0 + t)
        for t in TT:
            vs += ['v_sub_f32 %s, %s, %s' % (v(SB[0] + 8 * t + i), v(SB[0] + 8 * t + i), v(vT0 + t)) for i in range(8)]
            vs += ['v_sub_f32 %s, 0, %s' % (v(vNM + 4 * t + i), v(vT0 + t)) for i in range(4)]
        vf0, kf0 = sm_fill(SB[0]); vf1, kf1 = sm_fill(SB[1])
        for g in VG: vs += vf0[g]
        for t in zs[:3] + ring_adv + addr_k: A(t)
        zs = zs[3:]
        per = (len(vs) + len(zs) - 1) // len(zs)
        for i, z in enumerate(zs):
            A(z)
            for t in vs[per * i:per * i + per]: A(t)
        A('s_mov_b32 %s, 0' % s(sFlag))
        A('s_mov_b32 %s, 0' % s(sCnt))
        A('s_waitcnt vmcnt(0)')
        checks.append(('q->attn', qbody[-40:] + A.lines[m2:]))
        pre_loop = A.lines[-40:]
        A('L_aloop%s:' % X)
        m3 = A.mark()
        pv_lag = [(None, f[1]) for f in v_frags()[-LAG:]]
        for par in range(2):
            kf = (kf0, kf1)[par]; vf = (vf1, vf0)[par]; Sn = SB[par ^ 1]
            wb()
            fill = merge(kf, {2: resc('l%d' % par), 10: ring_adv, 11: addr_v})
            prev = untag(pipe_step(A, pv_lag, k_frags(Sn), fill))
            wb()
            mx, mx2 = sm_max(Sn, 'l%d' % par)
            h = len(mx) // 2
            fill = merge({0: ring_adv, 2: addr_k + lsum, 4: mx[:h], 5: mx[h:] + mx2}, vf)
            if par == 0: fill = merge(fill, {11: ['s_add_u32 %s, %s, 1' % (s(sCnt), s(sCnt)), 's_cmp_eq_u32 %s, 8' % s(sCnt)]})
            prev = untag(pipe_step(A, prev, v_frags(), fill))
            if par == 0:
                A('s_cbranch_scc1 L_aexit' + X); ahalf = A.lines[m3:]
        A('s_branch L_aloop' + X)
        abody = A.lines[m3:]
        checks.append(('aloop', pre_loop + abody + abody))
        abody = ahalf
        A('L_aexit%s:' % X)
        stamp(4)
        def st_slot(j): return slot_of[j]
        def rotp(p, dst):
            return ['s_add_u32 %s, %s, %d' % (s(dst), s(sNr), p), 's_sub_u32 %s, %s, 10' % (s(sM2), s(dst)),
                    's_cselect_b32 %s, %s, %s' % (s(dst), s(dst), s(sM2))]
        def st_issue(j, part):
            p = (j + 1) % 10 if j < 10 else j - 10
            o = (0 if j < 10 else 245760) + part * 30720
            l = [rotp(p, sT2) + ['s_lshl_b32 %s, %s, 7' % (s(sT2), s(sT2)), 's_add_u32 %s, %s, %s' % (s(sT2), s(sT2), s(sO1)),
                                 's_add_u32 m0, %s, %d' % (s(sW6k), st_slot(j) + part * 3072)], [], []]
            for i in range(3):
                l[i] += ['s_add_u32 %s, %s, %d' % (s(sT0 + i), s(sT2), o + i * 9216), dma(vOd, sWo, s(sT0 + i), 1024 * i, cfg.wo_pol)]
            return l
        def planned(i, vm):
            l = []
            for j, hh in plan[i]:
                l += st_issue(j, hh); vm.add(('st', j), 3)
            return l
        def attn_end(g, vm):
            Sb = SB[1]
            rest = [t for gg in KG for t in kf1[gg]]
            rcp = ['v_rcp_f32 %s, %s' % (v(vF + t), v(vLa + 4 * t)) for t in TT]
            def fin(ss):
                l1 = []; l2 = []
                for t in TT:
                    bs = ACC + 48 * t + 8 * ss; dst = QF + 24 * t + 4 * ss
                    l1 += flat([mul2(bs + 2 * k, t) for k in range(4)])
                    l2 += ['v_cvt_pk_bf16_f32 %s, %s, %s' % (v(dst + k), v(bs + 2 * k), v(bs + 2 * k + 1)) for k in range(4)]
                    if g == 1: l2.append(('ds_write_b128 %s, %s%s' % (v(vOr), v(dst, 4), off(1024 * (6 * t + ss))), 'w'))
                return l1, l2
            if g == 0:
                wb()
                for k, (_, ms) in enumerate(pv_lag):
                    for m in ms: A(m)
                    if k < 2:
                        for t in rest[2 * k:2 * k + 2]: A(t)
                vm.add(('kv', 38), 3)
                for t in flat(kv_static(38)) + rest[4:] + resc('e0') + ring_adv + lsum + addr_v + flat(planned(52, vm)) + rcp: A(t)
                wb(None, False)
                vm.add(('kv', 39), 3)
                kk = kv_static(39); ii = planned(53, vm)
                fill = {0: kk[0], 1: kk[1], 2: kk[2], 3: ii[0], 4: ii[1], 5: ii[2]}
                prev = []; o = 0
            else:
                for t in addr_v + ['v_add_u32 %s, %s, %s' % (v(vOr), s(sEx), v(vL16))]: A(t)
                wb()
                fill = {0: rest[0:2], 1: rest[2:4], 2: rest[4:] + resc('e1') + ['s_nop 0'] + lsum, 6: rcp}
                prev = pv_lag; o = 3
            if g == 0:
                prev = untag(pipe_step(A, prev, v_frags(), fill))
                if cfg.prio: A('s_setprio 0')
                wb()
                for _, ms in prev:
                    for m in ms: A(m)
                vm.add(('kv', 40), 3)
                ld = kv_static(40) + planned(54, vm)
                for ss in range(6):
                    for t in (ld[ss] if ss < len(ld) else []) + flat(fin(ss)): emit(A, t)
                assert len(ld) <= 6
                return
            for ss in range(4):
                l1, l2 = fin(ss)
                fill = merge(fill, {o + 2 * ss + 4: l1, o + 2 * ss + 5: l2})
            pipe_step(A, prev, v_frags(), fill, lag=0)
            l1, l2 = fin(4); l3, l4 = fin(5)
            if NT == 1: A('s_nop 3')
            for t in l1 + l2 + l3 + l4: emit(A, t)
            if cfg.prio: A('s_setprio 0')
        A('s_cmp_lg_u32 %s, 0' % s(sG)); A('s_cbranch_scc1 L_g2tail' + X)
        m5 = A.mark()
        vm = Vm()
        if cfg.exp & 4: A('s_mov_b32 %s, 0x40000000' % s(sO1))
        attn_end(0, vm)
        def o_frags(u, acc, zero, extra=None):
            fr = []
            for ee in range(2):
                for ss in range(6):
                    buf = AF + 4 * ss
                    rds = ['ds_read_b64_tr_b16 %s, %s%s' % (v(buf + 2 * vv, 2), v(vOr), off(4096 * ss + 2048 * vv)) for vv in range(2)]
                    if extra and ee == 0: rds = extra(ss) + rds
                    if ss == 0:
                        if ee == 1: ad = 'v_xor_b32 %s, 32, %s' % (v(vOr), v(vOr))
                        elif u % 2 == 0: ad = 'v_add_u32 %s, %d, %s' % (v(vOr), st_slot(u // 2), v(vOa))
                        else: ad = 'v_xor_b32 %s, 96, %s' % (v(vOr), v(vOr))
                        rds = [ad] + rds
                    fr.append((rds, [mfma(acc + 8 * t + 4 * ee, buf, QF + 24 * t + 4 * ss, ss == 0 and zero) for t in TT]))
            return fr
        def pack_to(dst, acc):
            return ['v_cvt_pk_bf16_f32 %s, %s, %s' % (v(dst + k), v(acc + 2 * k), v(acc + 2 * k + 1)) for k in range(4 * NT)]
        allo = []
        for n in range(20): allo += o_frags(n, TACC[n & 1], True)
        gfill = {}
        for n in range(18):
            pk = pack_to(stash(n + 2), TACC[n & 1])
            gfill[12 * n + 11 + 4] = pk[0:4]; gfill[12 * n + 11 + 5] = pk[4:8]
        prev = []
        for st in range(55, 85):
            n = cum[st + 1] - cum[st]
            ws = [vm.need(('kv', st - 20)), vm.need(('st', (cum[st + 1] - 1) // 24)) if n else None]
            ws = [w for w in ws if w is not None]
            if cfg.cap < 63 and st < 80: ws.append(min(ws + [cfg.cap]))
            wb(ws[-1] if ws else None, st > cfg.o0)
            iss = []
            if st - 14 <= 64:
                iss += kv_static(st - 14); vm.add(('kv', st - 14), 3)
            iss += planned(st, vm)
            if cfg.warm_step <= st < cfg.warm_step + 4:
                kw = st - cfg.warm_step
                wl = []
                if kw == 0:
                    wl += ['s_lshl_b32 %s, %s, 2' % (s(sCnt), s(sB)), 's_add_u32 %s, %s, %s' % (s(sCnt), s(sCnt), s(sWv)),
                           's_mul_i32 %s, %s, %d' % (s(sCnt), s(sCnt), 3 * 1280), 's_add_u32 %s, %s, %s' % (s(sCnt), s(sCnt), s(sO1))]
                wl += ['s_lshl_b32 %s, %s, 10' % (s(sT2), s(sWv)), 's_add_u32 m0, %s, 159744' % s(sT2),
                       's_add_u32 %s, %s, %d' % (s(sT2), s(sCnt), 245760 + min(1024 * kw, 2816)),
                       dma(vL16, sWo, s(sT2), 0, cfg.wo_pol)]
                iss = iss + [wl]; vm.add('warm', 1)
            if n:
                lag = 0 if cum[st + 1] == 240 else LAG
                first = cum[st] - len(prev)
                ng = cum[st + 1] - lag - first
                fill = {}
                for i, l in enumerate(iss): fill = merge(fill, {min(i, ng - 1): l})
                for gi in range(first, first + ng):
                    if gi in gfill: fill = merge(fill, {gi - first: gfill[gi]})
                prev = untag(pipe_step(A, prev, allo[cum[st]:cum[st + 1]], fill, lag=lag))
            else:
                for t in flat(iss): A(t)
        dead = set()
        for ins in A.lines[m5:]:
            if ins.is_dma: assert not (ins.r & dead), ins.text
            dead |= ins.w & {'v%d' % i for i in range(vKd, vKd + 6)}
        A('v_add_u32 %s, %s, %s' % (v(vOd), s(sEx), v(vL16)))
        wb(vm.need(('st', 10)))
        stamp(7)
        prev = []
        def outq(n, t):
            return TACC[n & 1] + 8 * t if n in (0, 19) else stash(n + 1) + 4 * t
        def store(n, t):
            l = []
            if n % 2 == 0 and (t == 0) != (n == 0 and NT == 2):
                l = rotp(n // 2, sT1) + ['s_lshl_b32 %s, %s, 14' % (s(sT1), s(sT1))]
            return l + ['s_add_u32 %s, %s, %s' % (s(sT0), s(sSt if t == 0 else sSt1), s(sT1))] + \
                   (['s_add_u32 %s, %s, 8192' % (s(sT0), s(sT0))] if n % 2 else []) + \
                   ['buffer_store_dwordx4 %s, %s, %s, %s offen%s' % (v(outq(n, t), 4), v(vL16), s(sP, 4), s(sT0), cfg.st_pol)]
        def hcvt(H):
            n, ee = H // 2, H % 2
            return ['v_cvt_pk_bf16_f32 %s, %s, %s' % (v(outq(n, t) + 2 * ee + k), v(TACC[n & 1] + 8 * t + 4 * ee + 2 * k),
                    v(TACC[n & 1] + 8 * t + 4 * ee + 2 * k + 1)) for t in TT for k in range(2)]
        def hunp(H):
            n, ee = H // 2, H % 2; l = []
            for t in TT:
                for k in range(2):
                    d = TACC[n & 1] + 8 * t + 4 * ee + 2 * k; sr = stash(n) + 4 * t + 2 * ee + k
                    l += ['v_lshlrev_b32 %s, 16, %s' % (v(d), v(sr)), 'v_and_b32 %s, 0xffff0000, %s' % (v(d + 1), v(sr))]
            return l
        slot = {}
        SPH = 6 * NT
        def put_items(H, first, items):
            for i, x in enumerate(items): slot.setdefault(SPH * H + first + i, []).append(x)
        stores_at = {}
        for H in range(1, 40):
            if 4 <= H + 2 < 40 and H != 2: put_items(H, 0, hunp(H + 2))
            put_items(H, 4 * NT, hcvt(H - 1))
            if H % 2 == 1 and H >= 3:
                n = (H - 3) // 2
                for t in TT:
                    ms = SPH * H + (0 if n == 0 else 1 + 3 * NT * t)
                    slot.setdefault(ms, [])[:0] = store(n, t); stores_at.setdefault(ms // NT, 0); stores_at[ms // NT] += 1
        put_items(3, 1, hunp(4))
        allt = []
        extra = lambda ss: ['ds_read_b128 %s, %s%s' % (v(QF + 24 * t + 4 * ss, 4), v(vOd), off(1024 * (6 * t + ss))) for t in TT]
        for u in range(20): allt += o_frags(20 + u, TACC[u & 1], False, extra if u == 0 else None)
        for j in range(10):
            if j: wb(vm.need(('st', 10 + j)))
            lag = LAG if j < 9 else 0
            first = 24 * j - len(prev)
            fine = {}
            for f in range(first, 24 * j + 24 - lag):
                for hh in TT:
                    if NT * f + hh in slot: fine[(f - first, hh)] = slot[NT * f + hh]
                vm.add('store', stores_at.get(f, 0))
            prev = untag(pipe_step(A, prev, allt[24 * j:24 * j + 24], {}, lag=lag, fine=fine, wgrp=cfg.tw))
        A('s_nop 7')
        for t in hcvt(39): A(t)
        for t in TT:
            for x in store(19, t): A(x)
        checks.append(('g1 oproj', abody[-40:] + A.lines[m5:]))
        A('s_branch L_fin')
        A('L_g2tail%s:' % X)
        m6 = A.mark()
        vm = Vm()
        attn_end(1, vm)
        wb()
        stamp(7)
        for i in range(85, 94):
            for t in flat(planned(i, vm)): A(t)
            wb(vm.need(('st', i - 74)), False)
        checks.append(('g2 tail', abody[-40:] + A.lines[m6:]))
        A('s_branch L_fin')
        tr = A.trace; A.trace = False
        for tag, Sb in rare_tags:
            m8 = A.mark()
            A('L_rare_%s%s:' % (tag, X))
            for t in TT:
                for x in xlane('v_max_f32', vT0 + t): A(x)
                A('v_max_f32 %s, 0, %s' % (v(vT0 + t), v(vT0 + t)))
                if cfg.dbgrare == 1: A('v_mov_b32 %s, 0' % v(vT0 + t))
                A('v_exp_f32 %s, -%s' % (v(vF + t), v(vT0 + t)))
                for i in range(4): A('v_sub_f32 %s, %s, %s' % (v(vNM + 4 * t + i), v(vNM + 4 * t + i), v(vT0 + t)))
                for i in range(8): A('v_sub_f32 %s, %s, %s' % (v(Sb + 8 * t + i), v(Sb + 8 * t + i), v(vT0 + t)))
            A('s_mov_b32 %s, 1' % s(sFlag))
            A('s_branch L_ret_%s%s' % (tag, X))
            checks.append(('rare', A.lines[m8:]))
        for tag in resc_tags:
            A('L_resc_%s%s:' % (tag, X))
            A('s_nop 15')
            for i in range(48 * NT): A('v_mul_f32 %s, %s, %s' % (v(ACC + i), v(ACC + i), v(vF + i // 48)))
            for i in range(4 * NT): A('v_mul_f32 %s, %s, %s' % (v(vLa + i), v(vLa + i), v(vF + i // 4)))
            A('s_mov_b32 %s, 0' % s(sFlag))
            A('s_nop 1')
            A('s_branch L_rret_%s%s' % (tag, X))
        A.trace = tr

    body(2, '')
    if cfg.light:
        A('L_light:')
        body(1, '_L')
    A.trace = False
    A('L_fin:')
    if cfg.stamp:
        A('s_waitcnt vmcnt(0)')
        stamp(10); stamp(12, True)
        A('s_mov_b32 %s, s14' % s(sP)); A('s_mov_b32 %s, s15' % s(sP + 1)); A('s_mov_b32 %s, 402653184' % s(sP + 2))
        A('s_lshl_b32 %s, s2, 3' % s(sT0)); A('s_add_u32 %s, %s, %s' % (s(sT0), s(sT0), s(sW8)))
        A('s_lshl_b32 %s, %s, 7' % (s(sT0), s(sT0))); A('s_add_u32 %s, %s, %d' % (s(sT0), s(sT0), 64 << 20))
        if cfg.stamp in (3, 6):
            A('s_lshl_b32 %s, s2, 3' % s(sT1)); A('s_add_u32 %s, %s, %s' % (s(sT1), s(sT1), s(sW8)))
            A('s_lshl_b32 %s, %s, 11' % (s(sT1), s(sT1))); A('s_add_u32 %s, %s, %d' % (s(sT1), s(sT1), 65 << 20))
            A('v_lshrrev_b32 v1, 2, %s' % v(vL16))
            for i in range(4):
                A('buffer_store_dword v%d, v1, %s, %s offen offset:%d' % (252 + i, s(sP, 4), s(sT1), 256 * i))
        A('v_mov_b32 v1, 0')
        A('s_mov_b64 exec, 1')
        for i in range(26):
            A('v_mov_b32 v0, %s' % s(76 + i))
            A('buffer_store_dword v0, v1, %s, %s offen offset:%d' % (s(sP, 4), s(sT0), 4 * i))
    A('L_end:')
    A('s_endpgm')
    A('.globl mha_k2_kernel'); A('.p2align 8'); A('.type mha_k2_kernel,@function'); A('mha_k2_kernel:')
    m9 = A.mark()
    A('s_cmp_ge_u32 s2, 256'); A('s_cbranch_scc1 L_end2')
    A('s_load_dwordx2 s[4:5], s[0:1], 40')
    A('s_load_dwordx2 s[8:9], s[0:1], 56')
    if cfg.dbg or cfg.probe >= 0: A('s_memrealtime s[24:25]')
    A('v_readfirstlane_b32 s20, v0')
    A('v_and_b32 v2, 63, v0')
    A('s_lshr_b32 s20, s20, 6')
    A('s_lshr_b32 s13, s2, 4')
    A('s_and_b32 s14, s2, 15'); A('s_mul_i32 s14, s14, 5'); A('s_add_u32 s14, s14, s20')
    A('s_and_b32 s21, s14, 3')
    A('s_lshr_b32 s22, s14, 2')
    A('v_lshlrev_b32 v3, 4, v2')
    A('v_and_b32 v4, 15, v2')
    A('v_mul_u32_u24 v5, 1280, v4')
    A('v_lshrrev_b32 v6, 4, v2')
    A('v_lshl_add_u32 v5, v6, 4, v5')
    A('s_mul_i32 s15, s13, %d' % (16 * cfg.pstride))
    A('s_lshl_b32 s16, s14, 11'); A('s_add_u32 s15, s15, s16')
    A('s_mul_i32 s17, s13, 143360'); A('s_lshl_b32 s16, s22, 6'); A('s_add_u32 s17, s17, s16')
    A('s_mul_i32 s16, s21, %d' % (32 * 1280)); A('s_add_u32 s17, s17, s16')
    A('s_add_u32 s18, s17, %d' % (16 * 1280))
    A('s_cmp_eq_u32 s21, 3')
    A('s_cselect_b32 s18, 0x40000000, s18')
    A('s_cselect_b32 s19, 0x40000000, 0')
    A('v_add_u32 v7, s19, v3')
    A('s_mov_b32 s6, 2293760'); A('s_mov_b32 s7, 0x20000')
    A('s_mov_b32 s10, %d' % (256 * cfg.pstride)); A('s_mov_b32 s11, 0x20000')
    A('s_waitcnt lgkmcnt(0)')
    for p in range(16):
        A('buffer_load_dwordx4 %s, v3, s[8:11], s15 offen%s' % (v(32 + 8 * p, 4), cfg.r_pol))
        A('buffer_load_dwordx4 %s, v7, s[8:11], s15 offen offset:1024%s' % (v(36 + 8 * p, 4), cfg.r_pol))
        if p < 15: A('s_add_u32 s15, s15, %d' % cfg.pstride)
    for p in range(16):
        A('s_waitcnt vmcnt(%d)' % (2 * (15 - p)))
        for k in range(8):
            src = 32 + 8 * p + k
            if p == 0:
                A('v_lshlrev_b32 %s, 16, %s' % (v(8 + 2 * k), v(src)))
                A('v_and_b32 %s, 0xffff0000, %s' % (v(9 + 2 * k), v(src)))
            else:
                tt = 24 + 2 * (k & 1)
                A('v_lshlrev_b32 %s, 16, %s' % (v(tt), v(src)))
                A('v_and_b32 %s, 0xffff0000, %s' % (v(tt + 1), v(src)))
                A('v_pk_add_f32 %s, %s, %s' % (v(8 + 2 * k, 2), v(8 + 2 * k, 2), v(tt, 2)))
    for k in range(8): A('v_cvt_pk_bf16_f32 %s, %s, %s' % (v(24 + k), v(8 + 2 * k), v(9 + 2 * k)))
    for op in ('v_permlane32_swap_b32', 'v_permlane16_swap_b32'):
        for r in (24, 25, 28, 29): A('%s %s, %s' % (op, v(r), v(r + 2)))
    A('buffer_store_dwordx4 v[24:27], v5, s[4:7], s17 offen')
    A('buffer_store_dwordx4 v[28:31], v5, s[4:7], s18 offen')
    checks.append(('k2', A.lines[m9:]))
    if cfg.probe >= 0:
        A('s_waitcnt vmcnt(0)')
        A('s_memrealtime s[26:27]')
        A('s_cmp_lg_u32 s20, 0'); A('s_cbranch_scc1 L_end2')
        A('s_cmp_eq_u32 s2, 64'); A('s_cbranch_scc0 L_end2')
        A('s_mov_b32 s10, 402653184')
        A('s_lshl_b32 s29, s2, 10'); A('s_add_u32 s29, s29, %d' % (64 << 20))
        A('v_mov_b32 v1, 0')
        for k, i in enumerate((11, 2, 4, 6, 8, 12)):
            A('buffer_load_dword v%d, v1, s[8:11], s29 offen offset:%d' % (10 + k, 8 * i))
        A('s_waitcnt vmcnt(0) lgkmcnt(0)')
        A('v_mov_b32 v16, s24'); A('v_mov_b32 v17, s26')
        if cfg.probe == 0: A('v_mov_b32 v18, 0')
        else: A('v_sub_u32 v18, v%d, v%d' % (10 + cfg.probe, 9 + cfg.probe))
        A('v_min_u32 v18, 10000, v18')
        A('s_nop 1')
        A('v_readfirstlane_b32 s28, v18')
        A('s_lshl_b32 s28, s28, 2')
        A('L_spin:')
        A('s_memrealtime s[30:31]'); A('s_waitcnt lgkmcnt(0)')
        A('s_sub_u32 s30, s30, s26')
        A('s_cmp_lt_u32 s30, s28'); A('s_cbranch_scc1 L_spin')
    if cfg.dbg:
        A('s_waitcnt vmcnt(0)')
        A('s_memrealtime s[26:27]')
        A('s_cmp_lg_u32 s20, 0'); A('s_cbranch_scc1 L_end2')
        A('s_mov_b32 s28, 0')
        A('s_cmp_eq_u32 s2, 0'); A('s_cbranch_scc1 L_dbgw')
        A('s_mov_b32 s28, 32')
        A('s_cmp_eq_u32 s2, 133'); A('s_cbranch_scc0 L_end2')
        A('L_dbgw:')
        A('s_load_dwordx2 s[4:5], s[0:1], 48'); A('s_mov_b32 s6, 256'); A('s_mov_b32 s10, 402653184')
        A('s_lshl_b32 s29, s2, 10'); A('s_add_u32 s29, s29, %d' % (64 << 20))
        A('v_mov_b32 v1, 0'); A('s_mov_b64 exec, 1')
        for k, i in enumerate((11, 2, 4, 6, 8, 12)):
            A('buffer_load_dword v%d, v1, s[8:11], s29 offen offset:%d' % (10 + k, 8 * i))
        A('s_waitcnt vmcnt(0) lgkmcnt(0)')
        A('v_mov_b32 v16, s24'); A('v_mov_b32 v17, s26')
        for k in range(1, 8):
            A('v_sub_u32 v%d, v%d, v10' % (10 + k, 10 + k))
            A('buffer_store_dword v%d, v1, s[4:7], s28 offen offset:%d' % (10 + k, 4 * (k - 1)))
    A('L_end2:')
    A('s_endpgm')
    if cfg.codepf:
        A('.set CODE_LAST, L_end2-L_pc')
        A('.set CODE_SHARE, ((L_end2-L_pc)/32/128+1)*128')
    A('.section .rodata,"a"')
    for name, nv, ns in (('mha_k1_kernel', 256, 102 if cfg.stamp else 80), ('mha_k2_kernel', 160, 40)):
        A('.p2align 6')
        A('.amdhsa_kernel %s' % name)
        A('  .amdhsa_next_free_vgpr %d' % nv); A('  .amdhsa_next_free_sgpr %d' % ns); A('  .amdhsa_accum_offset %d' % nv)
        A('  .amdhsa_group_segment_fixed_size 0'); A('  .amdhsa_kernarg_size 64'); A('  .amdhsa_user_sgpr_count 2')
        A('  .amdhsa_user_sgpr_kernarg_segment_ptr 1'); A('  .amdhsa_system_sgpr_workgroup_id_x 1')
        A('.end_amdhsa_kernel')
    nerr = 0
    for name, seq in checks:
        for e in check_seq(seq, name):
            print(e); nerr += 1
    assert nerr == 0, 'hazards'
    open(fname, 'w').write(A.text())

if __name__ == '__main__':
    cfg = Cfg()
    out = sys.argv[1] if len(sys.argv) > 1 else 'k.s'
    for kv in sys.argv[2:]:
        k, val = kv.split('=', 1)
        cur = getattr(cfg, k)
        setattr(cfg, k, type(cur)(val.replace('_', ' ')) if isinstance(cur, str) else type(cur)(val))
    gen(cfg, out)
```
